```python
import torch

def _softmax(x, axis=-1):
    return torch.softmax(x, dim=axis)
def _gelu(x):
    return torch.nn.functional.gelu(x, approximate="tanh")
def _silu(x):
    return torch.nn.functional.silu(x)
def _sigmoid(x):
    return torch.sigmoid(x)
def _layernorm(x, axis=-1, eps=1e-5):
    m = x.mean(dim=axis, keepdim=True)
    v = x.var(dim=axis, keepdim=True, unbiased=False)
    return (x - m) / torch.sqrt(v + eps)
def _scatter_add(tgt, idx, src, axis=0):
    return tgt.clone().index_add_(axis, idx, src)
def _segment_sum(src, seg, n):
    out = torch.zeros((n,) + src.shape[1:], dtype=src.dtype)
    return out.index_add_(0, seg, src)
def _pad(x, pw):
    flat = tuple(v for pair in reversed(pw) for v in pair)
    return torch.nn.functional.pad(x, flat)

kernel_name = 'parallel_sum__sliding_block_cached__dense_activation_relu__decode'

def setup_inputs():

    _w = (lambda a: (lambda t: t.to(torch.bfloat16) if t.is_floating_point() else t)(torch.as_tensor(a)))
    def _A_setup():
        B, Sq, D = 8, 1, 512
        Hq, Hkv, Sk, Dh = 32, 8, 8192, 128
        assert Hq % Hkv == 0, (Hq, Hkv)
        return {
            "x": _w((lambda *s: torch.randn(*s, dtype=torch.bfloat16) * 0.05)(B, Sq, D)),
            "k_cache": _w((lambda *s: torch.randn(*s, dtype=torch.bfloat16) * 3.2)(B, Hkv, Sk, Dh)),
            "v_cache": _w((lambda *s: torch.randn(*s, dtype=torch.bfloat16) * 1.6)(B, Hkv, Sk, Dh)),
            "wq": _w((lambda *s: torch.randn(*s, dtype=torch.bfloat16) * 3.2)(D, Hq * Dh) * (D ** -0.5)),
            "wo": _w((lambda *s: torch.randn(*s, dtype=torch.bfloat16) * 1.6)(Hq * Dh, D) * ((Hq * Dh) ** -0.5)),
        }
    _A_in = _A_setup()

    def _B_setup():
        B, S, D, Dff = 8, 1, 512, 1792
        return {
            "x": _w((lambda *s: torch.randn(*s, dtype=torch.bfloat16) * 0.05)(B, S, D)),
            "w1": _w((lambda *s: torch.randn(*s, dtype=torch.bfloat16) * 0.05)(D, Dff)),
            "w2": _w((lambda *s: torch.randn(*s, dtype=torch.bfloat16) * 0.05)(Dff, D)),
        }
    _B_in = _B_setup()

    return {
        "A_x": _A_in["x"],
        "A_k_cache": _A_in["k_cache"],
        "A_v_cache": _A_in["v_cache"],
        "A_wq": _A_in["wq"],
        "A_wo": _A_in["wo"],
        "B_x": _B_in["x"],
        "B_w1": _B_in["w1"],
        "B_w2": _B_in["w2"],
    }

def reference(A_x, A_k_cache, A_v_cache, A_wq, A_wo, B_x, B_w1, B_w2):
    def _A_ref(x, k_cache, v_cache, wq, wo):
        B, Sq, D = x.shape
        Hq, Dh = 32, 128
        Hkv, Sk = k_cache.shape[1], k_cache.shape[2]
        W = min(4096, max(256, Sk // 4))
        rep = Hq // Hkv
        q = (lambda x, *d: x.permute(*d))((x @ wq).reshape(B, Sq, Hq, Dh), 0, 2, 1, 3)
        k = (lambda x, n, axis: torch.repeat_interleave(x, n, dim=axis))(k_cache[:, :, Sk - W:, :], rep, axis=1)
        v = (lambda x, n, axis: torch.repeat_interleave(x, n, dim=axis))(v_cache[:, :, Sk - W:, :], rep, axis=1)
        scores = torch.einsum("bhqd,bhkd->bhqk", q, k) * (Dh ** -0.5)
        p = _softmax(scores, axis=-1)
        o = torch.einsum("bhqk,bhkd->bhqd", p, v)
        return (lambda x, *d: x.permute(*d))(o, 0, 2, 1, 3).reshape(B, Sq, Hq * Dh) @ wo

    def _B_ref(x, w1, w2):
        h = torch.einsum("bsd,df->bsf", x, w1)
        zero = torch.zeros_like(h)
        h = torch.maximum(h, zero)
        return torch.einsum("bsf,fd->bsd", h, w2)

    x = A_x
    xn = _layernorm(x, axis=-1)
    return x + _A_ref(xn, A_k_cache, A_v_cache, A_wq, A_wo) + _B_ref(xn, B_w1, B_w2)
```

```python
import re

_REG = re.compile(r'^(v|s|a)(\d+)$')
_RNG = re.compile(r'^(v|s|a)\[(\d+):(\d+)\]$')

def regs_of(tok):
    tok = tok.strip()
    tok = tok.lstrip('-')
    if tok.startswith('abs(') and tok.endswith(')'):
        tok = tok[4:-1]
    if tok.startswith('|') and tok.endswith('|'):
        tok = tok[1:-1]
    m = _REG.match(tok)
    if m:
        return [(m.group(1), int(m.group(2)))]
    m = _RNG.match(tok)
    if m:
        return [(m.group(1), i) for i in range(int(m.group(2)), int(m.group(3)) + 1)]
    if tok == 'vcc':
        return [('s', 106), ('s', 107)]
    if tok in ('vcc_lo',):
        return [('s', 106)]
    if tok in ('vcc_hi',):
        return [('s', 107)]
    if tok == 'exec':
        return [('s', 126), ('s', 127)]
    if tok == 'm0':
        return [('s', 124)]
    return []

TRANS = ('v_exp_f32', 'v_log_f32', 'v_rcp_f32', 'v_rsq_f32', 'v_sqrt_f32', 'v_sin_f32', 'v_cos_f32')

class Ins:
    __slots__ = ('text', 'mn', 'kind', 'rd', 'wr', 'dpp', 'srcc', 'srcab', 'passes', 'states', 'stdata', 'lanesel')

def parse(line):
    t = line.split(';')[0].strip()
    I = Ins(); I.text = line; I.rd = []; I.wr = []; I.dpp = False; I.srcc = []; I.srcab = []; I.passes = 0; I.states = 1; I.stdata = []; I.lanesel = []
    if not t or t.endswith(':') or t.startswith('.'):
        I.mn = ''; I.kind = 'label' if t.endswith(':') else 'none'; I.states = 0
        return I
    parts = t.split(None, 1)
    mn = parts[0]; I.mn = mn
    rest = parts[1] if len(parts) > 1 else ''
    ops = []; cur = ''; depth = 0
    for ch in rest:
        if ch == '[': depth += 1
        if ch == ']': depth -= 1
        if ch == ',' and depth == 0:
            ops.append(cur.strip()); cur = ''
        else:
            cur += ch
    if cur.strip(): ops.append(cur.strip())
    mods = ''
    if ops:
        sp = ops[-1].split(None, 1)
        ops[-1] = sp[0]
        if len(sp) > 1: mods = sp[1]
    R = [regs_of(o) for o in ops]
    if mn.startswith('v_mfma'):
        I.kind = 'mfma'
        I.wr = R[0]; I.srcab = R[1] + R[2]; I.srcc = R[3] if len(R) > 3 else []
        I.rd = I.srcab + I.srcc
        I.passes = 8 if '32x32' in mn else (2 if '4x4x4' in mn else 4)
    elif mn.startswith('v_'):
        I.kind = 'valu'
        I.dpp = ('_dpp' in mn) or ('row_' in mods) or ('quad_perm' in mods)
        if mn.startswith('v_permlane') and 'swap' in mn:
            I.wr = R[0] + R[1]; I.rd = R[0] + R[1]
        elif mn.startswith('v_cmpx'):
            I.wr = R[0] + regs_of('exec'); I.rd = sum(R[1:], [])
        elif mn.startswith('v_nop'):
            pass
        else:
            I.wr = R[0]; I.rd = sum(R[1:], [])
            if mn.startswith(('v_fmac', 'v_dot2c', 'v_writelane')) or I.dpp:
                I.rd = I.rd + R[0]
            if mn.startswith('v_cndmask') and len(ops) == 3:
                I.rd = I.rd + regs_of('vcc')
            if mn.startswith(('v_add_co', 'v_sub_co', 'v_addc_co')):
                I.wr = R[0] + R[1]; I.rd = sum(R[2:], [])
            if mn.startswith(('v_readlane', 'v_writelane')):
                I.lanesel = R[2]
    elif mn.startswith(('buffer_', 'global_')):
        I.kind = 'vmem'
        if '_load' in mn and 'lds' not in mods and '_lds' not in mn:
            I.wr = R[0]; I.rd = sum(R[1:], [])
        elif mn.startswith('buffer_store') or mn.startswith('buffer_atomic'):
            I.rd = sum(R, [])
            if 'x4' in mn or 'x3' in mn: I.stdata = R[0]
        elif mn.startswith('global_store'):
            I.rd = sum(R, [])
            if 'x4' in mn or 'x3' in mn: I.stdata = R[1]
        else:
            I.rd = sum(R, [])
    elif mn.startswith('ds_'):
        I.kind = 'ds'
        if mn.startswith(('ds_read', 'ds_bpermute', 'ds_permute', 'ds_swizzle')) or '_rtn' in mn:
            I.wr = R[0]; I.rd = sum(R[1:], [])
        else:
            I.rd = sum(R, [])
    elif mn.startswith('s_'):
        I.kind = 'salu'
        if mn == 's_nop':
            I.states = int(ops[0], 0) + 1
        elif mn.startswith(('s_cmp', 's_cbranch', 's_branch', 's_waitcnt', 's_barrier', 's_sleep', 's_setprio', 's_endpgm', 's_bitcmp')):
            I.rd = sum(R, [])
        else:
            I.wr = R[0] if R else []; I.rd = sum(R[1:], [])
            if 'saveexec' in mn: I.wr = I.wr + regs_of('exec')
    else:
        raise ValueError("unknown instr: " + line)
    return I

def need(P, C):
    n = 0
    pw = set(P.wr); cr = set(C.rd); cw = set(C.wr)
    pv = {r for r in pw if r[0] in 'va'}; ps = {r for r in pw if r[0] == 's'}
    if P.kind == 'valu':
        if C.kind == 'mfma' and pv & cr: n = max(n, 2)
        if C.kind == 'valu' and C.dpp and pv & cr: n = max(n, 2)
        if C.kind == 'valu' and C.mn.startswith('v_permlane') and pv & cr: n = max(n, 2)
        if C.kind == 'valu' and C.mn.startswith(('v_readlane', 'v_readfirstlane')) and pv & cr: n = max(n, 1)
        if P.mn.startswith(TRANS) and C.kind in ('valu', 'mfma', 'vmem', 'ds') and pv & cr: n = max(n, 1)
        if ps:
            if C.kind == 'valu' and ps & cr: n = max(n, 2)
            if C.kind == 'valu' and ps & set(C.lanesel): n = max(n, 4)
            if C.kind == 'vmem' and ps & cr: n = max(n, 5)
            if C.kind == 'salu' and ps & cr: n = max(n, 1)
            if C.mn.startswith('s_cbranch_vcc') and ps & {('s', 106), ('s', 107)}: n = max(n, 1)
            if ps & {('s', 126), ('s', 127)}:
                if C.kind == 'valu' and C.dpp: n = max(n, 5)
                if C.kind == 'mfma': n = max(n, 4)
                if C.kind == 'valu' and C.mn.startswith(('v_readlane', 'v_readfirstlane', 'v_writelane', 'v_permlane')): n = max(n, 4)
    if P.kind == 'mfma':
        full = {2: 5, 4: 8, 8: 12, 16: 20}[P.passes]
        if C.kind == 'mfma':
            if pv & set(C.srcab): n = max(n, full)
            if pv & set(C.srcc):
                if list(C.srcc) == list(P.wr) and C.passes == P.passes:
                    n = max(n, 2 if P.passes == 2 else 0)
                else:
                    n = max(n, {2: 4, 4: 6, 8: 10, 16: 18}[P.passes])
            elif pv & cw:
                n = max(n, {2: 4, 4: 6, 8: 10, 16: 18}[P.passes])
        elif C.kind in ('valu', 'vmem', 'ds'):
            if pv & (cr | cw): n = max(n, full)
        if C.kind == 'valu' and set(P.srcc) & cw:
            n = max(n, {2: 1, 4: 3, 8: 7, 16: 15}[P.passes])
    if P.kind == 'vmem' and P.stdata:
        if set(P.stdata) & cw:
            n = max(n, 2 if C.kind in ('valu', 'mfma') else 1)
    if P.kind == 'salu' and ('s', 124) in pw and C.kind in ('vmem', 'ds'):
        n = max(n, 1)
    return n

class Asm:
    def __init__(self):
        self.out = []
        self.win = []
        self.uid = 0
    def label(self, base='L'):
        self.uid += 1
        return f"{base}_{self.uid}"
    def _push(self, I):
        self.out.append(I.text)
        if I.states:
            self.win = [(p, d + I.states) for (p, d) in self.win if d + I.states < 24]
        if I.kind in ('valu', 'mfma', 'vmem', 'salu') and (I.wr or I.stdata or I.srcc):
            self.win.append((I, 0))
    def _nops(self, n):
        while n > 0:
            k = min(n, 16)
            self._push(parse(f"s_nop {k-1}"))
            n -= k
    def flush(self):
        n = 0
        for (p, d) in self.win:
            if p.kind == 'mfma': w = {2: 5, 4: 8, 8: 12, 16: 20}[p.passes]
            elif p.kind == 'valu': w = 5 if any(r[0] == 's' for r in p.wr) else 2
            elif p.kind == 'vmem': w = 2 if p.stdata else 0
            else: w = 1 if ('s', 124) in set(p.wr) else 0
            n = max(n, w - d)
        self._nops(n)
        self.win = []
    def __call__(self, text):
        for line in text.strip('\n').split('\n'):
            I = parse(line)
            if I.kind in ('none',):
                self.out.append(line); continue
            if I.kind == 'label':
                self.out.append(line); continue
            if I.mn.startswith(('s_branch', 's_cbranch')):
                n = 0
                for (p, d) in self.win:
                    if p.kind == 'mfma': w = {2: 5, 4: 8, 8: 12, 16: 20}[p.passes]
                    elif p.kind == 'valu': w = 5 if any(r[0] == 's' for r in p.wr) else 2
                    elif p.kind == 'vmem': w = 2 if p.stdata else 0
                    else: w = 1 if ('s', 124) in set(p.wr) else 0
                    n = max(n, w - d - 1)
                self._nops(n)
                self._push(I)
                continue
            n = 0
            for (p, d) in self.win:
                n = max(n, need(p, I) - d)
            self._nops(n)
            self._push(I)
    def text(self):
        return "\n".join(self.out) + "\n"
```

```python
import sys, argparse
from asmlib import Asm
NAME = "parallel_sum__sliding_block_cached__dense_activation_relu__decode"

WS_QP = 0x000000
WS_OX = 0x100000
WS_OA = 0x200000
WS_OB = 0x300000
WS_ST = 0x400000
WS_HQ = 0x410000
WS_HH = 0x418000
WS_HP = 0x420000
WS_E  = 0x490000
WS_SIZE = 0x491000
STAMP_OFF = 256 << 20
L_CNT_XN = 0; L_F_H = 4; L_F_Q = 8; L_CNT_K = 12; L_CNT_L = 16; L_F_HN = 20; L_TAG = 24; L_F_P = 32
L_ZERO = 64; L_F_D = 96; L_CNT_WO = 112; L_CNT_ISS = 116; L_ZEND = 128
L_STAT = 128; L_O16 = 512; L_HN = 1024; L_Q = 2048; L_P = 3072; L_XN = 7168; L_OP = 15360; L_DX = L_OP + 8192; L_WO = L_DX + 8192; L_END = L_WO + 131072
assert L_END <= 163840

LOG2E = 0x3fb8aa3b
SCALE = 0x3db504f3
SPIN = 1 << 16

def gen(fname, stamps=None, wflag="", kvflag=" nt", psleep=1, burst="split", abl=()):
    k = Asm()
    H = []
    H.append(open("cdna_kernels/%s.s.ref" % NAME).read().split("; Override launch")[0].rstrip("\n"))
    H.append(f"; @launch grid=(256,1,1) block=(1024,1,1) lds={L_END}")
    H.append('.amdgcn_target "amdgcn-amd-amdhsa--gfx950"')
    H.append(".text"); H.append(f".globl {NAME}_kernel"); H.append(".p2align 8"); H.append(f".type {NAME}_kernel,@function")
    H.append(f"{NAME}_kernel:")

    VL = "v126"; VZ = "v127"
    TA, TB = "s68", "s69"
    def srd(d, lo, off, size):
        if off is None:
            k(f"s_mov_b32 s{d}, s{lo}\ns_mov_b32 s{d+1}, s{lo+1}")
        else:
            k(f"s_add_u32 s{d}, s{lo}, {off}\ns_addc_u32 s{d+1}, s{lo+1}, 0")
        k(f"s_mov_b32 s{d+2}, {size}\ns_mov_b32 s{d+3}, 0x20000")
    SX, SKV, SWA, SWB, SWS, SOUT = [f"s[{a}:{a+3}]" for a in (36, 40, 44, 48, 56, 60)]

    def stamp(name):
        if not stamps or name not in stamps: return
        sl = stamps[name]
        k(f"s_memrealtime s[{96+2*sl}:{97+2*sl}]")
    def stamp_flush():
        if not stamps: return
        k(f"""s_waitcnt lgkmcnt(0)
s_mov_b64 exec, 1
s_lshl_b32 s76, s2, 9
s_lshl_b32 s77, s31, 5
s_add_u32 s76, s76, s77
s_add_u32 s76, s76, {STAMP_OFF}
s_add_u32 s76, s24, s76
s_addc_u32 s77, s25, 0
v_mov_b32 v0, s96
v_mov_b32 v1, s97
v_mov_b32 v2, s98
v_mov_b32 v3, s99
v_mov_b32 v4, s100
v_mov_b32 v5, s101
global_store_dwordx4 {VZ}, v[0:3], s[76:77]
global_store_dwordx2 {VZ}, v[4:5], s[76:77] offset:16""")

    def lds_wait(addr, val, vaddr=VZ, vt="v125"):
        lp = k.label("Lw"); dn = k.label("Ld")
        k(f"s_mov_b32 s72, {SPIN}")
        k(f"{lp}:")
        k(f"""ds_read_b32 {vt}, {vaddr} offset:{addr}
s_waitcnt lgkmcnt(0)
v_readfirstlane_b32 s73, {vt}
s_cmp_ge_u32 s73, {val}
s_cbranch_scc1 {dn}
s_sleep 1
s_sub_u32 s72, s72, 1
s_cmp_lg_u32 s72, 0
s_cbranch_scc1 {lp}""")
        k(f"{dn}:")
    def lds_inc(addr, vaddr=VZ, vt="v125"):
        k(f"""s_waitcnt lgkmcnt(0)
v_mov_b32 {vt}, 1
s_mov_b64 exec, 1
ds_add_u32 {vaddr}, {vt} offset:{addr}
s_mov_b64 exec, -1""")
    def rnd(dst, src):
        k(f"v_cvt_pk_bf16_f32 {dst}, {src}, {src}\nv_lshlrev_b32 {dst}, 16, {dst}")
    def row_reduce(op, v, steps=(8, 4, 2, 1)):
        for n in steps:
            k(f"{op}_dpp {v}, {v}, {v} row_ror:{n} row_mask:0xf bank_mask:0xf")
    def xrow_reduce(op, v, t, which=(16, 32)):
        for w in which:
            k(f"v_mov_b32 {t}, {v}\nv_permlane{w}_swap_b32 {v}, {t}\n{op} {v}, {v}, {t}")
    def perms(T, W, w):
        for p in range(4):
            k(f"v_perm_b32 v{T+p}, v{W+4*(2*p+1)+w}, v{W+4*(2*p)+w}, s34")
        for p in range(4):
            k(f"v_perm_b32 v{T+4+p}, v{W+4*(2*p+1)+w}, v{W+4*(2*p)+w}, s35")
    def mfma(D, A, B, C):
        c = "0" if C is None else f"v[{C}:{C+3}]"
        k(f"v_mfma_f32_16x16x32_bf16 v[{D}:{D+3}], v[{A}:{A+3}], v[{B}:{B+3}], {c}")
    def tagcheck(bases, acc, t1, t2):
        for n, r in enumerate(bases):
            k(f"v_xor_b32 {t1}, {TA}, v{r+1}\nv_xor_b32 {t2}, {TB}, v{r+3}")
            if n == 0: k(f"v_or_b32 {acc}, {t1}, {t2}")
            else: k(f"v_or3_b32 {acc}, {acc}, {t1}, {t2}")
        k(f"v_cmp_ne_u32 vcc, 0, {acc}")
    def gettags():
        k(f"""ds_read_b64 v[124:125], {VZ} offset:{L_TAG}
s_waitcnt lgkmcnt(0)
v_readfirstlane_b32 {TA}, v124
v_readfirstlane_b32 {TB}, v125""")
    def wo_addr(vdst):
        k(f"""v_bfe_u32 {vdst}, {VL}, 3, 1
v_lshlrev_b32 {vdst}, 6, {vdst}
v_add_u32 {vdst}, {vdst}, v108
v_lshl_add_u32 {vdst}, {vdst}, 10, v111""")
    def wo_dma(vaddr, n, lab):
        if "nowo" in abl: return
        k(f"""s_add_u32 s84, s83, {n}
{lab}:
s_lshr_b32 s80, s83, 4
s_lshl_b32 s80, s80, 7
s_and_b32 s81, s83, 7
s_lshl_b32 s81, s81, 13
s_add_u32 s80, s80, s81
s_and_b32 s81, s83, 8
s_lshl_b32 s81, s81, 9
s_add_u32 s80, s80, s81
s_add_u32 s80, s80, s79
s_lshl_b32 s81, s83, 10
s_add_u32 m0, s81, {L_WO}
s_add_u32 s83, s83, 1
buffer_load_dwordx4 {vaddr}, {SWB}, s80 offen{wflag} lds
s_cmp_lt_u32 s83, s84
s_cbranch_scc1 {lab}""")

    stamp("start")
    k(f"""s_cmp_ge_u32 s2, 256
s_cbranch_scc1 L_end
s_load_dwordx16 s[4:19], s[0:1], 0
s_load_dwordx4 s[20:23], s[0:1], 64
s_load_dwordx2 s[24:25], s[0:1], 80
s_and_b32 s26, s2, 7
s_lshr_b32 s27, s2, 3
s_lshr_b32 s28, s27, 2
s_and_b32 s29, s27, 3
s_lshl_b32 s30, s26, 2
s_add_u32 s30, s30, s29
s_lshl_b32 s32, s28, 3
s_add_u32 s32, s32, s26
s_mov_b32 s34, 0x05040100
s_mov_b32 s35, 0x07060302
v_and_b32 {VL}, 63, v0
v_mov_b32 {VZ}, 0
v_lshrrev_b32 v1, 6, v0
v_lshlrev_b32 v2, 2, v0
v_readfirstlane_b32 s31, v1
v_cmp_gt_u32 vcc, {L_ZEND//4}, v0
s_and_saveexec_b64 s[70:71], vcc
ds_write_b32 v2, {VZ}
s_mov_b64 exec, s[70:71]
s_lshl_b32 s74, s28, 24
s_lshl_b32 s75, s26, 21
s_add_u32 s74, s74, s75
s_add_u32 s74, s74, {6144*256}
s_and_b32 s33, s31, 7
v_lshrrev_b32 v108, 4, {VL}
v_and_b32 v111, 7, {VL}
v_lshlrev_b32 v111, 4, v111
v_bfe_u32 v112, {VL}, 3, 1
v_lshlrev_b32 v112, 3, v112
v_lshl_add_u32 v112, v108, 4, v112
v_lshlrev_b32 v120, 4, {VL}
s_and_b32 s75, s33, 3
s_lshl_b32 s75, s75, 10
s_lshr_b32 s76, s33, 2
s_lshl_b32 s76, s76, 18
s_add_u32 s75, s75, s76
s_lshl_b32 s76, s29, 12
s_add_u32 s78, s75, s76
s_lshr_b32 s64, s28, 1
s_lshl_b32 s64, s64, 3
s_add_u32 s64, s64, s26
s_and_b32 s65, s28, 1
s_waitcnt lgkmcnt(0)""")
    if "noffn" in abl: k("s_mov_b32 s64, 99")
    k("s_cmp_lt_u32 s31, 8\ns_cbranch_scc1 L_kwave")
    k("s_setprio 3")
    srd(36, 4, None, 8192)
    k(f"""s_lshl_b32 s75, s33, 10
buffer_load_dwordx4 v[96:99], v120, {SX}, s75 offen
s_cmp_eq_u32 s33, 0
s_cbranch_scc1 L_setq
s_cmp_lg_u32 s33, 4
s_cbranch_scc1 L_nq1
s_cmp_ge_u32 s64, 28
s_cbranch_scc1 L_nq1
s_cmp_eq_u32 s65, 0
s_cbranch_scc1 L_setf1""")
    srd(44, 18, None, 1792 * 1024)
    k(f"""s_movk_i32 s77, 0x400
s_mov_b32 s79, {(-7*1024+128) & 0xffffffff}
s_lshl_b32 s75, s64, 16
s_lshl_b32 s76, s29, 8
s_add_u32 s75, s75, s76
s_branch L_tload
L_setf1:""")
    srd(44, 16, None, 512 * 3584)
    k(f"""s_movk_i32 s77, 3584
s_mov_b32 s79, {57*3584}
s_mul_i32 s75, s29, {128*3584}
s_lshl_b32 s76, s64, 7
s_add_u32 s75, s75, s76
s_branch L_tload
L_setq:""")
    srd(44, 10, None, 4 << 20)
    k(f"""s_mov_b32 s76, {WS_E}
s_load_dword s68, s[24:25], s76
s_movk_i32 s77, 0x2000
s_mov_b32 s79, {57*8192}
s_lshl_b32 s75, s29, 20
s_lshl_b32 s76, s26, 10
s_add_u32 s75, s75, s76
s_lshl_b32 s76, s28, 7
s_add_u32 s75, s75, s76
L_tload:
v_mul_lo_u32 v121, v112, s77
v_add_u32 v121, v121, v111""")
    for ub in range(2):
        for t in range(8):
            r = 32 * ub + 4 * t
            if "notile" not in abl: k(f"buffer_load_dwordx4 v[{r}:{r+3}], v121, {SWA}, s75 offen{kvflag}")
            k("s_add_u32 s75, s75, s77" if t < 7 else "s_add_u32 s75, s75, s79")
    k(f"""s_barrier
s_cmp_lg_u32 s33, 0
s_cbranch_scc1 L_notag
s_waitcnt lgkmcnt(0)
s_add_u32 {TA}, {TA}, 1
s_mul_i32 {TB}, {TA}, 0x9e3779b1
s_xor_b32 {TB}, {TB}, 0x5bd1e995
v_mov_b32 v124, {TA}
v_mov_b32 v125, {TB}
ds_write_b64 {VZ}, v[124:125] offset:{L_TAG}
L_notag:
s_waitcnt vmcnt({0 if "notile" in abl else 16})
s_branch L_ln""")
    k("L_nq1:")
    k(f"""s_cmp_ge_u32 s33, 3
s_cbranch_scc1 L_nopf
s_getpc_b64 s[80:81]
L_pc:
s_sub_u32 s80, s80, L_pc-{NAME}_kernel
s_subb_u32 s81, s81, 0
s_mov_b32 s82, L_codeend-{NAME}_kernel
s_mov_b32 s83, 0x20000
s_lshl_b32 s75, s29, 1
s_add_u32 s75, s75, s33
s_sub_u32 s75, s75, 1
s_lshl_b32 s75, s75, 11
buffer_load_dwordx4 v[0:3], v120, s[80:83], s75 offen
buffer_load_dwordx4 v[0:3], v120, s[80:83], s75 offen offset:1024
s_barrier""")
    k(f"""s_waitcnt vmcnt(2)
s_branch L_ln
L_nopf:
s_barrier
s_waitcnt vmcnt(0)
s_branch L_ln""")

    k.flush()
    k("L_kwave:")
    srd(40, 6, "s74", 524288)
    k(f"""v_bfe_u32 v109, {VL}, 2, 2
v_and_b32 v110, 3, {VL}
v_lshlrev_b32 v120, 8, v109
v_lshl_add_u32 v120, v108, 6, v120
v_lshl_add_u32 v120, v110, 4, v120
v_add_u32 v120, s78, v120
s_mov_b32 s76, 0
s_movk_i32 s77, 0x4000
s_barrier""")
    for t in range(16):
        k(f"buffer_load_dwordx4 v[{4*t}:{4*t+3}], v120, {SKV}, s76 offen{kvflag}\ns_add_u32 s76, s76, s77")
    stamp("kissued")
    srd(56, 24, None, WS_SIZE)
    srd(48, 12, None, 4 << 20)
    k(f"""v_lshlrev_b32 v113, 8, v110
v_lshl_add_u32 v113, v108, 6, v113
v_lshl_add_u32 v113, v109, 4, v113
v_lshlrev_b32 v114, 7, v110
v_lshl_add_u32 v114, v108, 5, v114
v_lshl_add_u32 v114, v109, 3, v114
s_lshl_b32 s76, s33, 9
v_add_u32 v114, s76, v114
v_and_b32 v115, 1, {VL}
v_lshlrev_b32 v115, 3, v115
v_lshl_add_u32 v115, v108, 4, v115
v_lshlrev_b32 v121, 1, v115
v_lshl_add_u32 v122, v108, 7, v111
v_add_u32 v122, s76, v122
v_bfe_u32 v116, {VL}, 2, 3
v_lshlrev_b32 v116, 5, v116
v_lshl_add_u32 v116, v110, 2, v116
s_lshl_b32 s76, s33, 5
v_lshlrev_b32 v117, 2, {VL}
v_add_u32 v117, s76, v117
s_lshl_b32 s76, s33, 2
v_mov_b32 v123, s76
s_lshl_b32 s79, s30, 17
s_lshl_b32 s83, s33, 5""")
    wo_addr("v118")
    k("s_waitcnt vmcnt(0)")
    stamp("karr")
    def burst_code(lab):
        k(f"s_setprio 3")
        wo_dma("v118", 32, lab)
        k("s_setprio 0")
    if burst == "split": k("s_and_b32 s66, s28, 1")
    elif burst == "early": k("s_mov_b32 s66, 0")
    else: k("s_mov_b32 s66, 1")
    k("""s_cmp_ge_u32 s33, 4
s_cselect_b32 s66, 2, s66
s_cmp_lg_u32 s66, 0
s_cbranch_scc1 L_nb0""")
    burst_code("L_burst0")
    k("L_nb0:")
    lds_wait(L_F_Q, 2)
    k(f"ds_read_b128 v[96:99], v113 offset:{L_Q}")
    gettags()
    stamp("qready")
    def Dreg(t): return 100 if t == 0 else 4 * (t - 1)
    def qk_step(t, i):
        D = Dreg(t); tb = t >> 2; R = 104 + (t & 3)
        qs = [q for q in range(4) if q != tb]
        q = qs[i]; n = (4 * (tb - q)) % 16
        src1 = f"v{D+tb}" if i == 0 else f"v{R}"
        k(f"v_add_f32_dpp v{R}, v{D+q}, {src1} row_ror:{n} row_mask:0xf bank_mask:{1 << tb:#x}")
    for t in range(16 + 5):
        if t < 16:
            mfma(Dreg(t), 4 * t, 96, None)
        for i in range(3):
            tt = t - 3 - i
            if 0 <= tt < 16: qk_step(tt, i)
    k(f"""s_mov_b32 s76, {SCALE:#x}
s_mov_b32 s77, {LOG2E:#x}
v_cvt_pk_bf16_f32 v0, v104, v105
v_cvt_pk_bf16_f32 v1, v106, v107
v_lshlrev_b32 v2, 16, v0
v_and_b32 v3, 0xffff0000, v0
v_lshlrev_b32 v4, 16, v1
v_and_b32 v5, 0xffff0000, v1
v_mul_f32 v2, s76, v2
v_mul_f32 v3, s76, v3
v_mul_f32 v4, s76, v4
v_mul_f32 v5, s76, v5
v_cvt_pk_bf16_f32 v0, v2, v3
v_cvt_pk_bf16_f32 v1, v4, v5
v_lshlrev_b32 v2, 16, v0
v_and_b32 v3, 0xffff0000, v0
v_lshlrev_b32 v4, 16, v1
v_and_b32 v5, 0xffff0000, v1
v_max3_f32 v6, v2, v3, v4
v_max_f32 v6, v6, v5""")
    row_reduce("v_max_f32", "v6", (4, 8))
    xrow_reduce("v_max_f32", "v6", "v7")
    k(f"""s_mov_b64 exec, 0xf
ds_write_b32 v117, v6 offset:{L_STAT}
s_mov_b64 exec, -1""")
    lds_inc(L_CNT_K)
    lds_wait(L_CNT_K, 8)
    k(f"ds_read_b32 v6, v116 offset:{L_STAT}\ns_waitcnt lgkmcnt(0)")
    row_reduce("v_max_f32", "v6", (4, 8))
    xrow_reduce("v_max_f32", "v6", "v7", (16,))
    for i in range(4): k(f"v_sub_f32 v{2+i}, v{2+i}, v6")
    for i in range(4): k(f"v_mul_f32 v{2+i}, s77, v{2+i}")
    for i in range(4): k(f"v_exp_f32 v{2+i}, v{2+i}")
    k(f"""v_cvt_pk_bf16_f32 v0, v2, v3
v_cvt_pk_bf16_f32 v1, v4, v5
ds_write_b64 v114, v[0:1] offset:{L_P}
v_add_f32 v8, v2, v3
v_add_f32 v9, v4, v5
v_add_f32 v8, v8, v9""")
    row_reduce("v_add_f32", "v8", (4, 8))
    xrow_reduce("v_add_f32", "v8", "v7")
    k(f"""v_mov_b32 v11, 1
s_mov_b64 exec, 0xf
ds_write_b32 v117, v8 offset:{L_STAT+16}
s_mov_b64 exec, -1
s_waitcnt lgkmcnt(0)
s_mov_b64 exec, 1
ds_write_b32 v123, v11 offset:{L_F_P}
ds_add_u32 {VZ}, v11 offset:{L_CNT_L}
s_mov_b64 exec, -1""")
    stamp("qkdone")
    k("s_cmp_lg_u32 s66, 1\ns_cbranch_scc1 L_nb1")
    burst_code("L_burst1")
    k("L_nb1:")
    k("s_cmp_lg_u32 s33, 7\ns_cbranch_scc1 L_nostat")
    lds_wait(L_CNT_L, 8)
    k(f"""ds_read_b32 v8, v116 offset:{L_STAT+16}
v_mov_b32 v7, {TA}
v_mov_b32 v9, {TB}
s_lshl_b32 s76, s32, 9
s_add_u32 s76, s76, {WS_ST}
s_lshl_b32 s77, s29, 4
s_add_u32 s76, s76, s77
v_lshlrev_b32 v10, 7, {VL}
s_waitcnt lgkmcnt(0)""")
    row_reduce("v_add_f32", "v8", (4, 8))
    xrow_reduce("v_add_f32", "v8", "v11", (16,))
    k(f"""s_mov_b64 exec, 0xf
buffer_store_dwordx4 v[6:9], v10, {SWS}, s76 offen sc1
s_mov_b64 exec, -1""")
    k("L_nostat:")
    k("s_cmp_ge_u32 s33, 4\ns_cbranch_scc1 L_nsig\ns_waitcnt vmcnt(0)")
    lds_inc(L_CNT_WO)
    k("L_nsig:")
    lds_wait(L_CNT_WO, 4)
    k(f"""s_lshl_b32 s76, s33, 14
v_lshlrev_b32 v120, 4, {VL}
v_add_u32 v120, s76, v120""")
    for t in range(16):
        k(f"ds_read_b128 v[{4*t}:{4*t+3}], v120 offset:{L_WO + 1024*t}")
    k(f"""s_lshl_b32 s75, s28, 5
s_add_u32 s75, s75, s30
s_lshl_b32 s75, s75, 12
s_add_u32 s75, s75, {WS_OA}
s_mov_b32 s70, 0x00ff00ff
s_mov_b32 s71, 0x00ff00ff
s_lshl_b32 s76, s33, 8
v_lshlrev_b32 v120, 3, {VL}
v_add_u32 v120, s76, v120
v_lshlrev_b32 v123, 1, v120
s_lshl_b32 s77, s32, 2
s_add_u32 s77, s77, s29
s_lshl_b32 s77, s77, 12
s_add_u32 s78, s77, {WS_OX}
v_mov_b32 v113, {TA}
v_mov_b32 v115, {TB}
v_mov_b32 v117, {TA}
v_mov_b32 v119, {TB}
s_waitcnt lgkmcnt(8)""")
    for w in range(4): perms(64 + 8 * w, 0, w)
    k("s_waitcnt lgkmcnt(0)")
    for w in range(4): perms(0 + 8 * w, 32, w)
    stamp("kready")
    k("s_barrier")
    stamp("bar2")
    k(f"""s_mov_b32 exec_hi, 0
ds_read_b64 v[96:97], v120 offset:{L_OP}
ds_read_b64 v[98:99], v120 offset:{L_OP+2048}
ds_read_b64 v[100:101], v120 offset:{L_OP+4096}
ds_read_b64 v[102:103], v120 offset:{L_OP+6144}
s_waitcnt lgkmcnt(2)
v_add_f32 v96, v96, v98
v_add_f32 v97, v97, v99
s_waitcnt lgkmcnt(0)
v_add_f32 v100, v100, v102
v_add_f32 v101, v101, v103
v_add_f32 v116, v96, v100
v_add_f32 v118, v97, v101
buffer_store_dwordx4 v[116:119], v123, {SWS}, s78 offen sc1
s_mov_b64 exec, -1
s_barrier""")
    stamp("bar3")
    k(f"""ds_read_b128 v[96:99], v121 offset:{L_O16}
ds_read_b128 v[100:103], v121 offset:{L_O16+128}
s_waitcnt lgkmcnt(1)""")
    for di in range(8): mfma(32 + 4 * di, 96, 64 + 4 * di, None)
    k("s_waitcnt lgkmcnt(0)")
    for di in range(8): mfma(32 + 4 * di, 100, 4 * di, 32 + 4 * di)
    for di in range(8):
        D = 32 + 4 * di
        k(f"v_add_f32_dpp v{112 + 2*(di&1)}, v{D+1}, v{D} row_shl:8 row_mask:{1 << (di>>1):#x} bank_mask:0xf")
    k(f"""s_mov_b64 exec, s[70:71]
buffer_store_dwordx4 v[112:115], v122, {SWS}, s75 offen sc1
s_mov_b64 exec, -1""")
    stamp("kend")
    stamp_flush()
    k("s_endpgm")

    k.flush()
    k("L_ln:")
    for i in range(4):
        k(f"v_lshlrev_b32 v{100+2*i}, 16, v{96+i}\nv_and_b32 v{101+2*i}, 0xffff0000, v{96+i}")
    k("""v_add_f32 v96, v100, v101
v_add_f32 v97, v102, v103
v_add_f32 v98, v104, v105
v_add_f32 v99, v106, v107
v_add_f32 v96, v96, v97
v_add_f32 v98, v98, v99
v_add_f32 v96, v96, v98""")
    row_reduce("v_add_f32", "v96")
    xrow_reduce("v_add_f32", "v96", "v97")
    k("v_mul_f32 v96, 0x3b000000, v96")
    k("v_sub_f32 v98, v100, v96\nv_mul_f32 v97, v98, v98")
    for i in range(1, 8):
        k(f"v_sub_f32 v98, v{100+i}, v96\nv_fmac_f32 v97, v98, v98")
    row_reduce("v_add_f32", "v97")
    xrow_reduce("v_add_f32", "v97", "v98")
    k("v_mul_f32 v97, 0x3b000000, v97")
    rnd("v96", "v96"); rnd("v97", "v97")
    k("v_add_f32 v97, 0x3727c5ac, v97")
    rnd("v97", "v97")
    k("v_sqrt_f32 v97, v97")
    rnd("v97", "v97")
    k("v_rcp_f32 v98, v97")
    for i in range(0, 8, 2):
        a, b2 = 100 + i, 101 + i
        k(f"""v_sub_f32 v{a}, v{a}, v96
v_sub_f32 v{b2}, v{b2}, v96
v_cvt_pk_bf16_f32 v99, v{a}, v{b2}
v_lshlrev_b32 v{a}, 16, v99
v_and_b32 v{b2}, 0xffff0000, v99""")
    for i in range(8):
        a = 100 + i
        k(f"""v_mul_f32 v99, v{a}, v98
v_fma_f32 v{a}, -v99, v97, v{a}
v_fma_f32 v{a}, v{a}, v98, v99""")
    for i in range(4):
        k(f"v_cvt_pk_bf16_f32 v{96+i}, v{100+2*i}, v{101+2*i}")
    k(f"""s_lshl_b32 s75, s33, 10
v_add_u32 v122, s75, v120
ds_write_b128 v122, v[96:99] offset:{L_XN}""")
    lds_inc(L_CNT_XN)
    stamp("ln")
    srd(56, 24, None, WS_SIZE)
    srd(40, 8, "s74", 524288)
    k(f"""s_cmp_eq_u32 s33, 0
s_cbranch_scc1 L_tq
s_cmp_lt_u32 s33, 3
s_cbranch_scc1 L_wopf
s_cmp_lt_u32 s33, 4
s_cbranch_scc1 L_vload
s_cmp_ge_u32 s33, 6
s_cbranch_scc1 L_qg
s_cmp_ge_u32 s64, 28
s_cbranch_scc1 L_vload
s_cmp_eq_u32 s33, 5
s_cbranch_scc1 L_hg
s_cmp_eq_u32 s65, 1
s_cbranch_scc1 L_f2""")
    k(f"""v_lshrrev_b32 v121, 3, {VL}
v_lshlrev_b32 v121, 9, v121
s_lshl_b32 s75, s64, 2
s_add_u32 s75, s75, s29
s_lshl_b32 s75, s75, 12
s_add_u32 s75, s75, {WS_HP}
s_lshl_b32 s76, s26, 12
s_add_u32 s77, s28, 1
s_lshl_b32 s77, s77, 9
s_add_u32 s76, s76, s77
s_lshl_b32 s77, s29, 2
s_add_u32 s76, s76, s77
s_add_u32 s76, s76, {WS_HH}
s_mov_b32 s70, 0xf
s_branch L_tile
L_tq:
v_lshrrev_b32 v121, 3, {VL}
v_lshlrev_b32 v121, 15, v121
s_lshl_b32 s75, s29, 18
s_lshl_b32 s76, s26, 12
s_add_u32 s75, s75, s76
s_lshl_b32 s77, s28, 9
s_add_u32 s75, s75, s77
s_lshl_b32 s77, s27, 2
s_add_u32 s76, s76, s77
s_add_u32 s76, s76, {WS_HQ}
s_mov_b32 s70, -1
L_tile:
s_mov_b32 s71, 0
v_add_u32 v121, v111, v121
v_bfe_u32 v122, {VL}, 1, 3
v_lshlrev_b32 v122, 10, v122
v_and_b32 v123, 1, {VL}
v_lshl_add_u32 v122, v123, 4, v122
v_lshl_add_u32 v122, v108, 5, v122
s_lshl_b32 s77, s29, 8
v_add_u32 v122, s77, v122
v_lshlrev_b32 v123, 7, {VL}""")
    lds_wait(L_CNT_XN, 8)
    k(f"""ds_read_b128 v[96:99], v122 offset:{L_XN}
ds_read_b128 v[100:103], v122 offset:{L_XN+128}""")
    gettags()
    for ub in range(2):
        k(f"s_waitcnt vmcnt({8 - 8*ub})")
        for w in range(4):
            T = 104 + 8 * (w & 1)
            perms(T, 32 * ub, w)
            mfma(64 + 8 * w, 96 + 4 * ub, T, None if ub == 0 else 64 + 8 * w)
            mfma(68 + 8 * w, 96 + 4 * ub, T + 4, None if ub == 0 else 68 + 8 * w)
    def tile_out(G, Dbase):
        for w in range(4):
            k(f"v_mov_b32 v{G+4*w+1}, {TA}\nv_mov_b32 v{G+4*w+3}, {TB}")
        for di in range(8):
            D = Dbase + 4 * di
            k(f"v_add_f32_dpp v{G+2*di}, v{D+1}, v{D} row_shl:8 row_mask:0xf bank_mask:0x3")
        for di in range(8):
            D = Dbase + 4 * di
            k(f"v_add_f32_dpp v{G+2*di}, v{D+2}, v{D+3} row_shr:8 row_mask:0xf bank_mask:0xc")
    tile_out(0, 64)
    for w in range(4):
        if "noqp" not in abl: k(f"buffer_store_dwordx4 v[{4*w}:{4*w+3}], v121, {SWS}, s75 offen offset:{128*w} sc1")
    if "nohint" not in abl: k(f"""s_mov_b64 exec, s[70:71]
buffer_store_dword v1, v123, {SWS}, s76 offen sc1
s_mov_b64 exec, -1""")
    stamp("tpub")
    k("s_branch L_vload")
    k.flush()
    k("L_wopf:")
    srd(48, 12, None, 4 << 20)
    wo_addr("v122")
    k(f"""s_lshl_b32 s79, s30, 17
s_lshl_b32 s83, s28, 1
s_add_u32 s83, s83, s33
s_sub_u32 s83, s83, 1
s_lshl_b32 s83, s83, 3""")
    wo_dma("v122", 8, "L_wpf")
    k("s_branch L_vload")
    k.flush()
    k("L_f2:")
    k(f"""v_bfe_u32 v122, {VL}, 1, 3
v_lshlrev_b32 v122, 7, v122
v_and_b32 v123, 1, {VL}
v_lshl_add_u32 v122, v123, 4, v122
v_lshl_add_u32 v122, v108, 5, v122
v_lshrrev_b32 v121, 3, {VL}
v_lshlrev_b32 v121, 12, v121
v_add_u32 v121, v111, v121
s_lshl_b32 s75, s64, 15
s_lshl_b32 s76, s29, 10
s_add_u32 s75, s75, s76
s_add_u32 s75, s75, {WS_OB}""")
    lds_wait(L_F_HN, 1)
    k(f"ds_read_b128 v[96:99], v122 offset:{L_HN}")
    gettags()
    k("s_waitcnt vmcnt(0)")
    for nb in range(2):
        for w in range(4):
            T = 104 + 8 * (w & 1)
            perms(T, 32 * nb, w)
            mfma(64 + 8 * w, 96, T, None)
            mfma(68 + 8 * w, 96, T + 4, None)
        tile_out(16 * nb, 64)
        for w in range(4):
            k(f"buffer_store_dwordx4 v[{16*nb+4*w}:{16*nb+4*w+3}], v121, {SWS}, s75 offen offset:{512*nb + 128*w} sc1")
    stamp("tpub")
    k("s_branch L_vload")
    k.flush()
    k("L_hg:")
    k("s_cmp_eq_u32 s65, 0\ns_cbranch_scc1 L_vload")
    lds_wait(L_CNT_XN, 8)
    gettags()
    k(f"""s_lshl_b32 s75, s26, 12
s_lshl_b32 s76, s27, 7
s_add_u32 s75, s75, s76
s_add_u32 s75, s75, {WS_HH}
s_mov_b32 s72, {SPIN}
L_hpoll:
s_sleep 2
s_load_dwordx4 s[80:83], s[24:25], s75 glc
s_waitcnt lgkmcnt(0)
s_xor_b32 s80, s80, {TA}
s_xor_b32 s81, s81, {TA}
s_xor_b32 s82, s82, {TA}
s_xor_b32 s83, s83, {TA}
s_or_b32 s80, s80, s81
s_or_b32 s82, s82, s83
s_or_b32 s80, s80, s82
s_cmp_eq_u32 s80, 0
s_cbranch_scc1 L_hok
s_sub_u32 s72, s72, 1
s_cmp_lg_u32 s72, 0
s_cbranch_scc1 L_hpoll
L_hok:
s_lshl_b32 s75, s64, 14
s_add_u32 s75, s75, {WS_HP}
v_lshrrev_b32 v121, 5, {VL}
v_lshlrev_b32 v121, 7, v121
v_add_u32 v121, v121, v111
v_bfe_u32 v122, {VL}, 3, 2
v_lshl_add_u32 v121, v122, 2, v121
s_mov_b32 s72, {SPIN}
L_hgpoll:""")
    for ks in range(4):
        k(f"s_add_u32 s76, s75, {ks*4096}")
        for n in range(4):
            r = 16 * ks + 4 * n
            k(f"buffer_load_dwordx4 v[{r}:{r+3}], v120, {SWS}, s76 offen offset:{1024*n} sc1")
    k("s_waitcnt vmcnt(0)")
    tagcheck([4 * i for i in range(16)], "v64", "v65", "v66")
    k(f"""s_cbranch_vccz L_hgok
s_sub_u32 s72, s72, 1
s_cmp_lg_u32 s72, 0
s_cbranch_scc1 L_hgpoll
L_hgok:""")
    for i in range(0, 16, 2):
        k(f"v_add_f32 v{i}, v{i}, v{16+i}\nv_add_f32 v{32+i}, v{32+i}, v{48+i}")
    for i in range(0, 16, 2):
        k(f"v_add_f32 v{i}, v{i}, v{32+i}")
    for i in range(0, 16, 2):
        k(f"v_max_f32 v{i}, 0, v{i}")
    for i in range(4):
        k(f"v_cvt_pk_bf16_f32 v{64+i}, v{4*i}, v{4*i+2}")
    for i in range(4):
        k(f"ds_write_b32 v121, v{64+i} offset:{L_HN + 256*i}")
    lds_inc(L_F_HN)
    stamp("hg")
    k("s_branch L_vload")
    k.flush()
    k("L_qg:")
    lds_wait(L_CNT_XN, 8)
    if "noq" in abl: k("s_branch L_qskip")
    gettags()
    k("s_cmp_eq_u32 s33, 6\ns_cbranch_scc1 L_hp")
    lds_wait(L_F_H, 1)
    k("s_branch L_fok2")
    k(f"""L_hp:
s_lshl_b32 s75, s26, 12
s_lshl_b32 s76, s27, 7
s_add_u32 s75, s75, s76
s_add_u32 s75, s75, {WS_HQ}
s_mov_b32 s72, {SPIN}
L_fpoll:
s_sleep 2
s_load_dwordx16 s[4:19], s[24:25], s75 glc
s_load_dwordx16 s[80:95], s[24:25], s75 offset:64 glc
s_waitcnt lgkmcnt(0)
s_min_u32 s73, s4, s5
s_max_u32 s76, s4, s5""")
    for i in list(range(6, 20)) + list(range(80, 96)):
        k(f"s_min_u32 s73, s73, s{i}\ns_max_u32 s76, s76, s{i}")
    k(f"""s_xor_b32 s73, s73, {TA}
s_xor_b32 s76, s76, {TA}
s_or_b32 s73, s73, s76
s_cmp_eq_u32 s73, 0
s_cbranch_scc1 L_fok
s_sub_u32 s72, s72, 1
s_cmp_lg_u32 s72, 0
s_cbranch_scc1 L_fpoll
L_fok:""")
    lds_inc(L_F_H)
    stamp("hint")
    k(f"""L_fok2:
s_lshl_b32 s75, s28, 15
s_lshl_b32 s76, s26, 12
s_add_u32 s75, s75, s76
s_sub_u32 s77, s33, 6
s_lshl_b32 s76, s77, 11
s_add_u32 s75, s75, s76
s_lshl_b32 s77, s77, 9
v_lshrrev_b32 v121, 5, {VL}
v_lshlrev_b32 v121, 7, v121
v_add3_u32 v121, v121, v111, s77
v_bfe_u32 v122, {VL}, 3, 2
v_lshl_add_u32 v121, v122, 2, v121
s_mov_b32 s72, {SPIN}
L_qpoll:""")
    for ks in range(4):
        k(f"""s_add_u32 s76, s75, {ks*262144}
buffer_load_dwordx4 v[{8*ks}:{8*ks+3}], v120, {SWS}, s76 offen sc1
buffer_load_dwordx4 v[{8*ks+4}:{8*ks+7}], v120, {SWS}, s76 offen offset:1024 sc1""")
    k("s_waitcnt vmcnt(0)")
    tagcheck([4 * i for i in range(8)], "v32", "v33", "v34")
    k(f"""s_cbranch_vccz L_qok
s_sub_u32 s72, s72, 1
s_cmp_lg_u32 s72, 0
s_cbranch_scc1 L_qpoll
L_qok:""")
    for i in range(0, 8, 2):
        k(f"v_add_f32 v{i}, v{i}, v{8+i}\nv_add_f32 v{16+i}, v{16+i}, v{24+i}")
    for i in range(0, 8, 2):
        k(f"v_add_f32 v{i}, v{i}, v{16+i}")
    k(f"""v_cvt_pk_bf16_f32 v32, v0, v2
v_cvt_pk_bf16_f32 v33, v4, v6
ds_write_b32 v121, v32 offset:{L_Q}
ds_write_b32 v121, v33 offset:{L_Q+256}""")
    k("L_qskip:")
    lds_inc(L_F_Q)
    k("L_vload:")
    k(f"""s_setprio 0
v_add_u32 v121, s78, v120
s_mov_b32 s76, 0
s_movk_i32 s77, 0x4000""")
    for t in range(16):
        k(f"buffer_load_dwordx4 v[{4*t}:{4*t+3}], v121, {SKV}, s76 offen{kvflag}\ns_add_u32 s76, s76, s77")
    stamp("vissued")
    k(f"""v_lshrrev_b32 v108, 4, {VL}
v_and_b32 v110, 3, {VL}
v_bfe_u32 v109, {VL}, 2, 2
v_lshlrev_b32 v122, 7, v110
v_lshl_add_u32 v122, v108, 5, v122
s_lshl_b32 s75, s33, 9
s_add_u32 s75, s75, {L_P}
v_add_u32 v122, s75, v122
v_mov_b32 v123, {L_ZERO}""")
    for dl in range(4):
        k(f"v_cmp_eq_u32 vcc, {dl}, v109\nv_cndmask_b32 v{112+dl}, v123, v122, vcc")
    k(f"""s_lshl_b32 s75, s33, 2
v_mov_b32 v123, s75
s_and_b32 s75, s33, 3
s_lshl_b32 s76, s75, 2
v_mov_b32 v121, s76
s_lshl_b32 s75, s75, 11
v_add_u32 v120, s75, v120
v_lshlrev_b32 v122, 2, {VL}
v_add_u32 v122, s75, v122""")
    lds_wait(L_F_P, 1, vaddr="v123")
    for ub in range(2):
        for dl in range(4):
            r = 64 + 16 * ub + 4 * dl
            k(f"ds_read_b128 v[{r}:{r+3}], v{112+dl} offset:{16*ub}")
    k("s_cmp_ge_u32 s33, 4\ns_cbranch_scc1 L_g3")
    for i in range(8): k(f"v_mov_b32 v{96+i}, 0")
    k("s_branch L_pv\nL_g3:")
    lds_wait(L_F_D, 1, vaddr="v121")
    k(f"""ds_read_b128 v[96:99], v120 offset:{L_DX}
ds_read_b128 v[100:103], v120 offset:{L_DX+1024}
L_pv:
s_waitcnt lgkmcnt(0)""")
    for ub in range(2):
        k(f"s_waitcnt vmcnt({8-8*ub})")
        if ub == 1: stamp("varr")
        for w in range(4):
            T = 104 + 8 * (w & 1)
            perms(T, 32 * ub, w)
            for hh in range(2):
                di = 2 * w + hh; x = di >> 2; dl = di & 3
                mfma(96 + 4 * x, 64 + 16 * ub + 4 * dl, T + 4 * hh, 96 + 4 * x)
    k("s_cmp_ge_u32 s33, 4\ns_cbranch_scc1 L_g3b")
    k(f"""ds_write_b128 v120, v[96:99] offset:{L_DX}
ds_write_b128 v120, v[100:103] offset:{L_DX+1024}""")
    lds_inc(L_F_D, vaddr="v121")
    stamp("pvdone")
    k("s_cmp_eq_u32 s33, 3\ns_cbranch_scc1 L_final")
    k("s_barrier")
    stamp_flush()
    k("s_endpgm")
    k.flush()
    k("L_g3b:")
    for x in range(2):
        for h in range(4):
            k(f"ds_write_b32 v122, v{96+4*x+h} offset:{L_OP + h*512 + x*256}")
    k("s_waitcnt lgkmcnt(0)")
    stamp("pvdone")
    k("s_barrier")
    stamp_flush()
    k("s_endpgm")
    k.flush()
    k("L_final:")
    gettags()
    srd(60, 20, None, 8192)
    k(f"""v_lshlrev_b32 v120, 4, {VL}
s_lshl_b32 s75, s32, 14
s_lshl_b32 s76, s29, 10
s_add_u32 s75, s75, s76
s_add_u32 s75, s75, {WS_OX}
s_add_u32 s76, s75, 4096
s_add_u32 s77, s75, 8192
s_add_u32 s78, s75, 12288
v_lshlrev_b32 v121, 2, {VL}
v_and_b32 v109, 7, {VL}
v_lshrrev_b32 v108, 3, {VL}
v_lshlrev_b32 v110, 12, v108
v_lshl_add_u32 v110, v109, 4, v110
v_lshlrev_b32 v112, 15, v108
v_lshl_add_u32 v112, v109, 4, v112
s_lshl_b32 s79, s28, 17
s_lshl_b32 s80, s30, 7
s_add_u32 s79, s79, s80
s_add_u32 s79, s79, {WS_OA}
s_lshl_b32 s84, s28, 12
s_add_u32 s84, s84, s80
s_add_u32 s84, s84, {WS_OB}
s_lshl_b32 s81, s28, 10
s_lshl_b32 s80, s26, 7
s_add_u32 s81, s81, s80
s_lshl_b32 s80, s29, 2
s_add_u32 s81, s81, s80
v_lshlrev_b32 v111, 4, v109
buffer_load_dword v20, v111, {SX}, s81 offen
s_lshl_b32 s82, s32, 9
s_lshl_b32 s83, s29, 7
s_add_u32 s82, s82, s83
s_add_u32 s82, s82, {WS_ST}""")
    def gather(vaddr, sbase, step, lab, d0, d1, partial):
        k(f"s_mov_b32 s72, {SPIN}")
        if partial:
            k(f"v_mov_b32 v12, 0\nv_mov_b32 v13, {TA}\nv_mov_b32 v14, 0\nv_mov_b32 v15, {TB}")
        k(f"{lab}poll:")
        for m in range(4):
            if partial and m == 3: k("s_mov_b32 exec_hi, 0")
            k(f"s_add_u32 s85, {sbase}, {m*step}\nbuffer_load_dwordx4 v[{4*m}:{4*m+3}], {vaddr}, {SWS}, s85 offen sc1")
        if partial: k("s_mov_b64 exec, -1")
        k("s_waitcnt vmcnt(0)")
        tagcheck([0, 4, 8, 12], "v16", "v17", "v18")
        k(f"""s_cbranch_vccz {lab}ok
s_sleep {psleep}
s_sub_u32 s72, s72, 1
s_cmp_lg_u32 s72, 0
s_cbranch_scc1 {lab}poll
{lab}ok:
v_add_f32 v0, v0, v4
v_add_f32 v2, v2, v6
v_add_f32 v8, v8, v12
v_add_f32 v10, v10, v14
v_add_f32 {d0}, v0, v8
v_add_f32 {d1}, v2, v10
v_add_f32_dpp {d0}, {d0}, {d0} row_ror:8 row_mask:0xf bank_mask:0xf
v_add_f32_dpp {d1}, {d1}, {d1} row_ror:8 row_mask:0xf bank_mask:0xf""")
        for w in (16, 32):
            k(f"""v_mov_b32 v16, {d0}
v_mov_b32 v17, {d1}
v_permlane{w}_swap_b32 {d0}, v16
v_permlane{w}_swap_b32 {d1}, v17
v_add_f32 {d0}, {d0}, v16
v_add_f32 {d1}, {d1}, v17""")
        k(f"""v_cvt_pk_bf16_f32 v16, {d0}, {d1}
v_lshlrev_b32 {d0}, 16, v16
v_and_b32 {d1}, 0xffff0000, v16""")
    k(f"""s_barrier
s_mov_b32 s72, {SPIN}
L_stpoll:
s_load_dwordx16 s[4:19], s[24:25], s82 glc
s_waitcnt lgkmcnt(0)
s_mov_b32 s73, 0""")
    for p in range(4):
        k(f"""s_xor_b32 s83, s{4+4*p+1}, {TA}
s_or_b32 s73, s73, s83
s_xor_b32 s83, s{4+4*p+3}, {TB}
s_or_b32 s73, s73, s83""")
    k(f"""s_cmp_eq_u32 s73, 0
s_cbranch_scc1 L_stok
s_sleep 2
s_sub_u32 s72, s72, 1
s_cmp_lg_u32 s72, 0
s_cbranch_scc1 L_stpoll
L_stok:
s_mov_b32 s83, {LOG2E:#x}
v_mov_b32 v28, s4
v_max_f32 v28, s8, v28
v_max_f32 v28, s12, v28
v_max_f32 v28, s16, v28""")
    for p in range(4): k(f"v_sub_f32 v{24+p}, s{4+4*p}, v28")
    for p in range(4): k(f"v_mul_f32 v{24+p}, s83, v{24+p}")
    for p in range(4): k(f"v_exp_f32 v{24+p}, v{24+p}")
    k(f"""v_mul_f32 v28, s6, v24
v_fmac_f32 v28, s10, v25
v_fmac_f32 v28, s14, v26
v_fmac_f32 v28, s18, v27
v_rcp_f32 v28, v28""")
    for p in range(4): k(f"v_mul_f32 v{24+p}, v{24+p}, v28")
    k(f"""s_mov_b32 s72, {SPIN}
L_oxpoll:""")
    for p in range(4):
        k(f"buffer_load_dwordx4 v[{4*p}:{4*p+3}], v120, {SWS}, s{75+p} offen sc1")
    k("s_waitcnt vmcnt(0)")
    tagcheck([0, 4, 8, 12], "v16", "v17", "v18")
    k(f"""s_cbranch_vccz L_oxok
s_sleep {psleep}
s_sub_u32 s72, s72, 1
s_cmp_lg_u32 s72, 0
s_cbranch_scc1 L_oxpoll
L_oxok:
v_mul_f32 v0, v0, v24
v_mul_f32 v2, v2, v24
v_mul_f32 v8, v8, v26
v_mul_f32 v10, v10, v26
v_fmac_f32 v0, v4, v25
v_fmac_f32 v2, v6, v25
v_fmac_f32 v8, v12, v27
v_fmac_f32 v10, v14, v27
v_add_f32 v0, v0, v8
v_add_f32 v2, v2, v10
v_cvt_pk_bf16_f32 v0, v0, v2
ds_write_b32 v121, v0 offset:{L_O16}
s_waitcnt lgkmcnt(0)
s_barrier""")
    stamp("fbar3")
    if "noffn" not in abl: gather("v112", "s84", 8 * 32768, "L_ob", "v22", "v23", True)
    k("v_and_b32 v21, 0xffff0000, v20\nv_lshlrev_b32 v20, 16, v20")
    gather("v110", "s79", 32768, "L_oa", "v24", "v25", False)
    k(f"""v_add_f32 v20, v20, v24
v_add_f32 v21, v21, v25
v_cvt_pk_bf16_f32 v16, v20, v21
v_lshlrev_b32 v20, 16, v16
v_and_b32 v21, 0xffff0000, v16
v_add_f32 v20, v20, v22
v_add_f32 v21, v21, v23
v_cvt_pk_bf16_f32 v20, v20, v21
s_mov_b64 exec, 0xff
buffer_store_dword v20, v111, {SOUT}, s81 offen
s_mov_b64 exec, -1""")
    stamp("end")
    stamp_flush()
    k(f"""s_cmp_lg_u32 s2, 0
s_cbranch_scc1 L_end
v_mov_b32 v16, {TA}
s_mov_b32 s76, {WS_E}
s_mov_b64 exec, 1
buffer_store_dword v16, {VZ}, {SWS}, s76 offen""")
    k("L_end:")
    k("s_endpgm")
    k("L_codeend:")

    T = []
    T.append('.section .rodata,"a"'); T.append(".p2align 6")
    T.append(f".amdhsa_kernel {NAME}_kernel")
    T.append("  .amdhsa_next_free_vgpr 128"); T.append("  .amdhsa_next_free_sgpr 102"); T.append("  .amdhsa_accum_offset 128")
    T.append("  .amdhsa_group_segment_fixed_size 0"); T.append("  .amdhsa_kernarg_size 88"); T.append("  .amdhsa_user_sgpr_count 2")
    T.append("  .amdhsa_user_sgpr_kernarg_segment_ptr 1"); T.append("  .amdhsa_system_sgpr_workgroup_id_x 1")
    T.append("  .amdhsa_float_denorm_mode_32 3")
    T.append(".end_amdhsa_kernel")
    open(fname, "w").write("\n".join(H) + "\n" + k.text() + "\n".join(T) + "\n")

SA = {"start": 0, "kissued": 1, "qready": 2, "ln": 1, "tpub": 1, "hint": 1, "hg": 1, "vissued": 2}
SB = {"start": 0, "qkdone": 1, "kready": 2, "varr": 1, "pvdone": 2}
SC = {"start": 0, "bar2": 1, "kend": 2, "fbar3": 1, "end": 2, "pvdone": 1}
SD = {"start": 0, "kissued": 1, "karr": 2, "vissued": 1, "varr": 2}
if __name__ == "__main__":
    gen("k6.s")
    gen("k6_sa.s", stamps=SA)
    gen("k6_sb.s", stamps=SB)
    gen("k6_sc.s", stamps=SC)
    gen("k6_a0.s", stamps=SD)
    gen("k6_a1.s", stamps=SD, abl=("nowo",))
    gen("k6_a2.s", stamps=SD, abl=("nowo", "noffn"))
    gen("k6_a3.s", stamps=SD, abl=("nowo", "noffn", "noq"))
    gen("k6_early.s", stamps=SD, burst="early")
    gen("k6_late.s", stamps=SD, burst="late")
    gen("k6_nt.s", stamps=SD, wflag=" nt")
```

```python
import sys, argparse
from asmlib import Asm
NAME = "parallel_sum__sliding_block_cached__dense_activation_relu__decode"

WS_QP = 0x000000
WS_OX = 0x100000
WS_OA = 0x200000
WS_OB = 0x300000
WS_ST = 0x400000
WS_HQ = 0x410000
WS_HH = 0x418000
WS_HP = 0x420000
WS_E  = 0x490000
WS_SIZE = 0x491000
STAMP_OFF = 256 << 20
L_CNT_XN = 0; L_F_H = 4; L_F_Q = 8; L_CNT_K = 12; L_CNT_L = 16; L_F_HN = 20; L_TAG = 24; L_F_P = 32
L_ZERO = 64; L_F_D = 96; L_CNT_WO = 112; L_CNT_ISS = 116; L_ZEND = 128
L_STAT = 128; L_O16 = 512; L_HN = 1024; L_Q = 2048; L_P = 3072; L_XN = 7168; L_OP = 15360; L_DX = L_OP + 8192; L_WO = L_DX + 8192; L_END = L_WO + 131072
assert L_END <= 163840

LOG2E = 0x3fb8aa3b
SCALE = 0x3db504f3
SPIN = 1 << 16

def gen(fname, stamps=None, wflag="", kvflag=" nt", psleep=1, burst="split", abl=(), dbgtime=False):
    k = Asm()
    H = []
    H.append(open("cdna_kernels/%s.s.ref" % NAME).read().split("; Override launch")[0].rstrip("\n"))
    H.append(f"; @launch grid=(256,1,1) block=(1024,1,1) lds={L_END}")
    H.append('.amdgcn_target "amdgcn-amd-amdhsa--gfx950"')
    H.append(".text"); H.append(f".globl {NAME}_kernel"); H.append(".p2align 8"); H.append(f".type {NAME}_kernel,@function")
    H.append(f"{NAME}_kernel:")

    VL = "v126"; VZ = "v127"
    TA, TB = "s68", "s69"
    def srd(d, lo, off, size):
        if off is None:
            k(f"s_mov_b32 s{d}, s{lo}\ns_mov_b32 s{d+1}, s{lo+1}")
        else:
            k(f"s_add_u32 s{d}, s{lo}, {off}\ns_addc_u32 s{d+1}, s{lo+1}, 0")
        k(f"s_mov_b32 s{d+2}, {size}\ns_mov_b32 s{d+3}, 0x20000")
    SX, SKV, SWA, SWB, SWS, SOUT = [f"s[{a}:{a+3}]" for a in (36, 40, 44, 48, 56, 60)]

    def stamp(name):
        if not stamps or name not in stamps: return
        sl = stamps[name]
        k(f"s_memrealtime s[{96+2*sl}:{97+2*sl}]")
    def stamp_flush():
        if not stamps: return
        k(f"""s_waitcnt lgkmcnt(0)
s_mov_b64 exec, 1
s_lshl_b32 s76, s2, 9
s_lshl_b32 s77, s31, 5
s_add_u32 s76, s76, s77
s_add_u32 s76, s76, {STAMP_OFF}
s_add_u32 s76, s24, s76
s_addc_u32 s77, s25, 0
v_mov_b32 v0, s96
v_mov_b32 v1, s97
v_mov_b32 v2, s98
v_mov_b32 v3, s99
v_mov_b32 v4, s100
v_mov_b32 v5, s101
global_store_dwordx4 {VZ}, v[0:3], s[76:77]
global_store_dwordx2 {VZ}, v[4:5], s[76:77] offset:16""")

    def lds_wait(addr, val, vaddr=VZ, vt="v125"):
        lp = k.label("Lw"); dn = k.label("Ld")
        k(f"s_mov_b32 s72, {SPIN}")
        k(f"{lp}:")
        k(f"""ds_read_b32 {vt}, {vaddr} offset:{addr}
s_waitcnt lgkmcnt(0)
v_readfirstlane_b32 s73, {vt}
s_cmp_ge_u32 s73, {val}
s_cbranch_scc1 {dn}
s_sleep 1
s_sub_u32 s72, s72, 1
s_cmp_lg_u32 s72, 0
s_cbranch_scc1 {lp}""")
        k(f"{dn}:")
    def lds_inc(addr, vaddr=VZ, vt="v125"):
        k(f"""s_waitcnt lgkmcnt(0)
v_mov_b32 {vt}, 1
s_mov_b64 exec, 1
ds_add_u32 {vaddr}, {vt} offset:{addr}
s_mov_b64 exec, -1""")
    def rnd(dst, src):
        k(f"v_cvt_pk_bf16_f32 {dst}, {src}, {src}\nv_lshlrev_b32 {dst}, 16, {dst}")
    def row_reduce(op, v, steps=(8, 4, 2, 1)):
        for n in steps:
            k(f"{op}_dpp {v}, {v}, {v} row_ror:{n} row_mask:0xf bank_mask:0xf")
    def xrow_reduce(op, v, t, which=(16, 32)):
        for w in which:
            k(f"v_mov_b32 {t}, {v}\nv_permlane{w}_swap_b32 {v}, {t}\n{op} {v}, {v}, {t}")
    def perms(T, W, w):
        for p in range(4):
            k(f"v_perm_b32 v{T+p}, v{W+4*(2*p+1)+w}, v{W+4*(2*p)+w}, s34")
        for p in range(4):
            k(f"v_perm_b32 v{T+4+p}, v{W+4*(2*p+1)+w}, v{W+4*(2*p)+w}, s35")
    def mfma(D, A, B, C):
        c = "0" if C is None else f"v[{C}:{C+3}]"
        k(f"v_mfma_f32_16x16x32_bf16 v[{D}:{D+3}], v[{A}:{A+3}], v[{B}:{B+3}], {c}")
    def tagcheck(bases, acc, t1, t2):
        for n, r in enumerate(bases):
            k(f"v_xor_b32 {t1}, {TA}, v{r+1}\nv_xor_b32 {t2}, {TB}, v{r+3}")
            if n == 0: k(f"v_or_b32 {acc}, {t1}, {t2}")
            else: k(f"v_or3_b32 {acc}, {acc}, {t1}, {t2}")
        k(f"v_cmp_ne_u32 vcc, 0, {acc}")
    def gettags():
        k(f"""ds_read_b64 v[124:125], {VZ} offset:{L_TAG}
s_waitcnt lgkmcnt(0)
v_readfirstlane_b32 {TA}, v124
v_readfirstlane_b32 {TB}, v125""")
    def wo_addr(vdst):
        k(f"""v_bfe_u32 {vdst}, {VL}, 3, 1
v_lshlrev_b32 {vdst}, 6, {vdst}
v_add_u32 {vdst}, {vdst}, v108
v_lshl_add_u32 {vdst}, {vdst}, 10, v111""")
    def wo_dma(vaddr, n, lab):
        if "nowo" in abl: return
        k(f"""s_add_u32 s84, s83, {n}
{lab}:
s_lshr_b32 s80, s83, 4
s_lshl_b32 s80, s80, 7
s_and_b32 s81, s83, 7
s_lshl_b32 s81, s81, 13
s_add_u32 s80, s80, s81
s_and_b32 s81, s83, 8
s_lshl_b32 s81, s81, 9
s_add_u32 s80, s80, s81
s_add_u32 s80, s80, s79
s_lshl_b32 s81, s83, 10
s_add_u32 m0, s81, {L_WO}
s_add_u32 s83, s83, 1
buffer_load_dwordx4 {vaddr}, {SWB}, s80 offen{wflag} lds
s_cmp_lt_u32 s83, s84
s_cbranch_scc1 {lab}""")

    stamp("start")
    if dbgtime: k("s_memrealtime s[96:97]")
    k(f"""s_cmp_ge_u32 s2, 256
s_cbranch_scc1 L_end
s_load_dwordx16 s[4:19], s[0:1], 0
s_load_dwordx4 s[20:23], s[0:1], 64
s_load_dwordx2 s[24:25], s[0:1], 80
s_and_b32 s26, s2, 7
s_lshr_b32 s27, s2, 3
s_lshr_b32 s28, s27, 2
s_and_b32 s29, s27, 3
s_lshl_b32 s30, s26, 2
s_add_u32 s30, s30, s29
s_lshl_b32 s32, s28, 3
s_add_u32 s32, s32, s26
s_mov_b32 s34, 0x05040100
s_mov_b32 s35, 0x07060302
v_and_b32 {VL}, 63, v0
v_mov_b32 {VZ}, 0
v_lshrrev_b32 v1, 6, v0
v_lshlrev_b32 v2, 2, v0
v_readfirstlane_b32 s31, v1
v_cmp_gt_u32 vcc, {L_ZEND//4}, v0
s_and_saveexec_b64 s[70:71], vcc
ds_write_b32 v2, {VZ}
s_mov_b64 exec, s[70:71]
s_lshl_b32 s74, s28, 24
s_lshl_b32 s75, s26, 21
s_add_u32 s74, s74, s75
s_add_u32 s74, s74, {6144*256}
s_and_b32 s33, s31, 7
v_lshrrev_b32 v108, 4, {VL}
v_and_b32 v111, 7, {VL}
v_lshlrev_b32 v111, 4, v111
v_bfe_u32 v112, {VL}, 3, 1
v_lshlrev_b32 v112, 3, v112
v_lshl_add_u32 v112, v108, 4, v112
v_lshlrev_b32 v120, 4, {VL}
s_and_b32 s75, s33, 3
s_lshl_b32 s75, s75, 10
s_lshr_b32 s76, s33, 2
s_lshl_b32 s76, s76, 18
s_add_u32 s75, s75, s76
s_lshl_b32 s76, s29, 12
s_add_u32 s78, s75, s76
s_lshr_b32 s64, s28, 1
s_lshl_b32 s64, s64, 3
s_add_u32 s64, s64, s26
s_and_b32 s65, s28, 1
s_waitcnt lgkmcnt(0)""")
    if "noffn" in abl: k("s_mov_b32 s64, 99")
    k("s_cmp_lt_u32 s31, 8\ns_cbranch_scc1 L_kwave")
    k("s_setprio 3")
    srd(36, 4, None, 8192)
    k(f"""s_lshl_b32 s75, s33, 10
buffer_load_dwordx4 v[96:99], v120, {SX}, s75 offen
s_cmp_eq_u32 s33, 0
s_cbranch_scc1 L_setq
s_cmp_lg_u32 s33, 4
s_cbranch_scc1 L_nq1
s_cmp_ge_u32 s64, 28
s_cbranch_scc1 L_nq1
s_cmp_eq_u32 s65, 0
s_cbranch_scc1 L_setf1""")
    srd(44, 18, None, 1792 * 1024)
    k(f"""s_movk_i32 s77, 0x400
s_mov_b32 s79, {(-7*1024+128) & 0xffffffff}
s_lshl_b32 s75, s64, 16
s_lshl_b32 s76, s29, 8
s_add_u32 s75, s75, s76
s_branch L_tload
L_setf1:""")
    srd(44, 16, None, 512 * 3584)
    k(f"""s_movk_i32 s77, 3584
s_mov_b32 s79, {57*3584}
s_mul_i32 s75, s29, {128*3584}
s_lshl_b32 s76, s64, 7
s_add_u32 s75, s75, s76
s_branch L_tload
L_setq:""")
    srd(44, 10, None, 4 << 20)
    k(f"""s_mov_b32 s76, {WS_E}
s_load_dword s68, s[24:25], s76
s_movk_i32 s77, 0x2000
s_mov_b32 s79, {57*8192}
s_lshl_b32 s75, s29, 20
s_lshl_b32 s76, s26, 10
s_add_u32 s75, s75, s76
s_lshl_b32 s76, s28, 7
s_add_u32 s75, s75, s76
L_tload:
v_mul_lo_u32 v121, v112, s77
v_add_u32 v121, v121, v111""")
    for ub in range(2):
        for t in range(8):
            r = 32 * ub + 4 * t
            if "notile" not in abl: k(f"buffer_load_dwordx4 v[{r}:{r+3}], v121, {SWA}, s75 offen{kvflag}")
            k("s_add_u32 s75, s75, s77" if t < 7 else "s_add_u32 s75, s75, s79")
    k(f"""s_barrier
s_cmp_lg_u32 s33, 0
s_cbranch_scc1 L_notag
s_waitcnt lgkmcnt(0)
s_add_u32 {TA}, {TA}, 1
s_mul_i32 {TB}, {TA}, 0x9e3779b1
s_xor_b32 {TB}, {TB}, 0x5bd1e995
v_mov_b32 v124, {TA}
v_mov_b32 v125, {TB}
ds_write_b64 {VZ}, v[124:125] offset:{L_TAG}
L_notag:
s_waitcnt vmcnt({0 if "notile" in abl else 16})
s_branch L_ln""")
    k("L_nq1:")
    k(f"""s_cmp_ge_u32 s33, 3
s_cbranch_scc1 L_nopf
s_getpc_b64 s[80:81]
L_pc:
s_sub_u32 s80, s80, L_pc-{NAME}_kernel
s_subb_u32 s81, s81, 0
s_mov_b32 s82, L_codeend-{NAME}_kernel
s_mov_b32 s83, 0x20000
s_lshl_b32 s75, s29, 1
s_add_u32 s75, s75, s33
s_sub_u32 s75, s75, 1
s_lshl_b32 s75, s75, 11
buffer_load_dwordx4 v[0:3], v120, s[80:83], s75 offen
buffer_load_dwordx4 v[0:3], v120, s[80:83], s75 offen offset:1024
s_barrier""")
    k(f"""s_waitcnt vmcnt(2)
s_branch L_ln
L_nopf:
s_barrier
s_waitcnt vmcnt(0)
s_branch L_ln""")

    k.flush()
    k("L_kwave:")
    srd(40, 6, "s74", 524288)
    k(f"""v_bfe_u32 v109, {VL}, 2, 2
v_and_b32 v110, 3, {VL}
v_lshlrev_b32 v120, 8, v109
v_lshl_add_u32 v120, v108, 6, v120
v_lshl_add_u32 v120, v110, 4, v120
v_add_u32 v120, s78, v120
s_mov_b32 s76, 0
s_movk_i32 s77, 0x4000
s_barrier""")
    for t in range(16):
        k(f"buffer_load_dwordx4 v[{4*t}:{4*t+3}], v120, {SKV}, s76 offen{kvflag}\ns_add_u32 s76, s76, s77")
    stamp("kissued")
    srd(56, 24, None, WS_SIZE)
    srd(48, 12, None, 4 << 20)
    k(f"""v_lshlrev_b32 v113, 8, v110
v_lshl_add_u32 v113, v108, 6, v113
v_lshl_add_u32 v113, v109, 4, v113
v_lshlrev_b32 v114, 7, v110
v_lshl_add_u32 v114, v108, 5, v114
v_lshl_add_u32 v114, v109, 3, v114
s_lshl_b32 s76, s33, 9
v_add_u32 v114, s76, v114
v_and_b32 v115, 1, {VL}
v_lshlrev_b32 v115, 3, v115
v_lshl_add_u32 v115, v108, 4, v115
v_lshlrev_b32 v121, 1, v115
v_lshl_add_u32 v122, v108, 7, v111
v_add_u32 v122, s76, v122
v_bfe_u32 v116, {VL}, 2, 3
v_lshlrev_b32 v116, 5, v116
v_lshl_add_u32 v116, v110, 2, v116
s_lshl_b32 s76, s33, 5
v_lshlrev_b32 v117, 2, {VL}
v_add_u32 v117, s76, v117
s_lshl_b32 s76, s33, 2
v_mov_b32 v123, s76
s_lshl_b32 s79, s30, 17
s_lshl_b32 s83, s33, 5""")
    wo_addr("v118")
    k("s_waitcnt vmcnt(0)")
    stamp("karr")
    def burst_code(lab):
        k(f"s_setprio 3")
        wo_dma("v118", 32, lab)
        k("s_setprio 0")
    if burst == "split": k("s_and_b32 s66, s28, 1")
    elif burst == "early": k("s_mov_b32 s66, 0")
    else: k("s_mov_b32 s66, 1")
    k("""s_cmp_ge_u32 s33, 4
s_cselect_b32 s66, 2, s66
s_cmp_lg_u32 s66, 0
s_cbranch_scc1 L_nb0""")
    burst_code("L_burst0")
    k("L_nb0:")
    lds_wait(L_F_Q, 2)
    k(f"ds_read_b128 v[96:99], v113 offset:{L_Q}")
    gettags()
    stamp("qready")
    def Dreg(t): return 100 if t == 0 else 4 * (t - 1)
    def qk_step(t, i):
        D = Dreg(t); tb = t >> 2; R = 104 + (t & 3)
        qs = [q for q in range(4) if q != tb]
        q = qs[i]; n = (4 * (tb - q)) % 16
        src1 = f"v{D+tb}" if i == 0 else f"v{R}"
        k(f"v_add_f32_dpp v{R}, v{D+q}, {src1} row_ror:{n} row_mask:0xf bank_mask:{1 << tb:#x}")
    for t in range(16 + 5):
        if t < 16:
            mfma(Dreg(t), 4 * t, 96, None)
        for i in range(3):
            tt = t - 3 - i
            if 0 <= tt < 16: qk_step(tt, i)
    k(f"""s_mov_b32 s76, {SCALE:#x}
s_mov_b32 s77, {LOG2E:#x}
v_cvt_pk_bf16_f32 v0, v104, v105
v_cvt_pk_bf16_f32 v1, v106, v107
v_lshlrev_b32 v2, 16, v0
v_and_b32 v3, 0xffff0000, v0
v_lshlrev_b32 v4, 16, v1
v_and_b32 v5, 0xffff0000, v1
v_mul_f32 v2, s76, v2
v_mul_f32 v3, s76, v3
v_mul_f32 v4, s76, v4
v_mul_f32 v5, s76, v5
v_cvt_pk_bf16_f32 v0, v2, v3
v_cvt_pk_bf16_f32 v1, v4, v5
v_lshlrev_b32 v2, 16, v0
v_and_b32 v3, 0xffff0000, v0
v_lshlrev_b32 v4, 16, v1
v_and_b32 v5, 0xffff0000, v1
v_max3_f32 v6, v2, v3, v4
v_max_f32 v6, v6, v5""")
    row_reduce("v_max_f32", "v6", (4, 8))
    xrow_reduce("v_max_f32", "v6", "v7")
    k(f"""s_mov_b64 exec, 0xf
ds_write_b32 v117, v6 offset:{L_STAT}
s_mov_b64 exec, -1""")
    lds_inc(L_CNT_K)
    lds_wait(L_CNT_K, 8)
    k(f"ds_read_b32 v6, v116 offset:{L_STAT}\ns_waitcnt lgkmcnt(0)")
    row_reduce("v_max_f32", "v6", (4, 8))
    xrow_reduce("v_max_f32", "v6", "v7", (16,))
    for i in range(4): k(f"v_sub_f32 v{2+i}, v{2+i}, v6")
    for i in range(4): k(f"v_mul_f32 v{2+i}, s77, v{2+i}")
    for i in range(4): k(f"v_exp_f32 v{2+i}, v{2+i}")
    k(f"""v_cvt_pk_bf16_f32 v0, v2, v3
v_cvt_pk_bf16_f32 v1, v4, v5
ds_write_b64 v114, v[0:1] offset:{L_P}
v_add_f32 v8, v2, v3
v_add_f32 v9, v4, v5
v_add_f32 v8, v8, v9""")
    row_reduce("v_add_f32", "v8", (4, 8))
    xrow_reduce("v_add_f32", "v8", "v7")
    k(f"""v_mov_b32 v11, 1
s_mov_b64 exec, 0xf
ds_write_b32 v117, v8 offset:{L_STAT+16}
s_mov_b64 exec, -1
s_waitcnt lgkmcnt(0)
s_mov_b64 exec, 1
ds_write_b32 v123, v11 offset:{L_F_P}
ds_add_u32 {VZ}, v11 offset:{L_CNT_L}
s_mov_b64 exec, -1""")
    stamp("qkdone")
    k("s_cmp_lg_u32 s66, 1\ns_cbranch_scc1 L_nb1")
    burst_code("L_burst1")
    k("L_nb1:")
    k("s_cmp_lg_u32 s33, 7\ns_cbranch_scc1 L_nostat")
    lds_wait(L_CNT_L, 8)
    k(f"""ds_read_b32 v8, v116 offset:{L_STAT+16}
v_mov_b32 v7, {TA}
v_mov_b32 v9, {TB}
s_lshl_b32 s76, s32, 9
s_add_u32 s76, s76, {WS_ST}
s_lshl_b32 s77, s29, 4
s_add_u32 s76, s76, s77
v_lshlrev_b32 v10, 7, {VL}
s_waitcnt lgkmcnt(0)""")
    row_reduce("v_add_f32", "v8", (4, 8))
    xrow_reduce("v_add_f32", "v8", "v11", (16,))
    k(f"""s_mov_b64 exec, 0xf
buffer_store_dwordx4 v[6:9], v10, {SWS}, s76 offen sc1
s_mov_b64 exec, -1""")
    k("L_nostat:")
    k("s_cmp_ge_u32 s33, 4\ns_cbranch_scc1 L_nsig\ns_waitcnt vmcnt(0)")
    lds_inc(L_CNT_WO)
    k("L_nsig:")
    lds_wait(L_CNT_WO, 4)
    k(f"""s_lshl_b32 s76, s33, 14
v_lshlrev_b32 v120, 4, {VL}
v_add_u32 v120, s76, v120""")
    for t in range(16):
        k(f"ds_read_b128 v[{4*t}:{4*t+3}], v120 offset:{L_WO + 1024*t}")
    k(f"""s_lshl_b32 s75, s28, 5
s_add_u32 s75, s75, s30
s_lshl_b32 s75, s75, 12
s_add_u32 s75, s75, {WS_OA}
s_mov_b32 s70, 0x00ff00ff
s_mov_b32 s71, 0x00ff00ff
s_lshl_b32 s76, s33, 8
v_lshlrev_b32 v120, 3, {VL}
v_add_u32 v120, s76, v120
v_lshlrev_b32 v123, 1, v120
s_lshl_b32 s77, s32, 2
s_add_u32 s77, s77, s29
s_lshl_b32 s77, s77, 12
s_add_u32 s78, s77, {WS_OX}
v_mov_b32 v113, {TA}
v_mov_b32 v115, {TB}
v_mov_b32 v117, {TA}
v_mov_b32 v119, {TB}
s_waitcnt lgkmcnt(8)""")
    for w in range(4): perms(64 + 8 * w, 0, w)
    k("s_waitcnt lgkmcnt(0)")
    for w in range(4): perms(0 + 8 * w, 32, w)
    stamp("kready")
    k("s_barrier")
    stamp("bar2")
    k(f"""s_mov_b32 exec_hi, 0
ds_read_b64 v[96:97], v120 offset:{L_OP}
ds_read_b64 v[98:99], v120 offset:{L_OP+2048}
ds_read_b64 v[100:101], v120 offset:{L_OP+4096}
ds_read_b64 v[102:103], v120 offset:{L_OP+6144}
s_waitcnt lgkmcnt(2)
v_add_f32 v96, v96, v98
v_add_f32 v97, v97, v99
s_waitcnt lgkmcnt(0)
v_add_f32 v100, v100, v102
v_add_f32 v101, v101, v103
v_add_f32 v116, v96, v100
v_add_f32 v118, v97, v101
buffer_store_dwordx4 v[116:119], v123, {SWS}, s78 offen sc1
s_mov_b64 exec, -1
s_barrier""")
    stamp("bar3")
    k(f"""ds_read_b128 v[96:99], v121 offset:{L_O16}
ds_read_b128 v[100:103], v121 offset:{L_O16+128}
s_waitcnt lgkmcnt(1)""")
    for di in range(8): mfma(32 + 4 * di, 96, 64 + 4 * di, None)
    k("s_waitcnt lgkmcnt(0)")
    for di in range(8): mfma(32 + 4 * di, 100, 4 * di, 32 + 4 * di)
    for di in range(8):
        D = 32 + 4 * di
        k(f"v_add_f32_dpp v{112 + 2*(di&1)}, v{D+1}, v{D} row_shl:8 row_mask:{1 << (di>>1):#x} bank_mask:0xf")
    k(f"""s_mov_b64 exec, s[70:71]
buffer_store_dwordx4 v[112:115], v122, {SWS}, s75 offen sc1
s_mov_b64 exec, -1""")
    stamp("kend")
    stamp_flush()
    k("s_endpgm")

    k.flush()
    k("L_ln:")
    for i in range(4):
        k(f"v_lshlrev_b32 v{100+2*i}, 16, v{96+i}\nv_and_b32 v{101+2*i}, 0xffff0000, v{96+i}")
    k("""v_add_f32 v96, v100, v101
v_add_f32 v97, v102, v103
v_add_f32 v98, v104, v105
v_add_f32 v99, v106, v107
v_add_f32 v96, v96, v97
v_add_f32 v98, v98, v99
v_add_f32 v96, v96, v98""")
    row_reduce("v_add_f32", "v96")
    xrow_reduce("v_add_f32", "v96", "v97")
    k("v_mul_f32 v96, 0x3b000000, v96")
    k("v_sub_f32 v98, v100, v96\nv_mul_f32 v97, v98, v98")
    for i in range(1, 8):
        k(f"v_sub_f32 v98, v{100+i}, v96\nv_fmac_f32 v97, v98, v98")
    row_reduce("v_add_f32", "v97")
    xrow_reduce("v_add_f32", "v97", "v98")
    k("v_mul_f32 v97, 0x3b000000, v97")
    rnd("v96", "v96"); rnd("v97", "v97")
    k("v_add_f32 v97, 0x3727c5ac, v97")
    rnd("v97", "v97")
    k("v_sqrt_f32 v97, v97")
    rnd("v97", "v97")
    k("v_rcp_f32 v98, v97")
    for i in range(0, 8, 2):
        a, b2 = 100 + i, 101 + i
        k(f"""v_sub_f32 v{a}, v{a}, v96
v_sub_f32 v{b2}, v{b2}, v96
v_cvt_pk_bf16_f32 v99, v{a}, v{b2}
v_lshlrev_b32 v{a}, 16, v99
v_and_b32 v{b2}, 0xffff0000, v99""")
    for i in range(8):
        a = 100 + i
        k(f"""v_mul_f32 v99, v{a}, v98
v_fma_f32 v{a}, -v99, v97, v{a}
v_fma_f32 v{a}, v{a}, v98, v99""")
    for i in range(4):
        k(f"v_cvt_pk_bf16_f32 v{96+i}, v{100+2*i}, v{101+2*i}")
    k(f"""s_lshl_b32 s75, s33, 10
v_add_u32 v122, s75, v120
ds_write_b128 v122, v[96:99] offset:{L_XN}""")
    lds_inc(L_CNT_XN)
    stamp("ln")
    srd(56, 24, None, WS_SIZE)
    srd(40, 8, "s74", 524288)
    k(f"""s_cmp_eq_u32 s33, 0
s_cbranch_scc1 L_tq
s_cmp_lt_u32 s33, 3
s_cbranch_scc1 L_wopf
s_cmp_lt_u32 s33, 4
s_cbranch_scc1 L_vload
s_cmp_ge_u32 s33, 6
s_cbranch_scc1 L_qg
s_cmp_ge_u32 s64, 28
s_cbranch_scc1 L_vload
s_cmp_eq_u32 s33, 5
s_cbranch_scc1 L_hg
s_cmp_eq_u32 s65, 1
s_cbranch_scc1 L_f2""")
    k(f"""v_lshrrev_b32 v121, 3, {VL}
v_lshlrev_b32 v121, 9, v121
s_lshl_b32 s75, s64, 2
s_add_u32 s75, s75, s29
s_lshl_b32 s75, s75, 12
s_add_u32 s75, s75, {WS_HP}
s_lshl_b32 s76, s26, 12
s_add_u32 s77, s28, 1
s_lshl_b32 s77, s77, 9
s_add_u32 s76, s76, s77
s_lshl_b32 s77, s29, 2
s_add_u32 s76, s76, s77
s_add_u32 s76, s76, {WS_HH}
s_mov_b32 s70, 0xf
s_branch L_tile
L_tq:
v_lshrrev_b32 v121, 3, {VL}
v_lshlrev_b32 v121, 15, v121
s_lshl_b32 s75, s29, 18
s_lshl_b32 s76, s26, 12
s_add_u32 s75, s75, s76
s_lshl_b32 s77, s28, 9
s_add_u32 s75, s75, s77
s_lshl_b32 s77, s27, 2
s_add_u32 s76, s76, s77
s_add_u32 s76, s76, {WS_HQ}
s_mov_b32 s70, -1
L_tile:
s_mov_b32 s71, 0
v_add_u32 v121, v111, v121
v_bfe_u32 v122, {VL}, 1, 3
v_lshlrev_b32 v122, 10, v122
v_and_b32 v123, 1, {VL}
v_lshl_add_u32 v122, v123, 4, v122
v_lshl_add_u32 v122, v108, 5, v122
s_lshl_b32 s77, s29, 8
v_add_u32 v122, s77, v122
v_lshlrev_b32 v123, 7, {VL}""")
    lds_wait(L_CNT_XN, 8)
    k(f"""ds_read_b128 v[96:99], v122 offset:{L_XN}
ds_read_b128 v[100:103], v122 offset:{L_XN+128}""")
    gettags()
    for ub in range(2):
        k(f"s_waitcnt vmcnt({8 - 8*ub})")
        for w in range(4):
            T = 104 + 8 * (w & 1)
            perms(T, 32 * ub, w)
            mfma(64 + 8 * w, 96 + 4 * ub, T, None if ub == 0 else 64 + 8 * w)
            mfma(68 + 8 * w, 96 + 4 * ub, T + 4, None if ub == 0 else 68 + 8 * w)
    def tile_out(G, Dbase):
        for w in range(4):
            k(f"v_mov_b32 v{G+4*w+1}, {TA}\nv_mov_b32 v{G+4*w+3}, {TB}")
        for di in range(8):
            D = Dbase + 4 * di
            k(f"v_add_f32_dpp v{G+2*di}, v{D+1}, v{D} row_shl:8 row_mask:0xf bank_mask:0x3")
        for di in range(8):
            D = Dbase + 4 * di
            k(f"v_add_f32_dpp v{G+2*di}, v{D+2}, v{D+3} row_shr:8 row_mask:0xf bank_mask:0xc")
    tile_out(0, 64)
    for w in range(4):
        if "noqp" not in abl: k(f"buffer_store_dwordx4 v[{4*w}:{4*w+3}], v121, {SWS}, s75 offen offset:{128*w} sc1")
    if "nohint" not in abl: k(f"""s_mov_b64 exec, s[70:71]
buffer_store_dword v1, v123, {SWS}, s76 offen sc1
s_mov_b64 exec, -1""")
    stamp("tpub")
    k("s_branch L_vload")
    k.flush()
    k("L_wopf:")
    srd(48, 12, None, 4 << 20)
    wo_addr("v122")
    k(f"""s_lshl_b32 s79, s30, 17
s_lshl_b32 s83, s28, 1
s_add_u32 s83, s83, s33
s_sub_u32 s83, s83, 1
s_lshl_b32 s83, s83, 3""")
    wo_dma("v122", 8, "L_wpf")
    k("s_branch L_vload")
    k.flush()
    k("L_f2:")
    k(f"""v_bfe_u32 v122, {VL}, 1, 3
v_lshlrev_b32 v122, 7, v122
v_and_b32 v123, 1, {VL}
v_lshl_add_u32 v122, v123, 4, v122
v_lshl_add_u32 v122, v108, 5, v122
v_lshrrev_b32 v121, 3, {VL}
v_lshlrev_b32 v121, 12, v121
v_add_u32 v121, v111, v121
s_lshl_b32 s75, s64, 15
s_lshl_b32 s76, s29, 10
s_add_u32 s75, s75, s76
s_add_u32 s75, s75, {WS_OB}""")
    lds_wait(L_F_HN, 1)
    k(f"ds_read_b128 v[96:99], v122 offset:{L_HN}")
    gettags()
    k("s_waitcnt vmcnt(0)")
    for nb in range(2):
        for w in range(4):
            T = 104 + 8 * (w & 1)
            perms(T, 32 * nb, w)
            mfma(64 + 8 * w, 96, T, None)
            mfma(68 + 8 * w, 96, T + 4, None)
        tile_out(16 * nb, 64)
        for w in range(4):
            k(f"buffer_store_dwordx4 v[{16*nb+4*w}:{16*nb+4*w+3}], v121, {SWS}, s75 offen offset:{512*nb + 128*w} sc1")
    stamp("tpub")
    k("s_branch L_vload")
    k.flush()
    k("L_hg:")
    k("s_cmp_eq_u32 s65, 0\ns_cbranch_scc1 L_vload")
    lds_wait(L_CNT_XN, 8)
    gettags()
    k(f"""s_lshl_b32 s75, s26, 12
s_lshl_b32 s76, s27, 7
s_add_u32 s75, s75, s76
s_add_u32 s75, s75, {WS_HH}
s_mov_b32 s72, {SPIN}
L_hpoll:
s_sleep 2
s_load_dwordx4 s[80:83], s[24:25], s75 glc
s_waitcnt lgkmcnt(0)
s_xor_b32 s80, s80, {TA}
s_xor_b32 s81, s81, {TA}
s_xor_b32 s82, s82, {TA}
s_xor_b32 s83, s83, {TA}
s_or_b32 s80, s80, s81
s_or_b32 s82, s82, s83
s_or_b32 s80, s80, s82
s_cmp_eq_u32 s80, 0
s_cbranch_scc1 L_hok
s_sub_u32 s72, s72, 1
s_cmp_lg_u32 s72, 0
s_cbranch_scc1 L_hpoll
L_hok:
s_lshl_b32 s75, s64, 14
s_add_u32 s75, s75, {WS_HP}
v_lshrrev_b32 v121, 5, {VL}
v_lshlrev_b32 v121, 7, v121
v_add_u32 v121, v121, v111
v_bfe_u32 v122, {VL}, 3, 2
v_lshl_add_u32 v121, v122, 2, v121
s_mov_b32 s72, {SPIN}
L_hgpoll:""")
    for ks in range(4):
        k(f"s_add_u32 s76, s75, {ks*4096}")
        for n in range(4):
            r = 16 * ks + 4 * n
            k(f"buffer_load_dwordx4 v[{r}:{r+3}], v120, {SWS}, s76 offen offset:{1024*n} sc1")
    k("s_waitcnt vmcnt(0)")
    tagcheck([4 * i for i in range(16)], "v64", "v65", "v66")
    k(f"""s_cbranch_vccz L_hgok
s_sub_u32 s72, s72, 1
s_cmp_lg_u32 s72, 0
s_cbranch_scc1 L_hgpoll
L_hgok:""")
    for i in range(0, 16, 2):
        k(f"v_add_f32 v{i}, v{i}, v{16+i}\nv_add_f32 v{32+i}, v{32+i}, v{48+i}")
    for i in range(0, 16, 2):
        k(f"v_add_f32 v{i}, v{i}, v{32+i}")
    for i in range(0, 16, 2):
        k(f"v_max_f32 v{i}, 0, v{i}")
    for i in range(4):
        k(f"v_cvt_pk_bf16_f32 v{64+i}, v{4*i}, v{4*i+2}")
    for i in range(4):
        k(f"ds_write_b32 v121, v{64+i} offset:{L_HN + 256*i}")
    lds_inc(L_F_HN)
    stamp("hg")
    k("s_branch L_vload")
    k.flush()
    k("L_qg:")
    lds_wait(L_CNT_XN, 8)
    if "noq" in abl: k("s_branch L_qskip")
    gettags()
    k("s_cmp_eq_u32 s33, 6\ns_cbranch_scc1 L_hp")
    lds_wait(L_F_H, 1)
    k("s_branch L_fok2")
    k(f"""L_hp:
s_lshl_b32 s75, s26, 12
s_lshl_b32 s76, s27, 7
s_add_u32 s75, s75, s76
s_add_u32 s75, s75, {WS_HQ}
s_mov_b32 s72, {SPIN}
L_fpoll:
s_sleep 2
s_load_dwordx16 s[4:19], s[24:25], s75 glc
s_load_dwordx16 s[80:95], s[24:25], s75 offset:64 glc
s_waitcnt lgkmcnt(0)
s_min_u32 s73, s4, s5
s_max_u32 s76, s4, s5""")
    for i in list(range(6, 20)) + list(range(80, 96)):
        k(f"s_min_u32 s73, s73, s{i}\ns_max_u32 s76, s76, s{i}")
    k(f"""s_xor_b32 s73, s73, {TA}
s_xor_b32 s76, s76, {TA}
s_or_b32 s73, s73, s76
s_cmp_eq_u32 s73, 0
s_cbranch_scc1 L_fok
s_sub_u32 s72, s72, 1
s_cmp_lg_u32 s72, 0
s_cbranch_scc1 L_fpoll
L_fok:""")
    lds_inc(L_F_H)
    stamp("hint")
    k(f"""L_fok2:
s_lshl_b32 s75, s28, 15
s_lshl_b32 s76, s26, 12
s_add_u32 s75, s75, s76
s_sub_u32 s77, s33, 6
s_lshl_b32 s76, s77, 11
s_add_u32 s75, s75, s76
s_lshl_b32 s77, s77, 9
v_lshrrev_b32 v121, 5, {VL}
v_lshlrev_b32 v121, 7, v121
v_add3_u32 v121, v121, v111, s77
v_bfe_u32 v122, {VL}, 3, 2
v_lshl_add_u32 v121, v122, 2, v121
s_mov_b32 s72, {SPIN}
L_qpoll:""")
    for ks in range(4):
        k(f"""s_add_u32 s76, s75, {ks*262144}
buffer_load_dwordx4 v[{8*ks}:{8*ks+3}], v120, {SWS}, s76 offen sc1
buffer_load_dwordx4 v[{8*ks+4}:{8*ks+7}], v120, {SWS}, s76 offen offset:1024 sc1""")
    k("s_waitcnt vmcnt(0)")
    tagcheck([4 * i for i in range(8)], "v32", "v33", "v34")
    k(f"""s_cbranch_vccz L_qok
s_sub_u32 s72, s72, 1
s_cmp_lg_u32 s72, 0
s_cbranch_scc1 L_qpoll
L_qok:""")
    for i in range(0, 8, 2):
        k(f"v_add_f32 v{i}, v{i}, v{8+i}\nv_add_f32 v{16+i}, v{16+i}, v{24+i}")
    for i in range(0, 8, 2):
        k(f"v_add_f32 v{i}, v{i}, v{16+i}")
    k(f"""v_cvt_pk_bf16_f32 v32, v0, v2
v_cvt_pk_bf16_f32 v33, v4, v6
ds_write_b32 v121, v32 offset:{L_Q}
ds_write_b32 v121, v33 offset:{L_Q+256}""")
    k("L_qskip:")
    lds_inc(L_F_Q)
    k("L_vload:")
    k(f"""s_setprio 0
v_add_u32 v121, s78, v120
s_mov_b32 s76, 0
s_movk_i32 s77, 0x4000""")
    for t in range(16):
        k(f"buffer_load_dwordx4 v[{4*t}:{4*t+3}], v121, {SKV}, s76 offen{kvflag}\ns_add_u32 s76, s76, s77")
    stamp("vissued")
    k(f"""v_lshrrev_b32 v108, 4, {VL}
v_and_b32 v110, 3, {VL}
v_bfe_u32 v109, {VL}, 2, 2
v_lshlrev_b32 v122, 7, v110
v_lshl_add_u32 v122, v108, 5, v122
s_lshl_b32 s75, s33, 9
s_add_u32 s75, s75, {L_P}
v_add_u32 v122, s75, v122
v_mov_b32 v123, {L_ZERO}""")
    for dl in range(4):
        k(f"v_cmp_eq_u32 vcc, {dl}, v109\nv_cndmask_b32 v{112+dl}, v123, v122, vcc")
    k(f"""s_lshl_b32 s75, s33, 2
v_mov_b32 v123, s75
s_and_b32 s75, s33, 3
s_lshl_b32 s76, s75, 2
v_mov_b32 v121, s76
s_lshl_b32 s75, s75, 11
v_add_u32 v120, s75, v120
v_lshlrev_b32 v122, 2, {VL}
v_add_u32 v122, s75, v122""")
    lds_wait(L_F_P, 1, vaddr="v123")
    for ub in range(2):
        for dl in range(4):
            r = 64 + 16 * ub + 4 * dl
            k(f"ds_read_b128 v[{r}:{r+3}], v{112+dl} offset:{16*ub}")
    k("s_cmp_ge_u32 s33, 4\ns_cbranch_scc1 L_g3")
    for i in range(8): k(f"v_mov_b32 v{96+i}, 0")
    k("s_branch L_pv\nL_g3:")
    lds_wait(L_F_D, 1, vaddr="v121")
    k(f"""ds_read_b128 v[96:99], v120 offset:{L_DX}
ds_read_b128 v[100:103], v120 offset:{L_DX+1024}
L_pv:
s_waitcnt lgkmcnt(0)""")
    for ub in range(2):
        k(f"s_waitcnt vmcnt({8-8*ub})")
        if ub == 1: stamp("varr")
        for w in range(4):
            T = 104 + 8 * (w & 1)
            perms(T, 32 * ub, w)
            for hh in range(2):
                di = 2 * w + hh; x = di >> 2; dl = di & 3
                mfma(96 + 4 * x, 64 + 16 * ub + 4 * dl, T + 4 * hh, 96 + 4 * x)
    k("s_cmp_ge_u32 s33, 4\ns_cbranch_scc1 L_g3b")
    k(f"""ds_write_b128 v120, v[96:99] offset:{L_DX}
ds_write_b128 v120, v[100:103] offset:{L_DX+1024}""")
    lds_inc(L_F_D, vaddr="v121")
    stamp("pvdone")
    k("s_cmp_eq_u32 s33, 3\ns_cbranch_scc1 L_final")
    k("s_barrier")
    stamp_flush()
    k("s_endpgm")
    k.flush()
    k("L_g3b:")
    for x in range(2):
        for h in range(4):
            k(f"ds_write_b32 v122, v{96+4*x+h} offset:{L_OP + h*512 + x*256}")
    k("s_waitcnt lgkmcnt(0)")
    stamp("pvdone")
    k("s_barrier")
    stamp_flush()
    k("s_endpgm")
    k.flush()
    k("L_final:")
    gettags()
    srd(60, 20, None, 8192)
    k(f"""v_lshlrev_b32 v120, 4, {VL}
s_lshl_b32 s75, s32, 14
s_lshl_b32 s76, s29, 10
s_add_u32 s75, s75, s76
s_add_u32 s75, s75, {WS_OX}
s_add_u32 s76, s75, 4096
s_add_u32 s77, s75, 8192
s_add_u32 s78, s75, 12288
v_lshlrev_b32 v121, 2, {VL}
v_and_b32 v109, 7, {VL}
v_lshrrev_b32 v108, 3, {VL}
v_lshlrev_b32 v110, 12, v108
v_lshl_add_u32 v110, v109, 4, v110
v_lshlrev_b32 v112, 15, v108
v_lshl_add_u32 v112, v109, 4, v112
s_lshl_b32 s79, s28, 17
s_lshl_b32 s80, s30, 7
s_add_u32 s79, s79, s80
s_add_u32 s79, s79, {WS_OA}
s_lshl_b32 s84, s28, 12
s_add_u32 s84, s84, s80
s_add_u32 s84, s84, {WS_OB}
s_lshl_b32 s81, s28, 10
s_lshl_b32 s80, s26, 7
s_add_u32 s81, s81, s80
s_lshl_b32 s80, s29, 2
s_add_u32 s81, s81, s80
v_lshlrev_b32 v111, 4, v109
buffer_load_dword v20, v111, {SX}, s81 offen
s_lshl_b32 s82, s32, 9
s_lshl_b32 s83, s29, 7
s_add_u32 s82, s82, s83
s_add_u32 s82, s82, {WS_ST}""")
    def gather(vaddr, sbase, step, lab, d0, d1, partial):
        k(f"s_mov_b32 s72, {SPIN}")
        if partial:
            k(f"v_mov_b32 v12, 0\nv_mov_b32 v13, {TA}\nv_mov_b32 v14, 0\nv_mov_b32 v15, {TB}")
        k(f"{lab}poll:")
        for m in range(4):
            if partial and m == 3: k("s_mov_b32 exec_hi, 0")
            k(f"s_add_u32 s85, {sbase}, {m*step}\nbuffer_load_dwordx4 v[{4*m}:{4*m+3}], {vaddr}, {SWS}, s85 offen sc1")
        if partial: k("s_mov_b64 exec, -1")
        k("s_waitcnt vmcnt(0)")
        tagcheck([0, 4, 8, 12], "v16", "v17", "v18")
        k(f"""s_cbranch_vccz {lab}ok
s_sleep {psleep}
s_sub_u32 s72, s72, 1
s_cmp_lg_u32 s72, 0
s_cbranch_scc1 {lab}poll
{lab}ok:
v_add_f32 v0, v0, v4
v_add_f32 v2, v2, v6
v_add_f32 v8, v8, v12
v_add_f32 v10, v10, v14
v_add_f32 {d0}, v0, v8
v_add_f32 {d1}, v2, v10
v_add_f32_dpp {d0}, {d0}, {d0} row_ror:8 row_mask:0xf bank_mask:0xf
v_add_f32_dpp {d1}, {d1}, {d1} row_ror:8 row_mask:0xf bank_mask:0xf""")
        for w in (16, 32):
            k(f"""v_mov_b32 v16, {d0}
v_mov_b32 v17, {d1}
v_permlane{w}_swap_b32 {d0}, v16
v_permlane{w}_swap_b32 {d1}, v17
v_add_f32 {d0}, {d0}, v16
v_add_f32 {d1}, {d1}, v17""")
        k(f"""v_cvt_pk_bf16_f32 v16, {d0}, {d1}
v_lshlrev_b32 {d0}, 16, v16
v_and_b32 {d1}, 0xffff0000, v16""")
    k("s_barrier")
    if dbgtime: k("s_memrealtime s[100:101]")
    k(f"""s_mov_b32 s72, {SPIN}
L_stpoll:
s_load_dwordx16 s[4:19], s[24:25], s82 glc
s_waitcnt lgkmcnt(0)
s_mov_b32 s73, 0""")
    for p in range(4):
        k(f"""s_xor_b32 s83, s{4+4*p+1}, {TA}
s_or_b32 s73, s73, s83
s_xor_b32 s83, s{4+4*p+3}, {TB}
s_or_b32 s73, s73, s83""")
    k(f"""s_cmp_eq_u32 s73, 0
s_cbranch_scc1 L_stok
s_sleep 2
s_sub_u32 s72, s72, 1
s_cmp_lg_u32 s72, 0
s_cbranch_scc1 L_stpoll
L_stok:
s_mov_b32 s83, {LOG2E:#x}
v_mov_b32 v28, s4
v_max_f32 v28, s8, v28
v_max_f32 v28, s12, v28
v_max_f32 v28, s16, v28""")
    for p in range(4): k(f"v_sub_f32 v{24+p}, s{4+4*p}, v28")
    for p in range(4): k(f"v_mul_f32 v{24+p}, s83, v{24+p}")
    for p in range(4): k(f"v_exp_f32 v{24+p}, v{24+p}")
    k(f"""v_mul_f32 v28, s6, v24
v_fmac_f32 v28, s10, v25
v_fmac_f32 v28, s14, v26
v_fmac_f32 v28, s18, v27
v_rcp_f32 v28, v28""")
    for p in range(4): k(f"v_mul_f32 v{24+p}, v{24+p}, v28")
    k(f"""s_mov_b32 s72, {SPIN}
L_oxpoll:""")
    for p in range(4):
        k(f"buffer_load_dwordx4 v[{4*p}:{4*p+3}], v120, {SWS}, s{75+p} offen sc1")
    k("s_waitcnt vmcnt(0)")
    tagcheck([0, 4, 8, 12], "v16", "v17", "v18")
    k(f"""s_cbranch_vccz L_oxok
s_sleep {psleep}
s_sub_u32 s72, s72, 1
s_cmp_lg_u32 s72, 0
s_cbranch_scc1 L_oxpoll
L_oxok:
v_mul_f32 v0, v0, v24
v_mul_f32 v2, v2, v24
v_mul_f32 v8, v8, v26
v_mul_f32 v10, v10, v26
v_fmac_f32 v0, v4, v25
v_fmac_f32 v2, v6, v25
v_fmac_f32 v8, v12, v27
v_fmac_f32 v10, v14, v27
v_add_f32 v0, v0, v8
v_add_f32 v2, v2, v10
v_cvt_pk_bf16_f32 v0, v0, v2
ds_write_b32 v121, v0 offset:{L_O16}
s_waitcnt lgkmcnt(0)
s_barrier""")
    stamp("fbar3")
    if "noffn" not in abl: gather("v112", "s84", 8 * 32768, "L_ob", "v22", "v23", True)
    k("v_and_b32 v21, 0xffff0000, v20\nv_lshlrev_b32 v20, 16, v20")
    gather("v110", "s79", 32768, "L_oa", "v24", "v25", False)
    k(f"""v_add_f32 v20, v20, v24
v_add_f32 v21, v21, v25
v_cvt_pk_bf16_f32 v16, v20, v21
v_lshlrev_b32 v20, 16, v16
v_and_b32 v21, 0xffff0000, v16
v_add_f32 v20, v20, v22
v_add_f32 v21, v21, v23
v_cvt_pk_bf16_f32 v20, v20, v21
s_mov_b64 exec, 0xff
buffer_store_dword v20, v111, {SOUT}, s81 offen
s_mov_b64 exec, -1""")
    stamp("end")
    if dbgtime:
        k(f"""s_memrealtime s[98:99]
s_waitcnt lgkmcnt(0)
s_not_b32 s96, s96
v_mov_b32 v0, s96
v_mov_b32 v1, s98
v_mov_b32 v2, s100
s_mov_b64 exec, 1
global_atomic_umax {VZ}, v0, s[22:23]
global_atomic_umax {VZ}, v1, s[22:23] offset:4
global_atomic_umax {VZ}, v2, s[22:23] offset:8
s_mov_b64 exec, -1""")
    stamp_flush()
    k(f"""s_cmp_lg_u32 s2, 0
s_cbranch_scc1 L_end
v_mov_b32 v16, {TA}
s_mov_b32 s76, {WS_E}
s_mov_b64 exec, 1
buffer_store_dword v16, {VZ}, {SWS}, s76 offen""")
    k("L_end:")
    k("s_endpgm")
    k("L_codeend:")

    T = []
    T.append('.section .rodata,"a"'); T.append(".p2align 6")
    T.append(f".amdhsa_kernel {NAME}_kernel")
    T.append("  .amdhsa_next_free_vgpr 128"); T.append("  .amdhsa_next_free_sgpr 102"); T.append("  .amdhsa_accum_offset 128")
    T.append("  .amdhsa_group_segment_fixed_size 0"); T.append("  .amdhsa_kernarg_size 88"); T.append("  .amdhsa_user_sgpr_count 2")
    T.append("  .amdhsa_user_sgpr_kernarg_segment_ptr 1"); T.append("  .amdhsa_system_sgpr_workgroup_id_x 1")
    T.append("  .amdhsa_float_denorm_mode_32 3")
    T.append(".end_amdhsa_kernel")
    open(fname, "w").write("\n".join(H) + "\n" + k.text() + "\n".join(T) + "\n")

SA = {"start": 0, "kissued": 1, "qready": 2, "ln": 1, "tpub": 1, "hint": 1, "hg": 1, "vissued": 2}
SB = {"start": 0, "qkdone": 1, "kready": 2, "varr": 1, "pvdone": 2}
SC = {"start": 0, "bar2": 1, "kend": 2, "fbar3": 1, "end": 2, "pvdone": 1}
SD = {"start": 0, "kissued": 1, "karr": 2, "vissued": 1, "varr": 2}
if __name__ == "__main__":
    gen("k6.s")
    gen("k6_sa.s", stamps=SA)
    gen("k6_sb.s", stamps=SB)
    gen("k6_sc.s", stamps=SC)
    gen("k6_a0.s", stamps=SD)
    gen("k6_a1.s", stamps=SD, abl=("nowo",))
    gen("k6_a2.s", stamps=SD, abl=("nowo", "noffn"))
    gen("k6_a3.s", stamps=SD, abl=("nowo", "noffn", "noq"))
    gen("k6_early.s", stamps=SD, burst="early")
    gen("k6_late.s", stamps=SD, burst="late")
    gen("k6_nt.s", stamps=SD, wflag=" nt")
```

```python
import sys, argparse
from asmlib import Asm
NAME = "parallel_sum__sliding_block_cached__dense_activation_relu__decode"

WS_QP = 0x000000
WS_OX = 0x100000
WS_OA = 0x200000
WS_OB = 0x300000
WS_ST = 0x400000
WS_HQ = 0x410000
WS_HH = 0x418000
WS_HP = 0x420000
WS_E  = 0x490000
WS_SIZE = 0x491000
STAMP_OFF = 256 << 20
L_CNT_XN = 0; L_MODE = 4; L_F_Q = 8; L_F_HN = 12; L_CNT_K = 16; L_CNT_L = 20; L_TAG = 24; L_F_P = 32
L_ZERO = 64; L_F_D = 96; L_CNT_WO = 112; L_ZEND = 128
L_STAT = 128; L_Q = 1024; L_HN = 2048; L_P = 3072; L_XN = 7168; L_OP = 15360; L_DX = L_OP + 8192; L_O16 = L_DX + 8192; L_WT = L_O16 + 2048; L_END = L_WT + 16384

LOG2E = 0x3fb8aa3b
SCALE = 0x3db504f3
SPIN = 1 << 16

def gen(fname, stamps=None, kvflag=" nt", psleep=2, abl=(), dbgtime=False, lst=" sc1", oxst=" sc1"):
    k = Asm()
    H = []
    H.append(open("cdna_kernels/%s.s.ref" % NAME).read().split("; Override launch")[0].rstrip("\n"))
    H.append(f"; @launch grid=(256,1,1) block=(1024,1,1) lds={L_END}")
    H.append('.amdgcn_target "amdgcn-amd-amdhsa--gfx950"')
    H.append(".text"); H.append(f".globl {NAME}_kernel"); H.append(".p2align 8"); H.append(f".type {NAME}_kernel,@function")
    H.append(f"{NAME}_kernel:")

    VL = "v126"; VZ = "v127"
    TA, TB = "s68", "s69"
    def srd(d, lo, off, size):
        if off is None:
            k(f"s_mov_b32 s{d}, s{lo}\ns_mov_b32 s{d+1}, s{lo+1}")
        else:
            k(f"s_add_u32 s{d}, s{lo}, {off}\ns_addc_u32 s{d+1}, s{lo+1}, 0")
        k(f"s_mov_b32 s{d+2}, {size}\ns_mov_b32 s{d+3}, 0x20000")
    SX, SKV, SWA, SWS, SOUT = [f"s[{a}:{a+3}]" for a in (36, 40, 44, 56, 60)]

    def stamp(name):
        if not stamps or name not in stamps: return
        sl = stamps[name]
        k(f"s_memrealtime s[{96+2*sl}:{97+2*sl}]")
    def stamp_flush():
        if not stamps: return
        k(f"""s_waitcnt lgkmcnt(0)
s_mov_b64 exec, 1
s_lshl_b32 s76, s2, 9
s_lshl_b32 s77, s31, 5
s_add_u32 s76, s76, s77
s_add_u32 s76, s76, {STAMP_OFF}
s_add_u32 s76, s24, s76
s_addc_u32 s77, s25, 0
v_mov_b32 v0, s96
v_mov_b32 v1, s97
v_mov_b32 v2, s98
v_mov_b32 v3, s99
v_mov_b32 v4, s100
v_mov_b32 v5, s101
global_store_dwordx4 {VZ}, v[0:3], s[76:77]
global_store_dwordx2 {VZ}, v[4:5], s[76:77] offset:16""")

    def lds_wait(addr, val, vaddr=VZ, vt="v125"):
        lp = k.label("Lw"); dn = k.label("Ld")
        k(f"s_mov_b32 s72, {SPIN}")
        k(f"{lp}:")
        k(f"""ds_read_b32 {vt}, {vaddr} offset:{addr}
s_waitcnt lgkmcnt(0)
v_readfirstlane_b32 s73, {vt}
s_cmp_ge_u32 s73, {val}
s_cbranch_scc1 {dn}
s_sleep 1
s_sub_u32 s72, s72, 1
s_cmp_lg_u32 s72, 0
s_cbranch_scc1 {lp}""")
        k(f"{dn}:")
    def lds_inc(addr, vaddr=VZ, vt="v125"):
        k(f"""s_waitcnt lgkmcnt(0)
v_mov_b32 {vt}, 1
s_mov_b64 exec, 1
ds_add_u32 {vaddr}, {vt} offset:{addr}
s_mov_b64 exec, -1""")
    def rnd(dst, src):
        k(f"v_cvt_pk_bf16_f32 {dst}, {src}, {src}\nv_lshlrev_b32 {dst}, 16, {dst}")
    def row_reduce(op, v, steps=(8, 4, 2, 1)):
        for n in steps:
            k(f"{op}_dpp {v}, {v}, {v} row_ror:{n} row_mask:0xf bank_mask:0xf")
    def xrow_reduce(op, v, t, which=(16, 32)):
        for w in which:
            k(f"v_mov_b32 {t}, {v}\nv_permlane{w}_swap_b32 {v}, {t}\n{op} {v}, {v}, {t}")
    def perms(T, W, w):
        for p in range(4):
            k(f"v_perm_b32 v{T+p}, v{W+4*(2*p+1)+w}, v{W+4*(2*p)+w}, s34")
        for p in range(4):
            k(f"v_perm_b32 v{T+4+p}, v{W+4*(2*p+1)+w}, v{W+4*(2*p)+w}, s35")
    def mfma(D, A, B, C):
        c = "0" if C is None else f"v[{C}:{C+3}]"
        k(f"v_mfma_f32_16x16x32_bf16 v[{D}:{D+3}], v[{A}:{A+3}], v[{B}:{B+3}], {c}")
    def tagcheck(bases, acc, t1, t2):
        for n, r in enumerate(bases):
            k(f"v_xor_b32 {t1}, {TA}, v{r+1}\nv_xor_b32 {t2}, {TB}, v{r+3}")
            if n == 0: k(f"v_or_b32 {acc}, {t1}, {t2}")
            else: k(f"v_or3_b32 {acc}, {acc}, {t1}, {t2}")
        k(f"v_cmp_ne_u32 vcc, 0, {acc}")
    def gettags():
        k(f"""ds_read_b64 v[124:125], {VZ} offset:{L_TAG}
s_waitcnt lgkmcnt(0)
v_readfirstlane_b32 {TA}, v124
v_readfirstlane_b32 {TB}, v125""")
    def pairsum(G, D0, D1):
        k(f"""v_add_f32_dpp v{G}, v{D0+1}, v{D0} row_shl:8 row_mask:0xf bank_mask:0x3
v_add_f32_dpp v{G+2}, v{D1+1}, v{D1} row_shl:8 row_mask:0xf bank_mask:0x3
v_add_f32_dpp v{G}, v{D0+2}, v{D0+3} row_shr:8 row_mask:0xf bank_mask:0xc
v_add_f32_dpp v{G+2}, v{D1+2}, v{D1+3} row_shr:8 row_mask:0xf bank_mask:0xc""")
    def arow_addr(vd, vt, rowshift):
        k(f"""v_bfe_u32 {vd}, {VL}, 1, 3
v_lshlrev_b32 {vd}, {rowshift}, {vd}
v_and_b32 {vt}, 1, {VL}
v_lshl_add_u32 {vd}, {vt}, 4, {vd}
v_lshrrev_b32 {vt}, 4, {VL}
v_lshl_add_u32 {vd}, {vt}, 5, {vd}""")

    stamp("start")
    if dbgtime: k("s_memrealtime s[96:97]")
    k(f"""s_cmp_ge_u32 s2, 256
s_cbranch_scc1 L_end
s_load_dwordx16 s[4:19], s[0:1], 0
s_load_dwordx4 s[20:23], s[0:1], 64
s_load_dwordx2 s[24:25], s[0:1], 80
s_and_b32 s26, s2, 7
s_lshr_b32 s27, s2, 3
s_lshr_b32 s28, s27, 2
s_and_b32 s29, s27, 3
s_lshl_b32 s30, s26, 2
s_add_u32 s30, s30, s29
s_lshl_b32 s32, s28, 3
s_add_u32 s32, s32, s26
s_mov_b32 s34, 0x05040100
s_mov_b32 s35, 0x07060302
v_and_b32 {VL}, 63, v0
v_mov_b32 {VZ}, 0
v_lshrrev_b32 v1, 6, v0
v_lshlrev_b32 v2, 2, v0
v_readfirstlane_b32 s31, v1
v_cmp_gt_u32 vcc, {L_ZEND//4}, v0
s_and_saveexec_b64 s[70:71], vcc
ds_write_b32 v2, {VZ}
s_mov_b64 exec, s[70:71]
s_lshl_b32 s74, s28, 24
s_lshl_b32 s75, s26, 21
s_add_u32 s74, s74, s75
s_add_u32 s74, s74, {6144*256}
s_and_b32 s33, s31, 7
v_lshrrev_b32 v108, 4, {VL}
v_and_b32 v111, 7, {VL}
v_lshlrev_b32 v111, 4, v111
v_bfe_u32 v112, {VL}, 3, 1
v_lshlrev_b32 v112, 3, v112
v_lshl_add_u32 v112, v108, 4, v112
v_lshlrev_b32 v120, 4, {VL}
s_and_b32 s75, s33, 3
s_lshl_b32 s75, s75, 10
s_lshr_b32 s76, s33, 2
s_lshl_b32 s76, s76, 16
s_add_u32 s75, s75, s76
s_lshl_b32 s76, s29, 17
s_add_u32 s78, s75, s76
s_lshr_b32 s64, s28, 1
s_lshl_b32 s64, s64, 3
s_add_u32 s64, s64, s26
s_and_b32 s65, s28, 1
s_cmp_ge_u32 s64, 28
s_cselect_b32 s65, 2, s65
s_waitcnt lgkmcnt(0)""")
    if "noffn" in abl: k("s_mov_b32 s65, 2")
    k("s_cmp_lt_u32 s31, 8\ns_cbranch_scc1 L_kwave")
    k("s_setprio 3")
    srd(36, 4, None, 8192)
    k(f"""s_lshl_b32 s75, s33, 10
buffer_load_dwordx4 v[96:99], v120, {SX}, s75 offen
s_cmp_eq_u32 s33, 0
s_cbranch_scc1 L_setq
s_cmp_lg_u32 s33, 4
s_cbranch_scc1 L_nq1
s_cmp_lg_u32 s65, 0
s_cbranch_scc1 L_nopf""")
    srd(44, 16, None, 512 * 3584)
    k(f"""s_movk_i32 s77, 3584
s_mov_b32 s79, {57*3584}
s_mul_i32 s75, s29, {128*3584}
s_lshl_b32 s76, s64, 7
s_add_u32 s75, s75, s76
s_branch L_tload
L_setq:""")
    srd(44, 10, None, 4 << 20)
    k(f"""s_mov_b32 s76, {WS_E}
s_load_dword s68, s[24:25], s76
s_movk_i32 s77, 0x2000
s_mov_b32 s79, {57*8192}
s_lshl_b32 s75, s29, 20
s_lshl_b32 s76, s26, 10
s_add_u32 s75, s75, s76
s_lshl_b32 s76, s28, 7
s_add_u32 s75, s75, s76
L_tload:
v_mul_lo_u32 v121, v112, s77
v_add_u32 v121, v121, v111""")
    for ub in range(2):
        for t in range(8):
            r = 32 * ub + 4 * t
            k(f"buffer_load_dwordx4 v[{r}:{r+3}], v121, {SWA}, s75 offen{kvflag}")
            k("s_add_u32 s75, s75, s77" if t < 7 else "s_add_u32 s75, s75, s79")
    k(f"""s_barrier
s_cmp_lg_u32 s33, 0
s_cbranch_scc1 L_notag
s_waitcnt lgkmcnt(0)
s_add_u32 {TA}, {TA}, 1
s_mul_i32 {TB}, {TA}, 0x9e3779b1
s_xor_b32 {TB}, {TB}, 0x5bd1e995
v_mov_b32 v124, {TA}
v_mov_b32 v125, {TB}
ds_write_b64 {VZ}, v[124:125] offset:{L_TAG}
L_notag:
s_waitcnt vmcnt(16)
s_branch L_ln""")
    k("L_nq1:")
    k(f"""s_cmp_lt_u32 s33, 6
s_cbranch_scc1 L_nopf
s_getpc_b64 s[80:81]
L_pc:
s_sub_u32 s80, s80, L_pc-{NAME}_kernel
s_subb_u32 s81, s81, 0
s_mov_b32 s82, L_codeend-{NAME}_kernel
s_mov_b32 s83, 0x20000
s_lshl_b32 s75, s29, 1
s_add_u32 s75, s75, s33
s_sub_u32 s75, s75, 6
s_lshl_b32 s75, s75, 11
buffer_load_dwordx4 v[0:3], v120, s[80:83], s75 offen
buffer_load_dwordx4 v[0:3], v120, s[80:83], s75 offen offset:1024
s_barrier
s_waitcnt vmcnt(2)
s_branch L_ln
L_nopf:
s_barrier
s_waitcnt vmcnt(0)
s_branch L_ln""")

    k.flush()
    k("L_kwave:")
    srd(40, 6, "s74", 524288)
    k(f"""v_bfe_u32 v109, {VL}, 2, 2
v_and_b32 v110, 3, {VL}
v_lshlrev_b32 v121, 8, v109
v_lshl_add_u32 v121, v108, 6, v121
v_lshl_add_u32 v121, v110, 4, v121
s_movk_i32 s77, 0x1000
s_barrier""")
    for t in range(16):
        k(f"buffer_load_dwordx4 v[{4*t}:{4*t+3}], v121, {SKV}, s78 offen{kvflag}\ns_add_u32 s78, s78, s77")
    stamp("kissued")
    srd(56, 24, None, WS_SIZE)
    srd(36, 4, None, 8192)
    srd(60, 20, None, 8192)
    k(f"""v_lshlrev_b32 v113, 8, v110
v_lshl_add_u32 v113, v108, 6, v113
v_lshl_add_u32 v113, v109, 4, v113
v_lshlrev_b32 v114, 7, v110
v_lshl_add_u32 v114, v108, 5, v114
v_lshl_add_u32 v114, v109, 3, v114
s_lshl_b32 s76, s33, 9
v_add_u32 v114, s76, v114
v_bfe_u32 v116, {VL}, 2, 3
v_lshlrev_b32 v116, 5, v116
v_lshl_add_u32 v116, v110, 2, v116
s_lshl_b32 s76, s33, 5
v_lshlrev_b32 v117, 2, {VL}
v_add_u32 v117, s76, v117
s_lshl_b32 s76, s33, 2
v_mov_b32 v123, s76
v_mov_b32 v122, 0""")
    lds_wait(L_CNT_XN, 8)
    gettags()
    k(f"""s_cmp_ge_u32 s33, 4
s_cbranch_scc1 L_nog
s_and_b32 s77, s33, 1
s_lshl_b32 s84, s26, 12
s_lshl_b32 s76, s27, 7
s_add_u32 s79, s84, s76
s_lshl_b32 s76, s77, 11
s_lshl_b32 s77, s77, 9
s_cmp_ge_u32 s33, 2
s_cbranch_scc1 L_gh
s_add_u32 s79, s79, {WS_HQ}
s_lshl_b32 s75, s28, 15
s_add_u32 s75, s75, s84
s_mov_b32 s66, 262144
s_mov_b32 s67, 0xff800000
s_add_u32 s77, s77, {L_Q}
v_mov_b32 v122, {L_F_Q}
s_branch L_g
L_gh:
s_cmp_lg_u32 s65, 1
s_cbranch_scc1 L_nog
s_add_u32 s79, s79, {WS_HH}
s_lshl_b32 s75, s64, 14
s_add_u32 s75, s75, {WS_HP}
s_movk_i32 s66, 0x1000
s_mov_b32 s67, 0
s_add_u32 s77, s77, {L_HN}
v_mov_b32 v122, {L_F_HN}
L_g:
s_add_u32 s75, s75, s76
v_lshrrev_b32 v121, 5, {VL}
v_lshlrev_b32 v121, 7, v121
v_add3_u32 v121, v121, v111, s77
v_bfe_u32 v118, {VL}, 3, 2
v_lshl_add_u32 v121, v118, 2, v121
s_mov_b32 s72, {SPIN}""")
    if "noq" in abl: k("s_branch L_gskip")
    k(f"""L_fpoll:
s_load_dwordx16 s[4:19], s[24:25], s79 glc
s_load_dwordx16 s[80:95], s[24:25], s79 offset:64 glc
s_waitcnt lgkmcnt(0)
s_min_u32 s73, s4, s5
s_max_u32 s76, s4, s5""")
    for i in list(range(6, 20)) + list(range(80, 96)):
        k(f"s_min_u32 s73, s73, s{i}\ns_max_u32 s76, s76, s{i}")
    k(f"""s_xor_b32 s70, s73, s76
s_xor_b32 s73, s73, {TB}
s_xor_b32 s76, s76, {TB}
s_or_b32 s73, s73, s76
s_cmp_lt_u32 s73, 16
s_cbranch_scc1 L_fok
s_sleep 2
s_sub_u32 s72, s72, 1
s_cmp_lg_u32 s72, 0
s_cbranch_scc1 L_fpoll
s_mov_b32 s70, 1
L_fok:
s_cmp_lg_u32 s33, 0
s_cbranch_scc1 L_nomode
s_cmp_eq_u32 s70, 0
s_cselect_b32 s70, 1, 0
v_mov_b32 v118, s70
ds_write_b32 {VZ}, v118 offset:{L_MODE}
L_nomode:""")
    stamp("hint")
    k(f"""s_mov_b32 s72, {SPIN}
L_qpoll:
s_mov_b32 s76, s75""")
    for ks in range(4):
        k(f"""buffer_load_dwordx4 v[{64+8*ks}:{64+8*ks+3}], v120, {SWS}, s76 offen sc1
buffer_load_dwordx4 v[{64+8*ks+4}:{64+8*ks+7}], v120, {SWS}, s76 offen offset:1024 sc1
s_add_u32 s76, s76, s66""")
    k("s_waitcnt vmcnt(0)")
    tagcheck([64 + 4 * i for i in range(8)], "v96", "v97", "v98")
    k(f"""s_cbranch_vccz L_qok
s_sub_u32 s72, s72, 1
s_cmp_lg_u32 s72, 0
s_cbranch_scc1 L_qpoll
L_qok:""")
    for i in range(0, 8, 2):
        k(f"v_add_f32 v{64+i}, v{64+i}, v{72+i}\nv_add_f32 v{80+i}, v{80+i}, v{88+i}")
    for i in range(0, 8, 2):
        k(f"v_add_f32 v{64+i}, v{64+i}, v{80+i}")
    for i in range(0, 8, 2):
        k(f"v_max_f32 v{64+i}, s67, v{64+i}")
    k(f"""v_cvt_pk_bf16_f32 v96, v64, v66
v_cvt_pk_bf16_f32 v97, v68, v70
ds_write_b32 v121, v96
ds_write_b32 v121, v97 offset:256""")
    k("L_gskip:")
    lds_inc(0, vaddr="v122")
    k("L_nog:")
    lds_wait(L_F_Q, 2)
    k(f"ds_read_b128 v[96:99], v113 offset:{L_Q}\nds_read_b32 v118, {VZ} offset:{L_MODE}\ns_waitcnt vmcnt(0) lgkmcnt(0)\nv_readfirstlane_b32 s67, v118")
    stamp("qready")
    def Dreg(t): return 100 if t == 0 else 4 * (t - 1)
    def qk_step(t, i):
        D = Dreg(t); tb = t >> 2; R = 104 + (t & 3)
        qs = [q for q in range(4) if q != tb]
        q = qs[i]; n = (4 * (tb - q)) % 16
        src1 = f"v{D+tb}" if i == 0 else f"v{R}"
        k(f"v_add_f32_dpp v{R}, v{D+q}, {src1} row_ror:{n} row_mask:0xf bank_mask:{1 << tb:#x}")
    for t in range(16 + 5):
        if t < 16:
            mfma(Dreg(t), 4 * t, 96, None)
        for i in range(3):
            tt = t - 3 - i
            if 0 <= tt < 16: qk_step(tt, i)
    k(f"""s_mov_b32 s76, {SCALE:#x}
s_mov_b32 s77, {LOG2E:#x}
v_cvt_pk_bf16_f32 v0, v104, v105
v_cvt_pk_bf16_f32 v1, v106, v107
v_lshlrev_b32 v2, 16, v0
v_and_b32 v3, 0xffff0000, v0
v_lshlrev_b32 v4, 16, v1
v_and_b32 v5, 0xffff0000, v1
v_mul_f32 v2, s76, v2
v_mul_f32 v3, s76, v3
v_mul_f32 v4, s76, v4
v_mul_f32 v5, s76, v5
v_cvt_pk_bf16_f32 v0, v2, v3
v_cvt_pk_bf16_f32 v1, v4, v5
v_lshlrev_b32 v2, 16, v0
v_and_b32 v3, 0xffff0000, v0
v_lshlrev_b32 v4, 16, v1
v_and_b32 v5, 0xffff0000, v1
v_max3_f32 v6, v2, v3, v4
v_max_f32 v6, v6, v5""")
    row_reduce("v_max_f32", "v6", (4, 8))
    xrow_reduce("v_max_f32", "v6", "v7")
    k(f"""s_mov_b64 exec, 0xf
ds_write_b32 v117, v6 offset:{L_STAT}
s_mov_b64 exec, -1""")
    lds_inc(L_CNT_K)
    lds_wait(L_CNT_K, 8)
    k(f"ds_read_b32 v6, v116 offset:{L_STAT}\ns_waitcnt lgkmcnt(0)")
    row_reduce("v_max_f32", "v6", (4, 8))
    xrow_reduce("v_max_f32", "v6", "v7", (16,))
    for i in range(4): k(f"v_sub_f32 v{2+i}, v{2+i}, v6")
    for i in range(4): k(f"v_mul_f32 v{2+i}, s77, v{2+i}")
    for i in range(4): k(f"v_exp_f32 v{2+i}, v{2+i}")
    k(f"""v_cvt_pk_bf16_f32 v0, v2, v3
v_cvt_pk_bf16_f32 v1, v4, v5
ds_write_b64 v114, v[0:1] offset:{L_P}
v_add_f32 v8, v2, v3
v_add_f32 v9, v4, v5
v_add_f32 v8, v8, v9""")
    row_reduce("v_add_f32", "v8", (4, 8))
    xrow_reduce("v_add_f32", "v8", "v7")
    k(f"""v_mov_b32 v11, 1
s_mov_b64 exec, 0xf
ds_write_b32 v117, v8 offset:{L_STAT+16}
s_mov_b64 exec, -1
s_waitcnt lgkmcnt(0)
s_mov_b64 exec, 1
ds_write_b32 v123, v11 offset:{L_F_P}
ds_add_u32 {VZ}, v11 offset:{L_CNT_L}
s_mov_b64 exec, -1""")
    stamp("qkdone")
    k("s_cmp_lg_u32 s33, 6\ns_cbranch_scc1 L_nostat")
    lds_wait(L_CNT_L, 8)
    k(f"""ds_read_b32 v8, v116 offset:{L_STAT+16}
v_mov_b32 v7, {TA}
v_mov_b32 v9, {TB}
s_lshl_b32 s76, s32, 9
s_add_u32 s76, s76, {WS_ST}
s_lshl_b32 s75, s29, 4
s_add_u32 s76, s76, s75
v_lshlrev_b32 v10, 7, {VL}
s_waitcnt lgkmcnt(0)""")
    row_reduce("v_add_f32", "v8", (4, 8))
    xrow_reduce("v_add_f32", "v8", "v11", (16,))
    k(f"""s_mov_b64 exec, 0xf
buffer_store_dwordx4 v[6:9], v10, {SWS}, s76 offen sc1
s_mov_b64 exec, -1""")
    k("L_nostat:")
    k("s_cmp_ge_u32 s33, 4\ns_cbranch_scc1 L_nowo")
    k(f"""s_lshl_b32 s76, s33, 2
v_add_u32 v121, s76, v120""")
    lds_wait(L_CNT_WO, 2)
    for n in range(16):
        k(f"ds_read_b32 v{n}, v121 offset:{L_WT + 1024*n}")
    arow_addr("v121", "v118", 8)
    k(f"""v_lshrrev_b32 v122, 3, {VL}
v_lshlrev_b32 v122, 17, v122
v_add_u32 v122, v122, v111
s_lshl_b32 s86, s30, 12
s_lshl_b32 s76, s28, 9
s_add_u32 s86, s86, s76
s_lshl_b32 s76, s33, 7
s_add_u32 s86, s86, s76
s_add_u32 s86, s86, {WS_OA}
v_mov_b32 v113, {TA}
v_mov_b32 v115, {TB}
s_waitcnt lgkmcnt(0)""")
    for ub in range(2):
        for p in range(4):
            k(f"v_perm_b32 v{16+8*ub+p}, v{8*ub+2*p+1}, v{8*ub+2*p}, s34")
            k(f"v_perm_b32 v{16+8*ub+4+p}, v{8*ub+2*p+1}, v{8*ub+2*p}, s35")
    k("L_nowo:")
    def gather(vaddr, sbase, step, lab, d0, d1, partial):
        k(f"s_mov_b32 s72, {SPIN}")
        if partial:
            k(f"v_mov_b32 v44, 0\nv_mov_b32 v45, {TA}\nv_mov_b32 v46, 0\nv_mov_b32 v47, {TB}")
        def ld(m):
            if partial and m == 3: k("s_mov_b32 exec_hi, 0")
            k(f"s_add_u32 s85, {sbase}, {m*step}\nbuffer_load_dwordx4 v[{32+4*m}:{32+4*m+3}], {vaddr}, {SWS}, s85 offen sc1")
            if partial and m == 3: k("s_mov_b64 exec, -1")
        for m in range(4): ld(m)
        k(f"{lab}poll:\ns_waitcnt vmcnt(0)")
        for p in range(4):
            k(f"""v_xor_b32 v48, {TA}, v{32+4*p+1}
v_xor_b32 v49, {TB}, v{32+4*p+3}
v_or_b32 v48, v48, v49
v_cmp_ne_u32 s[{4+2*p}:{5+2*p}], 0, v48""")
        k(f"""s_or_b64 s[12:13], s[4:5], s[6:7]
s_or_b64 s[14:15], s[8:9], s[10:11]
s_or_b64 s[12:13], s[12:13], s[14:15]
s_cbranch_scc0 {lab}ok
s_sleep {psleep}""")
        for m in range(4):
            k(f"s_cmp_eq_u64 s[{4+2*m}:{5+2*m}], 0\ns_cbranch_scc1 {lab}s{m}")
            ld(m)
            k(f"{lab}s{m}:")
        k(f"""s_sub_u32 s72, s72, 1
s_cmp_lg_u32 s72, 0
s_cbranch_scc1 {lab}poll
{lab}ok:
v_add_f32 v32, v32, v36
v_add_f32 v34, v34, v38
v_add_f32 v40, v40, v44
v_add_f32 v42, v42, v46
v_add_f32 {d0}, v32, v40
v_add_f32 {d1}, v34, v42
v_add_f32_dpp {d0}, {d0}, {d0} row_ror:8 row_mask:0xf bank_mask:0xf
v_add_f32_dpp {d1}, {d1}, {d1} row_ror:8 row_mask:0xf bank_mask:0xf""")
        for w in (16, 32):
            k(f"""v_mov_b32 v48, {d0}
v_mov_b32 v49, {d1}
v_permlane{w}_swap_b32 {d0}, v48
v_permlane{w}_swap_b32 {d1}, v49
v_add_f32 {d0}, {d0}, v48
v_add_f32 {d1}, {d1}, v49""")
        k(f"""v_cvt_pk_bf16_f32 v48, {d0}, {d1}
v_lshlrev_b32 {d0}, 16, v48
v_and_b32 {d1}, 0xffff0000, v48""")
    k("s_cmp_lg_u32 s33, 7\ns_cbranch_scc1 L_nofin")
    k(f"""v_lshrrev_b32 v108, 3, {VL}
v_lshl_add_u32 v110, v108, 12, v111
v_lshl_add_u32 v112, v108, 15, v111
s_lshl_b32 s87, s28, 17
s_lshl_b32 s76, s30, 7
s_add_u32 s87, s87, s76
s_add_u32 s87, s87, {WS_OA}
s_lshl_b32 s84, s28, 12
s_add_u32 s84, s84, s76
s_add_u32 s84, s84, {WS_OB}
s_lshl_b32 s88, s28, 10
s_lshl_b32 s76, s26, 7
s_add_u32 s88, s88, s76
s_lshl_b32 s76, s29, 2
s_add_u32 s88, s88, s76
buffer_load_dword v20, v111, {SX}, s88 offen""")
    k("L_nofin:")
    k(f"""s_lshl_b32 s82, s33, 3
s_add_u32 s82, s82, s26
s_lshl_b32 s89, s82, 14
s_lshl_b32 s82, s82, 9
s_lshl_b32 s83, s29, 7
s_add_u32 s82, s82, s83
s_add_u32 s82, s82, {WS_ST}
s_lshl_b32 s83, s29, 10
s_add_u32 s89, s89, s83
s_add_u32 s89, s89, {WS_OX}
s_add_u32 s90, s89, 4096
s_add_u32 s91, s89, 8192
s_add_u32 s92, s89, 12288
s_nop 0""")
    k(f"""s_lshl_b32 s76, s33, 8
v_lshlrev_b32 v60, 3, {VL}
v_add_u32 v60, s76, v60
v_lshlrev_b32 v61, 1, v60
v_lshlrev_b32 v62, 2, {VL}
v_add_u32 v62, s76, v62
s_lshl_b32 s78, s32, 2
s_add_u32 s78, s78, s29
s_lshl_b32 s78, s78, 12
s_add_u32 s78, s78, {WS_OX}
v_mov_b32 v117, {TA}
v_mov_b32 v119, {TB}
s_mov_b32 s72, {SPIN}""")
    stamp("kready")
    k("s_barrier")
    stamp("bar2")
    if dbgtime: k("s_memrealtime s[100:101]")
    k(f"""s_mov_b32 exec_hi, 0
s_cmp_eq_u32 s67, 1
ds_read_b64 v[96:97], v60 offset:{L_OP}
ds_read_b64 v[98:99], v60 offset:{L_OP+2048}
ds_read_b64 v[100:101], v60 offset:{L_OP+4096}
ds_read_b64 v[102:103], v60 offset:{L_OP+6144}
s_waitcnt lgkmcnt(2)
v_add_f32 v96, v96, v98
v_add_f32 v97, v97, v99
s_waitcnt lgkmcnt(0)
v_add_f32 v100, v100, v102
v_add_f32 v101, v101, v103
v_add_f32 v116, v96, v100
v_add_f32 v118, v97, v101
s_cbranch_scc1 L_oxpl
buffer_store_dwordx4 v[116:119], v61, {SWS}, s78 offen sc1
s_branch L_oxst
L_oxpl:
buffer_store_dwordx4 v[116:119], v61, {SWS}, s78 offen
L_oxst:
s_mov_b64 exec, -1""")
    for p in range(4):
        k(f"buffer_load_dwordx4 v[{32+4*p}:{32+4*p+3}], v120, {SWS}, s{89+p} offen sc1")
    k(f"""s_mov_b32 s72, {SPIN}
L_stpoll:
s_load_dwordx16 s[4:19], s[24:25], s82 glc
s_waitcnt lgkmcnt(0)
s_mov_b32 s73, 0""")
    for p in range(4):
        k(f"""s_xor_b32 s83, s{4+4*p+1}, {TA}
s_or_b32 s73, s73, s83
s_xor_b32 s83, s{4+4*p+3}, {TB}
s_or_b32 s73, s73, s83""")
    k(f"""s_cmp_eq_u32 s73, 0
s_cbranch_scc1 L_stok
s_sleep 8
s_sub_u32 s72, s72, 1
s_cmp_lg_u32 s72, 0
s_cbranch_scc1 L_stpoll
L_stok:
v_mov_b32 v56, s4
v_max_f32 v56, s8, v56
v_max_f32 v56, s12, v56
v_max_f32 v56, s16, v56""")
    for p in range(4): k(f"v_sub_f32 v{52+p}, s{4+4*p}, v56")
    for p in range(4): k(f"v_mul_f32 v{52+p}, s77, v{52+p}")
    for p in range(4): k(f"v_exp_f32 v{52+p}, v{52+p}")
    k(f"""v_mul_f32 v56, s6, v52
v_fmac_f32 v56, s10, v53
v_fmac_f32 v56, s14, v54
v_fmac_f32 v56, s18, v55
v_rcp_f32 v56, v56""")
    for p in range(4): k(f"v_mul_f32 v{52+p}, v{52+p}, v56")
    k(f"s_mov_b32 s72, {SPIN}\nL_oxpoll:\ns_waitcnt vmcnt(0)\ns_mov_b32 s73, 0")
    for p in range(4):
        k(f"""v_xor_b32 v48, {TA}, v{32+4*p+1}
v_xor_b32 v49, {TB}, v{32+4*p+3}
v_or_b32 v48, v48, v49
v_cmp_ne_u32 s[{4+2*p}:{5+2*p}], 0, v48""")
    k("""s_or_b64 s[12:13], s[4:5], s[6:7]
s_or_b64 s[14:15], s[8:9], s[10:11]
s_or_b64 s[12:13], s[12:13], s[14:15]
s_cbranch_scc0 L_oxok""")
    k(f"s_sleep {psleep}")
    for p in range(4):
        k(f"""s_cmp_eq_u64 s[{4+2*p}:{5+2*p}], 0
s_cbranch_scc1 L_oxs{p}
buffer_load_dwordx4 v[{32+4*p}:{32+4*p+3}], v120, {SWS}, s{89+p} offen sc1
L_oxs{p}:""")
    k(f"""s_sub_u32 s72, s72, 1
s_cmp_lg_u32 s72, 0
s_cbranch_scc1 L_oxpoll
L_oxok:
v_mul_f32 v32, v32, v52
v_mul_f32 v34, v34, v52
v_mul_f32 v40, v40, v54
v_mul_f32 v42, v42, v54
v_fmac_f32 v32, v36, v53
v_fmac_f32 v34, v38, v53
v_fmac_f32 v40, v44, v55
v_fmac_f32 v42, v46, v55
v_add_f32 v32, v32, v40
v_add_f32 v34, v34, v42
v_cvt_pk_bf16_f32 v32, v32, v34
ds_write_b32 v62, v32 offset:{L_O16}
s_waitcnt lgkmcnt(0)
s_barrier""")
    stamp("bar3")
    k("s_cmp_ge_u32 s33, 4\ns_cbranch_scc1 L_notg2")
    k(f"""ds_read_b128 v[96:99], v121 offset:{L_O16}
ds_read_b128 v[100:103], v121 offset:{L_O16+128}
s_waitcnt lgkmcnt(1)""")
    mfma(104, 96, 16, None); mfma(108, 96, 20, None)
    k("s_waitcnt lgkmcnt(0)")
    mfma(104, 100, 24, 104); mfma(108, 100, 28, 108)
    pairsum(112, 104, 108)
    k(f"buffer_store_dwordx4 v[112:115], v122, {SWS}, s86 offen sc1")
    stamp("kend")
    stamp_flush()
    k("s_endpgm")
    k.flush()
    k("L_notg2:")
    k("s_cmp_eq_u32 s33, 7\ns_cbranch_scc1 L_final")
    stamp("kend")
    stamp_flush()
    k("s_endpgm")
    k.flush()
    k("L_final:")
    if "noffn" not in abl: gather("v112", "s84", 8 * 32768, "L_ob", "v22", "v23", True)
    k("v_and_b32 v21, 0xffff0000, v20\nv_lshlrev_b32 v20, 16, v20")
    gather("v110", "s87", 32768, "L_oa", "v24", "v25", False)
    k(f"""v_add_f32 v20, v20, v24
v_add_f32 v21, v21, v25
v_cvt_pk_bf16_f32 v16, v20, v21
v_lshlrev_b32 v20, 16, v16
v_and_b32 v21, 0xffff0000, v16
v_add_f32 v20, v20, v22
v_add_f32 v21, v21, v23
v_cvt_pk_bf16_f32 v20, v20, v21
s_mov_b64 exec, 0xff
buffer_store_dword v20, v111, {SOUT}, s88 offen
s_mov_b64 exec, -1""")
    stamp("kend")
    if dbgtime:
        k(f"""s_memrealtime s[98:99]
s_waitcnt lgkmcnt(0)
s_not_b32 s96, s96
v_mov_b32 v0, s96
v_mov_b32 v1, s98
v_mov_b32 v2, s100
s_mov_b64 exec, 1
global_atomic_umax {VZ}, v0, s[22:23]
global_atomic_umax {VZ}, v1, s[22:23] offset:4
global_atomic_umax {VZ}, v2, s[22:23] offset:8
s_mov_b64 exec, -1""")
    stamp_flush()
    k(f"""s_cmp_lg_u32 s2, 0
s_cbranch_scc1 L_end
v_mov_b32 v16, {TA}
s_mov_b32 s76, {WS_E}
s_mov_b64 exec, 1
buffer_store_dword v16, {VZ}, {SWS}, s76 offen
s_endpgm""")

    k.flush()
    k("L_ln:")
    for i in range(4):
        k(f"v_lshlrev_b32 v{100+2*i}, 16, v{96+i}\nv_and_b32 v{101+2*i}, 0xffff0000, v{96+i}")
    k("""v_add_f32 v96, v100, v101
v_add_f32 v97, v102, v103
v_add_f32 v98, v104, v105
v_add_f32 v99, v106, v107
v_add_f32 v96, v96, v97
v_add_f32 v98, v98, v99
v_add_f32 v96, v96, v98""")
    row_reduce("v_add_f32", "v96")
    xrow_reduce("v_add_f32", "v96", "v97")
    k("v_mul_f32 v96, 0x3b000000, v96")
    k("v_sub_f32 v98, v100, v96\nv_mul_f32 v97, v98, v98")
    for i in range(1, 8):
        k(f"v_sub_f32 v98, v{100+i}, v96\nv_fmac_f32 v97, v98, v98")
    row_reduce("v_add_f32", "v97")
    xrow_reduce("v_add_f32", "v97", "v98")
    k("v_mul_f32 v97, 0x3b000000, v97")
    rnd("v96", "v96"); rnd("v97", "v97")
    k("v_add_f32 v97, 0x3727c5ac, v97")
    rnd("v97", "v97")
    k("v_sqrt_f32 v97, v97")
    rnd("v97", "v97")
    k("v_rcp_f32 v98, v97")
    for i in range(0, 8, 2):
        a, b2 = 100 + i, 101 + i
        k(f"""v_sub_f32 v{a}, v{a}, v96
v_sub_f32 v{b2}, v{b2}, v96
v_cvt_pk_bf16_f32 v99, v{a}, v{b2}
v_lshlrev_b32 v{a}, 16, v99
v_and_b32 v{b2}, 0xffff0000, v99""")
    for i in range(8):
        a = 100 + i
        k(f"""v_mul_f32 v99, v{a}, v98
v_fma_f32 v{a}, -v99, v97, v{a}
v_fma_f32 v{a}, v{a}, v98, v99""")
    for i in range(4):
        k(f"v_cvt_pk_bf16_f32 v{96+i}, v{100+2*i}, v{101+2*i}")
    k(f"""s_lshl_b32 s75, s33, 10
v_add_u32 v122, s75, v120
ds_write_b128 v122, v[96:99] offset:{L_XN}""")
    lds_inc(L_CNT_XN)
    stamp("ln")
    srd(56, 24, None, WS_SIZE)
    srd(40, 8, "s74", 524288)
    k(f"""s_mov_b32 s66, 0
s_cmp_eq_u32 s33, 0
s_cbranch_scc1 L_tq
s_cmp_lt_u32 s33, 3
s_cbranch_scc1 L_f2l
s_cmp_eq_u32 s33, 3
s_cbranch_scc1 L_wol
s_cmp_eq_u32 s33, 5
s_cbranch_scc1 L_wol
s_cmp_lg_u32 s33, 4
s_cbranch_scc1 L_vload
s_cmp_lg_u32 s65, 0
s_cbranch_scc1 L_vload""")
    k(f"""v_lshrrev_b32 v121, 3, {VL}
v_lshlrev_b32 v123, 7, v121
v_lshlrev_b32 v121, 9, v121
v_lshrrev_b32 v122, 2, v111
v_add_u32 v123, v123, v122
s_lshl_b32 s75, s64, 2
s_add_u32 s75, s75, s29
s_lshl_b32 s75, s75, 12
s_add_u32 s75, s75, {WS_HP}
s_lshl_b32 s76, s26, 12
s_add_u32 s77, s28, 1
s_lshl_b32 s77, s77, 9
s_add_u32 s76, s76, s77
s_lshl_b32 s77, s29, 5
s_add_u32 s76, s76, s77
s_add_u32 s76, s76, {WS_HH}
s_branch L_tile
L_tq:
v_lshrrev_b32 v121, 3, {VL}
v_lshlrev_b32 v121, 15, v121
v_lshlrev_b32 v123, 7, {VL}
s_lshl_b32 s75, s29, 18
s_lshl_b32 s76, s26, 12
s_add_u32 s75, s75, s76
s_lshl_b32 s77, s28, 9
s_add_u32 s75, s75, s77
s_lshl_b32 s77, s27, 2
s_add_u32 s76, s76, s77
s_add_u32 s76, s76, {WS_HQ}
L_tile:
v_add_u32 v121, v111, v121""")
    arow_addr("v122", "v118", 10)
    k(f"""s_lshl_b32 s77, s29, 8
v_add_u32 v122, s77, v122""")
    lds_wait(L_CNT_XN, 8)
    k(f"""ds_read_b128 v[96:99], v122 offset:{L_XN}
ds_read_b128 v[100:103], v122 offset:{L_XN+128}""")
    gettags()
    for ub in range(2):
        k(f"s_waitcnt vmcnt({8 - 8*ub})")
        for w in range(4):
            T = 104 + 8 * (w & 1)
            perms(T, 32 * ub, w)
            mfma(64 + 8 * w, 96 + 4 * ub, T, None if ub == 0 else 64 + 8 * w)
            mfma(68 + 8 * w, 96 + 4 * ub, T + 4, None if ub == 0 else 68 + 8 * w)
    for w in range(4):
        k(f"v_mov_b32 v{4*w+1}, {TA}\nv_mov_b32 v{4*w+3}, {TB}")
    k(f"""s_getreg_b32 s77, hwreg(HW_REG_XCC_ID)
s_and_b32 s77, s77, 15
s_andn2_b32 s79, {TB}, 15
s_or_b32 s77, s77, s79
v_mov_b32 v118, s77""")
    for w in range(4):
        pairsum(4 * w, 64 + 8 * w, 68 + 8 * w)
    for w in range(4):
        k(f"buffer_store_dwordx4 v[{4*w}:{4*w+3}], v121, {SWS}, s75 offen offset:{128*w}{lst}")
    k(f"""s_mov_b32 exec_hi, 0
buffer_store_dword v118, v123, {SWS}, s76 offen sc1
s_mov_b64 exec, -1""")
    stamp("tpub")
    k("s_branch L_vload")
    k.flush()
    k("L_f2l:")
    k("s_cmp_lg_u32 s65, 1\ns_cbranch_scc1 L_vload")
    srd(44, 18, None, 1792 * 1024)
    k(f"""s_setprio 0
s_mov_b32 s66, 1
v_lshl_add_u32 v121, v112, 10, v111
s_lshl_b32 s75, s64, 16
s_lshl_b32 s76, s29, 8
s_add_u32 s75, s75, s76
s_sub_u32 s76, s33, 1
s_lshl_b32 s76, s76, 7
s_add_u32 s75, s75, s76
s_add_u32 s76, s75, 4096""")
    for t in range(8):
        k(f"buffer_load_dwordx4 v[{64+4*t}:{64+4*t+3}], v121, {SWA}, s{75 + t//4} offen offset:{(t%4)*1024}{kvflag}")
    k("s_branch L_vload")
    k.flush()
    k("L_wol:")
    srd(44, 12, None, 4 << 20)
    k(f"""s_setprio 0
s_mov_b32 s66, 2
v_bfe_u32 v121, {VL}, 3, 1
v_lshlrev_b32 v121, 6, v121
v_add_u32 v121, v121, v108
v_lshl_add_u32 v121, v121, 10, v111
s_lshr_b32 s77, s33, 2
s_lshl_b32 s75, s30, 17
s_lshl_b32 s76, s28, 7
s_add_u32 s75, s75, s76
s_lshl_b32 s76, s77, 12
s_add_u32 s75, s75, s76
s_lshl_b32 s77, s77, 13
s_add_u32 m0, s77, {L_WT}""")
    for t in range(8):
        k(f"buffer_load_dwordx4 v121, {SWA}, s75 offen{kvflag} lds\ns_add_u32 m0, m0, 0x400\ns_add_u32 s75, s75, 0x2000")
    k("L_vload:")
    k(f"""s_setprio 0
s_movk_i32 s77, 0x1000""")
    for t in range(16):
        k(f"buffer_load_dwordx4 v[{4*t}:{4*t+3}], v120, {SKV}, s78 offen{kvflag}\ns_add_u32 s78, s78, s77")
    stamp("vissued")
    k("""s_cmp_eq_u32 s66, 0
s_cbranch_scc1 L_noj
s_waitcnt vmcnt(16)
s_cmp_eq_u32 s66, 1
s_cbranch_scc1 L_f2""")
    lds_inc(L_CNT_WO)
    k("s_branch L_noj")
    k("L_f2:")
    arow_addr("v122", "v118", 7)
    k(f"""v_lshrrev_b32 v121, 3, {VL}
v_lshlrev_b32 v121, 12, v121
v_and_b32 v123, 7, {VL}
v_lshl_add_u32 v121, v123, 4, v121
s_lshl_b32 s75, s64, 15
s_lshl_b32 s76, s29, 10
s_add_u32 s75, s75, s76
s_sub_u32 s76, s33, 1
s_lshl_b32 s76, s76, 9
s_add_u32 s75, s75, s76
s_add_u32 s75, s75, {WS_OB}""")
    lds_wait(L_F_HN, 2)
    k(f"ds_read_b128 v[112:115], v122 offset:{L_HN}")
    gettags()
    k(f"s_setprio 3\nv_mov_b32 v117, {TA}\nv_mov_b32 v119, {TB}")
    for w in range(4):
        perms(96, 64, w)
        mfma(104, 112, 96, None)
        mfma(108, 112, 100, None)
        pairsum(116, 104, 108)
        k(f"buffer_store_dwordx4 v[116:119], v121, {SWS}, s75 offen offset:{128*w} sc1")
    k("s_setprio 0")
    stamp("tpub")
    k("L_noj:")
    k(f"""v_lshrrev_b32 v108, 4, {VL}
v_and_b32 v110, 3, {VL}
v_bfe_u32 v109, {VL}, 2, 2
v_lshlrev_b32 v122, 7, v110
v_lshl_add_u32 v122, v108, 5, v122
s_lshl_b32 s75, s33, 9
s_add_u32 s75, s75, {L_P}
v_add_u32 v122, s75, v122
v_mov_b32 v123, {L_ZERO}""")
    for dl in range(4):
        k(f"v_cmp_eq_u32 vcc, {dl}, v109\nv_cndmask_b32 v{112+dl}, v123, v122, vcc")
    k(f"""s_lshl_b32 s75, s33, 2
v_mov_b32 v123, s75
s_and_b32 s75, s33, 3
s_lshl_b32 s76, s75, 2
v_mov_b32 v121, s76
s_lshl_b32 s75, s75, 11
v_add_u32 v120, s75, v120
v_lshlrev_b32 v122, 2, {VL}
v_add_u32 v122, s75, v122""")
    lds_wait(L_F_P, 1, vaddr="v123")
    for ub in range(2):
        for dl in range(4):
            r = 64 + 16 * ub + 4 * dl
            k(f"ds_read_b128 v[{r}:{r+3}], v{112+dl} offset:{16*ub}")
    k("s_cmp_ge_u32 s33, 4\ns_cbranch_scc1 L_g3")
    for i in range(8): k(f"v_mov_b32 v{96+i}, 0")
    k("s_branch L_pv\nL_g3:")
    lds_wait(L_F_D, 1, vaddr="v121")
    k(f"""ds_read_b128 v[96:99], v120 offset:{L_DX}
ds_read_b128 v[100:103], v120 offset:{L_DX+1024}
L_pv:
s_waitcnt lgkmcnt(0)""")
    for ub in range(2):
        k(f"s_waitcnt vmcnt({8-8*ub})")
        if ub == 1: stamp("varr")
        for w in range(4):
            T = 104 + 8 * (w & 1)
            perms(T, 32 * ub, w)
            for hh in range(2):
                di = 2 * w + hh; x = di >> 2; dl = di & 3
                mfma(96 + 4 * x, 64 + 16 * ub + 4 * dl, T + 4 * hh, 96 + 4 * x)
    k("s_cmp_ge_u32 s33, 4\ns_cbranch_scc1 L_g3b")
    k(f"""ds_write_b128 v120, v[96:99] offset:{L_DX}
ds_write_b128 v120, v[100:103] offset:{L_DX+1024}""")
    lds_inc(L_F_D, vaddr="v121")
    stamp("pvdone")
    stamp_flush()
    k("s_endpgm")
    k.flush()
    k("L_g3b:")
    for x in range(2):
        for h in range(4):
            k(f"ds_write_b32 v122, v{96+4*x+h} offset:{L_OP + h*512 + x*256}")
    k("s_waitcnt lgkmcnt(0)")
    stamp("pvdone")
    k("s_barrier")
    stamp_flush()
    k("L_end:")
    k("s_endpgm")
    k("L_codeend:")

    T = []
    T.append('.section .rodata,"a"'); T.append(".p2align 6")
    T.append(f".amdhsa_kernel {NAME}_kernel")
    T.append("  .amdhsa_next_free_vgpr 128"); T.append("  .amdhsa_next_free_sgpr 102"); T.append("  .amdhsa_accum_offset 128")
    T.append("  .amdhsa_group_segment_fixed_size 0"); T.append("  .amdhsa_kernarg_size 88"); T.append("  .amdhsa_user_sgpr_count 2")
    T.append("  .amdhsa_user_sgpr_kernarg_segment_ptr 1"); T.append("  .amdhsa_system_sgpr_workgroup_id_x 1")
    T.append("  .amdhsa_float_denorm_mode_32 3")
    T.append(".end_amdhsa_kernel")
    open(fname, "w").write("\n".join(H) + "\n" + k.text() + "\n".join(T) + "\n")

SA = {"start": 0, "hint": 1, "qready": 2, "ln": 1, "tpub": 1, "vissued": 2}
SB = {"start": 0, "qkdone": 1, "kready": 2, "varr": 1, "pvdone": 2}
SC = {"start": 0, "bar2": 1, "kend": 2, "varr": 1, "pvdone": 2}
SE = {"start": 0, "bar3": 1, "kend": 2, "varr": 1, "pvdone": 2}
SD = {"start": 0, "kissued": 1, "qready": 2, "vissued": 1, "varr": 2}
if __name__ == "__main__":
    gen("k9.s")
    for n, S in (("sa", SA), ("sb", SB), ("sc", SC), ("sd", SD), ("se", SE)):
        gen(f"k9_{n}.s", stamps=S)
    gen("k9_ps1.s", psleep=1)
    gen("k9_ps1_sc.s", stamps=SC, psleep=1)
    gen("k9_lstplain.s", lst="")
```

```python
import sys, argparse
from asmlib import Asm
NAME = "parallel_sum__sliding_block_cached__dense_activation_relu__decode"

WS_QP = 0x000000
WS_OX = 0x080000
WS_OA = 0x100000
WS_OB = 0x180000
WS_HP = 0x1F0000
WS_ST = 0x228000
WS_HQ = 0x230000
WS_HH = 0x238000
WS_E  = 0x240000
WS_SIZE = 0x241000
STAMP_OFF = 256 << 20
L_CNT_XN = 0; L_MODE = 4; L_F_Q = 8; L_F_HN = 12; L_CNT_K = 16; L_CNT_L = 20; L_TAG = 24; L_F_P = 32
L_ZERO = 64; L_F_D = 96; L_CNT_WO = 112; L_ZEND = 128
L_STAT = 128; L_Q = 1024; L_HN = 2048; L_P = 3072; L_XN = 7168; L_OP = 15360; L_DX = L_OP + 8192; L_O16 = L_DX + 8192; L_WT = L_O16 + 2048; L_END = L_WT + 16384

LOG2E = 0x3fb8aa3b
SCALE = 0x3db504f3
SPIN = 1 << 16

def gen(fname, stamps=None, kvflag=" nt", psleep=2, abl=(), kfirst=0, lst=" sc1", tagmask=0xf):
    k = Asm()
    H = []
    H.append(open("cdna_kernels/%s.s.ref" % NAME).read().split("; Override launch")[0].rstrip("\n"))
    H.append(f"; @launch grid=(256,1,1) block=(1024,1,1) lds={L_END}")
    H.append('.amdgcn_target "amdgcn-amd-amdhsa--gfx950"')
    H.append(".text"); H.append(f".globl {NAME}_kernel"); H.append(".p2align 8"); H.append(f".type {NAME}_kernel,@function")
    H.append(f"{NAME}_kernel:")

    VL = "v126"; VZ = "v127"; VT = "v124"
    TA, TB = "s68", "s69"
    SM = "s3"
    def srd(d, lo, off, size):
        if off is None:
            k(f"s_mov_b32 s{d}, s{lo}\ns_mov_b32 s{d+1}, s{lo+1}")
        else:
            k(f"s_add_u32 s{d}, s{lo}, {off}\ns_addc_u32 s{d+1}, s{lo+1}, 0")
        k(f"s_mov_b32 s{d+2}, {size}\ns_mov_b32 s{d+3}, 0x20000")
    SX, SKV, SWA, SWS, SOUT = [f"s[{a}:{a+3}]" for a in (36, 40, 44, 56, 60)]

    def stamp(name):
        if not stamps or name not in stamps: return
        sl = stamps[name]
        k(f"s_memrealtime s[{96+2*sl}:{97+2*sl}]")
    def stamp_flush():
        if not stamps: return
        k(f"""s_waitcnt lgkmcnt(0)
s_mov_b64 exec, 1
s_lshl_b32 s76, s2, 9
s_lshl_b32 s77, s31, 5
s_add_u32 s76, s76, s77
s_add_u32 s76, s76, {STAMP_OFF}
s_add_u32 s76, s24, s76
s_addc_u32 s77, s25, 0
v_mov_b32 v0, s96
v_mov_b32 v1, s97
v_mov_b32 v2, s98
v_mov_b32 v3, s99
v_mov_b32 v4, s100
v_mov_b32 v5, s101
global_store_dwordx4 {VZ}, v[0:3], s[76:77]
global_store_dwordx2 {VZ}, v[4:5], s[76:77] offset:16""")

    def lds_wait(addr, val, vaddr=VZ, vt="v125"):
        lp = k.label("Lw"); dn = k.label("Ld")
        k(f"s_mov_b32 s72, {SPIN}")
        k(f"{lp}:")
        k(f"""ds_read_b32 {vt}, {vaddr} offset:{addr}
s_waitcnt lgkmcnt(0)
v_readfirstlane_b32 s73, {vt}
s_cmp_ge_u32 s73, {val}
s_cbranch_scc1 {dn}
s_sleep 1
s_sub_u32 s72, s72, 1
s_cmp_lg_u32 s72, 0
s_cbranch_scc1 {lp}""")
        k(f"{dn}:")
    def lds_inc(addr, vaddr=VZ, vt="v125"):
        k(f"""s_waitcnt lgkmcnt(0)
v_mov_b32 {vt}, 1
s_mov_b64 exec, 1
ds_add_u32 {vaddr}, {vt} offset:{addr}
s_mov_b64 exec, -1""")
    def rnd(dst, src):
        k(f"v_cvt_pk_bf16_f32 {dst}, {src}, {src}\nv_lshlrev_b32 {dst}, 16, {dst}")
    def row_reduce(op, v, steps=(8, 4, 2, 1)):
        for n in steps:
            k(f"{op}_dpp {v}, {v}, {v} row_ror:{n} row_mask:0xf bank_mask:0xf")
    def xrow_reduce(op, v, t, which=(16, 32)):
        for w in which:
            k(f"v_mov_b32 {t}, {v}\nv_permlane{w}_swap_b32 {v}, {t}\n{op} {v}, {v}, {t}")
    def perms(T, W, w):
        for p in range(4):
            k(f"v_perm_b32 v{T+p}, v{W+4*(2*p+1)+w}, v{W+4*(2*p)+w}, s34")
        for p in range(4):
            k(f"v_perm_b32 v{T+4+p}, v{W+4*(2*p+1)+w}, v{W+4*(2*p)+w}, s35")
    def mfma(D, A, B, C):
        c = "0" if C is None else f"v[{C}:{C+3}]"
        k(f"v_mfma_f32_16x16x32_bf16 v[{D}:{D+3}], v[{A}:{A+3}], v[{B}:{B+3}], {c}")
    def gettags():
        k(f"""ds_read_b64 v[124:125], {VZ} offset:{L_TAG}
s_waitcnt lgkmcnt(0)
v_readfirstlane_b32 {TA}, v124
v_readfirstlane_b32 {TB}, v125""")
    def settag(r):
        k(f"v_bfi_b32 v{r}, {SM}, {VT}, v{r}")
    def tagacc(regs, acc, t1, t2):
        regs = list(regs)
        k(f"v_xor_b32 {acc}, {TA}, v{regs[0]}\nv_xor_b32 {t1}, {TA}, v{regs[1]}\nv_or_b32 {acc}, {acc}, {t1}")
        for i in range(2, len(regs), 2):
            k(f"v_xor_b32 {t1}, {TA}, v{regs[i]}\nv_xor_b32 {t2}, {TA}, v{regs[i+1]}\nv_or3_b32 {acc}, {acc}, {t1}, {t2}")
        k(f"v_and_b32 {acc}, {SM}, {acc}")
    def pairsum(G0, G1, D0, D1):
        k(f"""v_add_f32_dpp v{G0}, v{D0+1}, v{D0} row_shl:8 row_mask:0xf bank_mask:0x3
v_add_f32_dpp v{G1}, v{D1+1}, v{D1} row_shl:8 row_mask:0xf bank_mask:0x3
v_add_f32_dpp v{G0}, v{D0+2}, v{D0+3} row_shr:8 row_mask:0xf bank_mask:0xc
v_add_f32_dpp v{G1}, v{D1+2}, v{D1+3} row_shr:8 row_mask:0xf bank_mask:0xc""")
        settag(G0); settag(G1)
    def arow_addr(vd, vt, rowshift):
        k(f"""v_bfe_u32 {vd}, {VL}, 1, 3
v_lshlrev_b32 {vd}, {rowshift}, {vd}
v_and_b32 {vt}, 1, {VL}
v_lshl_add_u32 {vd}, {vt}, 4, {vd}
v_lshrrev_b32 {vt}, 4, {VL}
v_lshl_add_u32 {vd}, {vt}, 5, {vd}""")
    def poll4(lab, ld, first=True):
        if first:
            for m in range(4): ld(m)
        k(f"s_mov_b32 s72, {SPIN}\n{lab}poll:\ns_waitcnt vmcnt(0)")
        for p in range(4):
            k(f"""v_xor_b32 v48, {TA}, v{32+2*p}
v_xor_b32 v49, {TA}, v{33+2*p}
v_or_b32 v48, v48, v49
v_and_b32 v48, {SM}, v48
v_cmp_ne_u32 s[{4+2*p}:{5+2*p}], 0, v48""")
        k(f"""s_or_b64 s[12:13], s[4:5], s[6:7]
s_or_b64 s[14:15], s[8:9], s[10:11]
s_or_b64 s[12:13], s[12:13], s[14:15]
s_cbranch_scc0 {lab}ok""")
        if psleep: k(f"s_sleep {psleep}")
        for m in range(4):
            k(f"s_cmp_eq_u64 s[{4+2*m}:{5+2*m}], 0\ns_cbranch_scc1 {lab}s{m}")
            ld(m)
            k(f"{lab}s{m}:")
        k(f"""s_sub_u32 s72, s72, 1
s_cmp_lg_u32 s72, 0
s_cbranch_scc1 {lab}poll
{lab}ok:""")

    stamp("start")
    k(f"""s_cmp_ge_u32 s2, 256
s_cbranch_scc1 L_end
s_load_dwordx16 s[4:19], s[0:1], 0
s_load_dwordx4 s[20:23], s[0:1], 64
s_load_dwordx2 s[24:25], s[0:1], 80
s_and_b32 s26, s2, 7
s_lshr_b32 s27, s2, 3
s_lshr_b32 s28, s27, 2
s_and_b32 s29, s27, 3
s_lshl_b32 s30, s26, 2
s_add_u32 s30, s30, s29
s_lshl_b32 s32, s28, 3
s_add_u32 s32, s32, s26
s_mov_b32 s34, 0x05040100
s_mov_b32 s35, 0x07060302
s_movk_i32 {SM}, {tagmask}
v_and_b32 {VL}, 63, v0
v_mov_b32 {VZ}, 0
v_lshrrev_b32 v1, 6, v0
v_lshlrev_b32 v2, 2, v0
v_readfirstlane_b32 s31, v1
v_cmp_gt_u32 vcc, {L_ZEND//4}, v0
s_and_saveexec_b64 s[70:71], vcc
ds_write_b32 v2, {VZ}
s_mov_b64 exec, s[70:71]
s_lshl_b32 s74, s28, 24
s_lshl_b32 s75, s26, 21
s_add_u32 s74, s74, s75
s_add_u32 s74, s74, {6144*256}
s_and_b32 s33, s31, 7
v_lshrrev_b32 v108, 4, {VL}
v_and_b32 v111, 7, {VL}
v_lshlrev_b32 v111, 4, v111
v_bfe_u32 v112, {VL}, 3, 1
v_lshlrev_b32 v112, 3, v112
v_lshl_add_u32 v112, v108, 4, v112
v_lshlrev_b32 v120, 4, {VL}
s_and_b32 s75, s33, 3
s_lshl_b32 s75, s75, 10
s_lshr_b32 s76, s33, 2
s_lshl_b32 s76, s76, 16
s_add_u32 s75, s75, s76
s_lshl_b32 s76, s29, 17
s_add_u32 s78, s75, s76
s_lshr_b32 s64, s28, 1
s_lshl_b32 s64, s64, 3
s_add_u32 s64, s64, s26
s_and_b32 s65, s28, 1
s_cmp_ge_u32 s64, 28
s_cselect_b32 s65, 2, s65
s_waitcnt lgkmcnt(0)""")
    if "noffn" in abl: k("s_mov_b32 s65, 2")
    k("s_cmp_lt_u32 s31, 8\ns_cbranch_scc1 L_kwave")
    k("s_setprio 3")
    srd(36, 4, None, 8192)
    k(f"""s_lshl_b32 s75, s33, 10
buffer_load_dwordx4 v[96:99], v120, {SX}, s75 offen
s_cmp_eq_u32 s33, 0
s_cbranch_scc1 L_setq
s_cmp_lg_u32 s33, 4
s_cbranch_scc1 L_nq1
s_cmp_lg_u32 s65, 0
s_cbranch_scc1 L_nopf""")
    srd(44, 16, None, 512 * 3584)
    k(f"""s_movk_i32 s77, 3584
s_mov_b32 s79, {57*3584}
s_mul_i32 s75, s29, {128*3584}
s_lshl_b32 s76, s64, 7
s_add_u32 s75, s75, s76
s_branch L_tload
L_setq:""")
    srd(44, 10, None, 4 << 20)
    k(f"""s_mov_b32 s76, {WS_E}
s_load_dword s68, s[24:25], s76
s_movk_i32 s77, 0x2000
s_mov_b32 s79, {57*8192}
s_lshl_b32 s75, s29, 20
s_lshl_b32 s76, s26, 10
s_add_u32 s75, s75, s76
s_lshl_b32 s76, s28, 7
s_add_u32 s75, s75, s76
L_tload:
v_mul_lo_u32 v121, v112, s77
v_add_u32 v121, v121, v111""")
    for ub in range(2):
        for t in range(8):
            r = 32 * ub + 4 * t
            k(f"buffer_load_dwordx4 v[{r}:{r+3}], v121, {SWA}, s75 offen{kvflag}")
            k("s_add_u32 s75, s75, s77" if t < 7 else "s_add_u32 s75, s75, s79")
    k(f"""s_barrier
s_cmp_lg_u32 s33, 0
s_cbranch_scc1 L_notag
s_waitcnt lgkmcnt(0)
s_add_u32 {TA}, {TA}, 1
s_mul_i32 {TB}, {TA}, 0x9e3779b1
s_xor_b32 {TB}, {TB}, 0x5bd1e995
v_mov_b32 v124, {TA}
v_mov_b32 v125, {TB}
ds_write_b64 {VZ}, v[124:125] offset:{L_TAG}
L_notag:
s_waitcnt vmcnt(16)
s_branch L_ln""")
    k("L_nq1:")
    k(f"""s_cmp_lt_u32 s33, 6
s_cbranch_scc1 L_nopf
s_getpc_b64 s[80:81]
L_pc:
s_sub_u32 s80, s80, L_pc-{NAME}_kernel
s_subb_u32 s81, s81, 0
s_mov_b32 s82, L_codeend-{NAME}_kernel
s_mov_b32 s83, 0x20000
s_lshl_b32 s75, s29, 1
s_add_u32 s75, s75, s33
s_sub_u32 s75, s75, 6
s_lshl_b32 s75, s75, 11
buffer_load_dwordx4 v[0:3], v120, s[80:83], s75 offen
buffer_load_dwordx4 v[0:3], v120, s[80:83], s75 offen offset:1024
s_barrier
s_waitcnt vmcnt(2)
s_branch L_ln
L_nopf:
s_barrier
s_waitcnt vmcnt(0)
s_branch L_ln""")

    k.flush()
    k("L_kwave:")
    srd(40, 6, "s74", 524288)
    k(f"""v_bfe_u32 v109, {VL}, 2, 2
v_and_b32 v110, 3, {VL}
v_lshlrev_b32 v121, 8, v109
v_lshl_add_u32 v121, v108, 6, v121
v_lshl_add_u32 v121, v110, 4, v121
s_movk_i32 s77, 0x1000""")
    for t in range(16):
        if t == kfirst: k("s_barrier")
        k(f"buffer_load_dwordx4 v[{4*t}:{4*t+3}], v121, {SKV}, s78 offen{kvflag}\ns_add_u32 s78, s78, s77")
    stamp("kissued")
    k("""s_and_b32 s76, s33, 6
s_cmp_lg_u32 s76, 2
s_cbranch_scc1 L_nowl""")
    srd(44, 12, None, 4 << 20)
    k(f"""s_and_b32 s77, s33, 1
v_bfe_u32 v121, {VL}, 3, 1
v_lshlrev_b32 v121, 6, v121
v_add_u32 v121, v121, v108
v_lshl_add_u32 v121, v121, 10, v111
s_lshl_b32 s75, s30, 17
s_lshl_b32 s76, s28, 7
s_add_u32 s75, s75, s76
s_lshl_b32 s76, s77, 12
s_add_u32 s75, s75, s76
s_lshl_b32 s77, s77, 13
s_add_u32 m0, s77, {L_WT}""")
    for t in range(8):
        k(f"buffer_load_dwordx4 v121, {SWA}, s75 offen{kvflag} lds\ns_add_u32 m0, m0, 0x400\ns_add_u32 s75, s75, 0x2000")
    k("L_nowl:")
    srd(56, 24, None, WS_SIZE)
    srd(36, 4, None, 8192)
    srd(60, 20, None, 8192)
    k(f"""v_lshlrev_b32 v113, 8, v110
v_lshl_add_u32 v113, v108, 6, v113
v_lshl_add_u32 v113, v109, 4, v113
v_lshlrev_b32 v114, 7, v110
v_lshl_add_u32 v114, v108, 5, v114
v_lshl_add_u32 v114, v109, 3, v114
s_lshl_b32 s76, s33, 9
v_add_u32 v114, s76, v114
v_bfe_u32 v116, {VL}, 2, 3
v_lshlrev_b32 v116, 5, v116
v_lshl_add_u32 v116, v110, 2, v116
s_lshl_b32 s76, s33, 5
v_lshlrev_b32 v117, 2, {VL}
v_add_u32 v117, s76, v117
s_lshl_b32 s76, s33, 2
v_mov_b32 v123, s76
v_mov_b32 v122, 0""")
    lds_wait(L_CNT_XN, 8)
    gettags()
    k(f"""s_cmp_ge_u32 s33, 2
s_cbranch_scc1 L_nog
s_lshl_b32 s84, s26, 12
s_lshl_b32 s76, s27, 7
s_add_u32 s79, s84, s76
s_cmp_eq_u32 s33, 1
s_cbranch_scc1 L_gh
s_add_u32 s79, s79, {WS_HQ}
s_lshl_b32 s75, s28, 14
s_lshl_b32 s76, s26, 11
s_add_u32 s75, s75, s76
s_mov_b32 s66, 131072
s_mov_b32 s67, 0xff800000
s_movk_i32 s77, {L_Q}
v_mov_b32 v122, {L_F_Q}
s_branch L_g
L_gh:
s_cmp_lg_u32 s65, 1
s_cbranch_scc1 L_nog
s_add_u32 s79, s79, {WS_HH}
s_lshl_b32 s75, s64, 13
s_add_u32 s75, s75, {WS_HP}
s_movk_i32 s66, 0x800
s_mov_b32 s67, 0
s_movk_i32 s77, {L_HN}
v_mov_b32 v122, {L_F_HN}
L_g:
v_lshlrev_b32 v121, 7, v108
v_add3_u32 v121, v121, v111, s77
v_bfe_u32 v118, {VL}, 3, 1
v_lshl_add_u32 v121, v118, 3, v121
s_mov_b32 s72, {SPIN}""")
    k(f"""L_fpoll:
s_load_dwordx16 s[4:19], s[24:25], s79 glc
s_load_dwordx16 s[80:95], s[24:25], s79 offset:64 glc
s_waitcnt lgkmcnt(0)
s_min_u32 s73, s4, s5
s_max_u32 s76, s4, s5""")
    for i in list(range(6, 20)) + list(range(80, 96)):
        k(f"s_min_u32 s73, s73, s{i}\ns_max_u32 s76, s76, s{i}")
    k(f"""s_xor_b32 s70, s73, s76
s_xor_b32 s73, s73, {TB}
s_xor_b32 s76, s76, {TB}
s_or_b32 s73, s73, s76
s_cmp_lt_u32 s73, 16
s_cbranch_scc1 L_fok
s_sleep 2
s_sub_u32 s72, s72, 1
s_cmp_lg_u32 s72, 0
s_cbranch_scc1 L_fpoll
s_mov_b32 s70, 1
L_fok:
s_cmp_lg_u32 s33, 0
s_cbranch_scc1 L_nomode
s_cmp_eq_u32 s70, 0
s_cselect_b32 s70, 1, 0
v_mov_b32 v118, s70
ds_write_b32 {VZ}, v118 offset:{L_MODE}
L_nomode:""")
    stamp("hint")
    k(f"""s_mov_b32 s72, {SPIN}
L_qpoll:
s_mov_b32 s76, s75""")
    for ks in range(4):
        k(f"""buffer_load_dwordx4 v[{64+8*ks}:{64+8*ks+3}], v120, {SWS}, s76 offen sc1
buffer_load_dwordx4 v[{64+8*ks+4}:{64+8*ks+7}], v120, {SWS}, s76 offen offset:1024 sc1
s_add_u32 s76, s76, s66""")
    k("s_waitcnt vmcnt(0)")
    tagacc(range(64, 96), "v96", "v97", "v98")
    k(f"""v_cmp_ne_u32 vcc, 0, v96
s_cbranch_vccz L_qok
s_sub_u32 s72, s72, 1
s_cmp_lg_u32 s72, 0
s_cbranch_scc1 L_qpoll
L_qok:""")
    for i in range(8):
        k(f"v_add_f32 v{64+i}, v{64+i}, v{72+i}\nv_add_f32 v{80+i}, v{80+i}, v{88+i}")
    for i in range(8):
        k(f"v_add_f32 v{64+i}, v{64+i}, v{80+i}")
    for i in range(8):
        k(f"v_max_f32 v{64+i}, s67, v{64+i}")
    for i in range(4):
        k(f"v_cvt_pk_bf16_f32 v{96+i}, v{64+2*i}, v{65+2*i}")
    k(f"""ds_write_b64 v121, v[96:97]
ds_write_b64 v121, v[98:99] offset:512""")
    lds_inc(0, vaddr="v122")
    k("L_nog:")
    lds_wait(L_F_Q, 1)
    k(f"ds_read_b128 v[96:99], v113 offset:{L_Q}\nds_read_b32 v118, {VZ} offset:{L_MODE}\ns_waitcnt vmcnt(0) lgkmcnt(0)\nv_readfirstlane_b32 s67, v118")
    stamp("qready")
    def Dreg(t): return 100 if t == 0 else 4 * (t - 1)
    def qk_step(t, i):
        D = Dreg(t); tb = t >> 2; R = 104 + (t & 3)
        qs = [q for q in range(4) if q != tb]
        q = qs[i]; n = (4 * (tb - q)) % 16
        src1 = f"v{D+tb}" if i == 0 else f"v{R}"
        k(f"v_add_f32_dpp v{R}, v{D+q}, {src1} row_ror:{n} row_mask:0xf bank_mask:{1 << tb:#x}")
    for t in range(16 + 5):
        if t < 16:
            mfma(Dreg(t), 4 * t, 96, None)
        for i in range(3):
            tt = t - 3 - i
            if 0 <= tt < 16: qk_step(tt, i)
    k(f"""s_mov_b32 s76, {SCALE:#x}
s_mov_b32 s77, {LOG2E:#x}
v_cvt_pk_bf16_f32 v0, v104, v105
v_cvt_pk_bf16_f32 v1, v106, v107
v_lshlrev_b32 v2, 16, v0
v_and_b32 v3, 0xffff0000, v0
v_lshlrev_b32 v4, 16, v1
v_and_b32 v5, 0xffff0000, v1
v_mul_f32 v2, s76, v2
v_mul_f32 v3, s76, v3
v_mul_f32 v4, s76, v4
v_mul_f32 v5, s76, v5
v_cvt_pk_bf16_f32 v0, v2, v3
v_cvt_pk_bf16_f32 v1, v4, v5
v_lshlrev_b32 v2, 16, v0
v_and_b32 v3, 0xffff0000, v0
v_lshlrev_b32 v4, 16, v1
v_and_b32 v5, 0xffff0000, v1
v_max3_f32 v6, v2, v3, v4
v_max_f32 v6, v6, v5""")
    row_reduce("v_max_f32", "v6", (4, 8))
    xrow_reduce("v_max_f32", "v6", "v7")
    k(f"""s_mov_b64 exec, 0xf
ds_write_b32 v117, v6 offset:{L_STAT}
s_mov_b64 exec, -1""")
    lds_inc(L_CNT_K)
    lds_wait(L_CNT_K, 8)
    k(f"ds_read_b32 v6, v116 offset:{L_STAT}\ns_waitcnt lgkmcnt(0)")
    row_reduce("v_max_f32", "v6", (4, 8))
    xrow_reduce("v_max_f32", "v6", "v7", (16,))
    for i in range(4): k(f"v_sub_f32 v{2+i}, v{2+i}, v6")
    for i in range(4): k(f"v_mul_f32 v{2+i}, s77, v{2+i}")
    for i in range(4): k(f"v_exp_f32 v{2+i}, v{2+i}")
    k(f"""v_cvt_pk_bf16_f32 v0, v2, v3
v_cvt_pk_bf16_f32 v1, v4, v5
ds_write_b64 v114, v[0:1] offset:{L_P}
v_add_f32 v8, v2, v3
v_add_f32 v9, v4, v5
v_add_f32 v8, v8, v9""")
    row_reduce("v_add_f32", "v8", (4, 8))
    xrow_reduce("v_add_f32", "v8", "v7")
    k(f"""v_mov_b32 v11, 1
s_mov_b64 exec, 0xf
ds_write_b32 v117, v8 offset:{L_STAT+16}
s_mov_b64 exec, -1
s_waitcnt lgkmcnt(0)
s_mov_b64 exec, 1
ds_write_b32 v123, v11 offset:{L_F_P}
ds_add_u32 {VZ}, v11 offset:{L_CNT_L}
s_mov_b64 exec, -1""")
    stamp("qkdone")
    k("s_cmp_lg_u32 s33, 6\ns_cbranch_scc1 L_nostat")
    lds_wait(L_CNT_L, 8)
    k(f"""ds_read_b32 v8, v116 offset:{L_STAT+16}
v_mov_b32 v7, {TA}
v_mov_b32 v9, {TB}
s_lshl_b32 s76, s32, 9
s_add_u32 s76, s76, {WS_ST}
s_lshl_b32 s75, s29, 4
s_add_u32 s76, s76, s75
v_lshlrev_b32 v10, 7, {VL}
s_waitcnt lgkmcnt(0)""")
    row_reduce("v_add_f32", "v8", (4, 8))
    xrow_reduce("v_add_f32", "v8", "v11", (16,))
    k(f"""s_mov_b64 exec, 0xf
buffer_store_dwordx4 v[6:9], v10, {SWS}, s76 offen sc1
s_mov_b64 exec, -1""")
    k("L_nostat:")
    k("s_cmp_ge_u32 s33, 4\ns_cbranch_scc1 L_nowo")
    k(f"""s_lshl_b32 s76, s33, 2
v_add_u32 v121, s76, v120""")
    for n in range(16):
        k(f"ds_read_b32 v{n}, v121 offset:{L_WT + 1024*n}")
    arow_addr("v121", "v118", 8)
    k(f"""v_lshrrev_b32 v122, 3, {VL}
v_lshlrev_b32 v122, 16, v122
v_lshrrev_b32 v118, 1, v111
v_add_u32 v122, v122, v118
s_lshl_b32 s86, s30, 11
s_lshl_b32 s76, s28, 8
s_add_u32 s86, s86, s76
s_lshl_b32 s76, s33, 6
s_add_u32 s86, s86, s76
s_add_u32 s86, s86, {WS_OA}
s_waitcnt lgkmcnt(0)""")
    for ub in range(2):
        for p in range(4):
            k(f"v_perm_b32 v{16+8*ub+p}, v{8*ub+2*p+1}, v{8*ub+2*p}, s34")
            k(f"v_perm_b32 v{16+8*ub+4+p}, v{8*ub+2*p+1}, v{8*ub+2*p}, s35")
    k("L_nowo:")
    k("s_cmp_lg_u32 s33, 7\ns_cbranch_scc1 L_nofin")
    k(f"""v_lshrrev_b32 v108, 3, {VL}
v_lshrrev_b32 v118, 1, v111
v_lshl_add_u32 v110, v108, 11, v118
v_lshl_add_u32 v112, v108, 14, v118
s_lshl_b32 s87, s28, 16
s_lshl_b32 s76, s30, 6
s_add_u32 s87, s87, s76
s_add_u32 s87, s87, {WS_OA}
s_lshl_b32 s84, s28, 11
s_add_u32 s84, s84, s76
s_add_u32 s84, s84, {WS_OB}
s_lshl_b32 s88, s28, 10
s_lshl_b32 s76, s26, 7
s_add_u32 s88, s88, s76
s_lshl_b32 s76, s29, 2
s_add_u32 s88, s88, s76
buffer_load_dword v20, v111, {SX}, s88 offen""")
    k("L_nofin:")
    k("v_and_b32 v123, 12, v123")
    lds_wait(L_F_D, 1, vaddr="v123")
    k(f"""s_lshl_b32 s82, s33, 3
s_add_u32 s82, s82, s26
s_lshl_b32 s89, s82, 13
s_lshl_b32 s82, s82, 9
s_lshl_b32 s83, s29, 7
s_add_u32 s82, s82, s83
s_add_u32 s82, s82, {WS_ST}
s_lshl_b32 s83, s29, 9
s_add_u32 s89, s89, s83
s_add_u32 s89, s89, {WS_OX}
s_add_u32 s90, s89, 4096
s_mov_b32 s72, {SPIN}
L_stpoll:
s_load_dwordx16 s[4:19], s[24:25], s82 glc
s_waitcnt lgkmcnt(0)
s_mov_b32 s73, 0""")
    for p in range(4):
        k(f"""s_xor_b32 s83, s{4+4*p+1}, {TA}
s_or_b32 s73, s73, s83
s_xor_b32 s83, s{4+4*p+3}, {TB}
s_or_b32 s73, s73, s83""")
    k(f"""s_cmp_eq_u32 s73, 0
s_cbranch_scc1 L_stok
s_sleep 12
s_sub_u32 s72, s72, 1
s_cmp_lg_u32 s72, 0
s_cbranch_scc1 L_stpoll
L_stok:
v_mov_b32 v56, s4
v_max_f32 v56, s8, v56
v_max_f32 v56, s12, v56
v_max_f32 v56, s16, v56""")
    for p in range(4): k(f"v_sub_f32 v{52+p}, s{4+4*p}, v56")
    for p in range(4): k(f"v_mul_f32 v{52+p}, s77, v{52+p}")
    for p in range(4): k(f"v_exp_f32 v{52+p}, v{52+p}")
    k(f"""v_mul_f32 v56, s6, v52
v_fmac_f32 v56, s10, v53
v_fmac_f32 v56, s14, v54
v_fmac_f32 v56, s18, v55
v_rcp_f32 v56, v56""")
    for p in range(4): k(f"v_mul_f32 v{52+p}, v{52+p}, v56")
    k(f"""s_lshl_b32 s76, s33, 8
v_lshlrev_b32 v62, 2, {VL}
v_add_u32 v62, s76, v62
v_lshlrev_b32 v61, 3, {VL}
s_lshl_b32 s78, s32, 2
s_add_u32 s78, s78, s29
s_lshl_b32 s78, s78, 11
s_add_u32 s78, s78, {WS_OX}
s_cmp_eq_u32 s67, 1""")
    stamp("kready")
    k("s_barrier")
    stamp("bar2")
    k(f"""ds_read_b32 v96, v62 offset:{L_OP}
ds_read_b32 v97, v62 offset:{L_OP+2048}
ds_read_b32 v98, v62 offset:{L_OP+4096}
ds_read_b32 v99, v62 offset:{L_OP+6144}
s_waitcnt lgkmcnt(2)
v_add_f32 v96, v96, v97
s_waitcnt lgkmcnt(0)
v_add_f32 v98, v98, v99
v_add_f32 v96, v96, v98""")
    settag(96)
    k(f"""s_cbranch_scc1 L_oxpl
buffer_store_dword v96, v62, {SWS}, s78 offen sc1
s_branch L_oxst
L_oxpl:
buffer_store_dword v96, v62, {SWS}, s78 offen
L_oxst:""")
    poll4("L_ox", lambda m: k(f"buffer_load_dwordx2 v[{32+2*m}:{33+2*m}], v61, {SWS}, s{89 + m//2} offen offset:{2048*(m%2)} sc1"))
    k(f"""v_mul_f32 v32, v32, v52
v_mul_f32 v33, v33, v52
v_mul_f32 v36, v36, v54
v_mul_f32 v37, v37, v54
v_fmac_f32 v32, v34, v53
v_fmac_f32 v33, v35, v53
v_fmac_f32 v36, v38, v55
v_fmac_f32 v37, v39, v55
v_add_f32 v32, v32, v36
v_add_f32 v33, v33, v37
v_cvt_pk_bf16_f32 v32, v32, v33
ds_write_b32 v62, v32 offset:{L_O16}
s_waitcnt lgkmcnt(0)
s_barrier""")
    stamp("bar3")
    k("s_cmp_ge_u32 s33, 4\ns_cbranch_scc1 L_notg2")
    k(f"""ds_read_b128 v[96:99], v121 offset:{L_O16}
ds_read_b128 v[100:103], v121 offset:{L_O16+128}
s_waitcnt lgkmcnt(1)""")
    mfma(104, 96, 16, None); mfma(108, 96, 20, None)
    k("s_waitcnt lgkmcnt(0)")
    mfma(104, 100, 24, 104); mfma(108, 100, 28, 108)
    pairsum(112, 113, 104, 108)
    k(f"buffer_store_dwordx2 v[112:113], v122, {SWS}, s86 offen sc1")
    stamp("kend")
    stamp_flush()
    k("s_endpgm")
    k.flush()
    k("L_notg2:")
    k("s_cmp_eq_u32 s33, 7\ns_cbranch_scc1 L_final")
    stamp("kend")
    stamp_flush()
    k("s_endpgm")
    k.flush()
    k("L_final:")
    def gather(vaddr, sbase, step, lab, d0, d1, partial):
        if partial:
            k(f"v_and_b32 v38, {SM}, {VT}\nv_and_b32 v39, {SM}, {VT}")
        def ld(m):
            if partial and m == 3: k("s_mov_b32 exec_hi, 0")
            k(f"s_add_u32 s85, {sbase}, {m*step}\nbuffer_load_dwordx2 v[{32+2*m}:{33+2*m}], {vaddr}, {SWS}, s85 offen sc1")
            if partial and m == 3: k("s_mov_b64 exec, -1")
        poll4(lab, ld)
        k(f"""v_add_f32 v32, v32, v34
v_add_f32 v33, v33, v35
v_add_f32 v36, v36, v38
v_add_f32 v37, v37, v39
v_add_f32 {d0}, v32, v36
v_add_f32 {d1}, v33, v37
v_add_f32_dpp {d0}, {d0}, {d0} row_ror:8 row_mask:0xf bank_mask:0xf
v_add_f32_dpp {d1}, {d1}, {d1} row_ror:8 row_mask:0xf bank_mask:0xf""")
        for w in (16, 32):
            k(f"""v_mov_b32 v48, {d0}
v_mov_b32 v49, {d1}
v_permlane{w}_swap_b32 {d0}, v48
v_permlane{w}_swap_b32 {d1}, v49
v_add_f32 {d0}, {d0}, v48
v_add_f32 {d1}, {d1}, v49""")
        k(f"""v_cvt_pk_bf16_f32 v48, {d0}, {d1}
v_lshlrev_b32 {d0}, 16, v48
v_and_b32 {d1}, 0xffff0000, v48""")
    if "noffn" not in abl: gather("v112", "s84", 8 * 16384, "L_ob", "v22", "v23", True)
    k("v_and_b32 v21, 0xffff0000, v20\nv_lshlrev_b32 v20, 16, v20")
    gather("v110", "s87", 16384, "L_oa", "v24", "v25", False)
    k(f"""v_add_f32 v20, v20, v24
v_add_f32 v21, v21, v25
v_cvt_pk_bf16_f32 v16, v20, v21
v_lshlrev_b32 v20, 16, v16
v_and_b32 v21, 0xffff0000, v16
v_add_f32 v20, v20, v22
v_add_f32 v21, v21, v23
v_cvt_pk_bf16_f32 v20, v20, v21
s_mov_b64 exec, 0xff
buffer_store_dword v20, v111, {SOUT}, s88 offen
s_mov_b64 exec, -1""")
    stamp("kend")
    stamp_flush()
    k(f"""s_cmp_lg_u32 s2, 0
s_cbranch_scc1 L_end
s_mov_b32 s76, {WS_E}
s_mov_b64 exec, 1
buffer_store_dword {VT}, {VZ}, {SWS}, s76 offen
s_endpgm""")

    k.flush()
    k("L_ln:")
    for i in range(4):
        k(f"v_lshlrev_b32 v{100+2*i}, 16, v{96+i}\nv_and_b32 v{101+2*i}, 0xffff0000, v{96+i}")
    k("""v_add_f32 v96, v100, v101
v_add_f32 v97, v102, v103
v_add_f32 v98, v104, v105
v_add_f32 v99, v106, v107
v_add_f32 v96, v96, v97
v_add_f32 v98, v98, v99
v_add_f32 v96, v96, v98""")
    row_reduce("v_add_f32", "v96")
    xrow_reduce("v_add_f32", "v96", "v97")
    k("v_mul_f32 v96, 0x3b000000, v96")
    k("v_sub_f32 v98, v100, v96\nv_mul_f32 v97, v98, v98")
    for i in range(1, 8):
        k(f"v_sub_f32 v98, v{100+i}, v96\nv_fmac_f32 v97, v98, v98")
    row_reduce("v_add_f32", "v97")
    xrow_reduce("v_add_f32", "v97", "v98")
    k("v_mul_f32 v97, 0x3b000000, v97")
    rnd("v96", "v96"); rnd("v97", "v97")
    k("v_add_f32 v97, 0x3727c5ac, v97")
    rnd("v97", "v97")
    k("v_sqrt_f32 v97, v97")
    rnd("v97", "v97")
    k("v_rcp_f32 v98, v97")
    for i in range(0, 8, 2):
        a, b2 = 100 + i, 101 + i
        k(f"""v_sub_f32 v{a}, v{a}, v96
v_sub_f32 v{b2}, v{b2}, v96
v_cvt_pk_bf16_f32 v99, v{a}, v{b2}
v_lshlrev_b32 v{a}, 16, v99
v_and_b32 v{b2}, 0xffff0000, v99""")
    for i in range(8):
        a = 100 + i
        k(f"""v_mul_f32 v99, v{a}, v98
v_fma_f32 v{a}, -v99, v97, v{a}
v_fma_f32 v{a}, v{a}, v98, v99""")
    for i in range(4):
        k(f"v_cvt_pk_bf16_f32 v{96+i}, v{100+2*i}, v{101+2*i}")
    k(f"""s_lshl_b32 s75, s33, 10
v_add_u32 v122, s75, v120
ds_write_b128 v122, v[96:99] offset:{L_XN}""")
    lds_inc(L_CNT_XN)
    stamp("ln")
    srd(56, 24, None, WS_SIZE)
    srd(40, 8, "s74", 524288)
    k(f"""s_mov_b32 s66, 0
s_cmp_eq_u32 s33, 0
s_cbranch_scc1 L_tq
s_cmp_lt_u32 s33, 3
s_cbranch_scc1 L_f2l
s_cmp_lg_u32 s33, 4
s_cbranch_scc1 L_vload
s_cmp_lg_u32 s65, 0
s_cbranch_scc1 L_vload""")
    k(f"""v_lshrrev_b32 v121, 3, {VL}
v_lshlrev_b32 v123, 7, v121
v_lshlrev_b32 v121, 8, v121
v_lshrrev_b32 v122, 2, v111
v_add_u32 v123, v123, v122
s_lshl_b32 s75, s64, 2
s_add_u32 s75, s75, s29
s_lshl_b32 s75, s75, 11
s_add_u32 s75, s75, {WS_HP}
s_lshl_b32 s76, s26, 12
s_add_u32 s77, s28, 1
s_lshl_b32 s77, s77, 9
s_add_u32 s76, s76, s77
s_lshl_b32 s77, s29, 5
s_add_u32 s76, s76, s77
s_add_u32 s76, s76, {WS_HH}
s_branch L_tile
L_tq:
v_lshrrev_b32 v121, 3, {VL}
v_lshlrev_b32 v121, 14, v121
v_lshlrev_b32 v123, 7, {VL}
s_lshl_b32 s75, s29, 17
s_lshl_b32 s76, s26, 11
s_add_u32 s75, s75, s76
s_lshl_b32 s77, s28, 8
s_add_u32 s75, s75, s77
s_lshl_b32 s76, s26, 12
s_lshl_b32 s77, s27, 2
s_add_u32 s76, s76, s77
s_add_u32 s76, s76, {WS_HQ}
L_tile:
v_add_u32 v121, v111, v121""")
    arow_addr("v122", "v118", 10)
    k(f"""s_lshl_b32 s77, s29, 8
v_add_u32 v122, s77, v122""")
    lds_wait(L_CNT_XN, 8)
    k(f"""ds_read_b128 v[96:99], v122 offset:{L_XN}
ds_read_b128 v[100:103], v122 offset:{L_XN+128}""")
    gettags()
    k(f"""s_getreg_b32 s77, hwreg(HW_REG_XCC_ID)
s_and_b32 s77, s77, 15
s_andn2_b32 s79, {TB}, 15
s_or_b32 s77, s77, s79
v_mov_b32 v122, s77""")
    for ub in range(2):
        k(f"s_waitcnt vmcnt({8 - 8*ub})")
        for w in range(4):
            T = 104 + 8 * (w & 1)
            perms(T, 32 * ub, w)
            mfma(64 + 8 * w, 96 + 4 * ub, T, None if ub == 0 else 64 + 8 * w)
            mfma(68 + 8 * w, 96 + 4 * ub, T + 4, None if ub == 0 else 68 + 8 * w)
    for w in range(4):
        pairsum(2 * w, 2 * w + 1, 64 + 8 * w, 68 + 8 * w)
    k(f"""buffer_store_dwordx4 v[0:3], v121, {SWS}, s75 offen{lst}
buffer_store_dwordx4 v[4:7], v121, {SWS}, s75 offen offset:128{lst}
s_mov_b32 exec_hi, 0
buffer_store_dword v122, v123, {SWS}, s76 offen sc1
s_mov_b64 exec, -1""")
    stamp("tpub")
    k("s_branch L_vload")
    k.flush()
    k("L_f2l:")
    k("s_cmp_lg_u32 s65, 1\ns_cbranch_scc1 L_vload")
    srd(44, 18, None, 1792 * 1024)
    k(f"""s_setprio 0
s_mov_b32 s66, 1
v_lshl_add_u32 v121, v112, 10, v111
s_lshl_b32 s75, s64, 16
s_lshl_b32 s76, s29, 8
s_add_u32 s75, s75, s76
s_sub_u32 s76, s33, 1
s_lshl_b32 s76, s76, 7
s_add_u32 s75, s75, s76
s_add_u32 s76, s75, 4096""")
    for t in range(8):
        k(f"buffer_load_dwordx4 v[{64+4*t}:{64+4*t+3}], v121, {SWA}, s{75 + t//4} offen offset:{(t%4)*1024}{kvflag}")
    k("s_branch L_vload")
    k.flush()
    k("L_vload:")
    k(f"""s_setprio 0
s_movk_i32 s77, 0x1000""")
    for t in range(16):
        k(f"buffer_load_dwordx4 v[{4*t}:{4*t+3}], v120, {SKV}, s78 offen{kvflag}\ns_add_u32 s78, s78, s77")
    stamp("vissued")
    k("""s_cmp_eq_u32 s66, 0
s_cbranch_scc1 L_noj
s_waitcnt vmcnt(16)""")
    k("L_f2:")
    arow_addr("v122", "v118", 7)
    k(f"""v_lshrrev_b32 v121, 3, {VL}
v_lshlrev_b32 v121, 11, v121
v_and_b32 v123, 7, {VL}
v_lshl_add_u32 v121, v123, 3, v121
s_lshl_b32 s75, s64, 14
s_lshl_b32 s76, s29, 9
s_add_u32 s75, s75, s76
s_sub_u32 s76, s33, 1
s_lshl_b32 s76, s76, 8
s_add_u32 s75, s75, s76
s_add_u32 s75, s75, {WS_OB}""")
    lds_wait(L_F_HN, 1)
    k(f"ds_read_b128 v[112:115], v122 offset:{L_HN}")
    gettags()
    k("s_setprio 3")
    for w in range(4):
        G = 116 + 2 * (w & 1)
        perms(96, 64, w)
        mfma(104, 112, 96, None)
        mfma(108, 112, 100, None)
        pairsum(G, G + 1, 104, 108)
        k(f"buffer_store_dwordx2 v[{G}:{G+1}], v121, {SWS}, s75 offen offset:{64*w} sc1")
    k("s_setprio 0")
    stamp("tpub")
    k("L_noj:")
    k(f"""v_lshrrev_b32 v108, 4, {VL}
v_and_b32 v110, 3, {VL}
v_bfe_u32 v109, {VL}, 2, 2
v_lshlrev_b32 v122, 7, v110
v_lshl_add_u32 v122, v108, 5, v122
s_lshl_b32 s75, s33, 9
s_add_u32 s75, s75, {L_P}
v_add_u32 v122, s75, v122
v_mov_b32 v123, {L_ZERO}""")
    for dl in range(4):
        k(f"v_cmp_eq_u32 vcc, {dl}, v109\nv_cndmask_b32 v{112+dl}, v123, v122, vcc")
    k(f"""s_lshl_b32 s75, s33, 2
v_mov_b32 v123, s75
s_and_b32 s75, s33, 3
s_lshl_b32 s76, s75, 2
v_mov_b32 v121, s76
s_lshl_b32 s75, s75, 11
v_add_u32 v120, s75, v120
v_lshlrev_b32 v122, 2, {VL}
v_add_u32 v122, s75, v122""")
    lds_wait(L_F_P, 1, vaddr="v123")
    for ub in range(2):
        for dl in range(4):
            r = 64 + 16 * ub + 4 * dl
            k(f"ds_read_b128 v[{r}:{r+3}], v{112+dl} offset:{16*ub}")
    k("s_cmp_ge_u32 s33, 4\ns_cbranch_scc1 L_g3")
    for i in range(8): k(f"v_mov_b32 v{96+i}, 0")
    k("s_branch L_pv\nL_g3:")
    lds_wait(L_F_D, 1, vaddr="v121")
    k(f"""ds_read_b128 v[96:99], v120 offset:{L_DX}
ds_read_b128 v[100:103], v120 offset:{L_DX+1024}
L_pv:
s_waitcnt lgkmcnt(0)
s_waitcnt vmcnt(8)""")
    for w in range(4):
        T = 104 + 8 * (w & 1)
        perms(T, 0, w)
        for hh in range(2):
            di = 2 * w + hh; x = di >> 2; dl = di & 3
            mfma(96 + 4 * x, 64 + 4 * dl, T + 4 * hh, 96 + 4 * x)
    for p in range(4):
        k(f"s_waitcnt vmcnt({6 - 2*p})")
        if p == 3: stamp("varr")
        for w in range(4):
            k(f"v_perm_b32 v{8*w+p}, v{32+4*(2*p+1)+w}, v{32+4*(2*p)+w}, s34")
            k(f"v_perm_b32 v{8*w+4+p}, v{32+4*(2*p+1)+w}, v{32+4*(2*p)+w}, s35")
            if p == 3 and w >= 1:
                di = 2 * (w - 1)
                for d in (di, di + 1):
                    mfma(96 + 4 * (d >> 2), 80 + 4 * (d & 3), 4 * d, 96 + 4 * (d >> 2))
    for d in (6, 7):
        mfma(96 + 4 * (d >> 2), 80 + 4 * (d & 3), 4 * d, 96 + 4 * (d >> 2))
    k("s_cmp_ge_u32 s33, 4\ns_cbranch_scc1 L_g3b")
    k(f"""ds_write_b128 v120, v[96:99] offset:{L_DX}
ds_write_b128 v120, v[100:103] offset:{L_DX+1024}""")
    lds_inc(L_F_D, vaddr="v121")
    stamp("pvdone")
    stamp_flush()
    k("s_endpgm")
    k.flush()
    k("L_g3b:")
    for x in range(2):
        for h in range(4):
            k(f"ds_write_b32 v122, v{96+4*x+h} offset:{L_OP + h*512 + x*256}")
    k("s_waitcnt lgkmcnt(0)")
    stamp("pvdone")
    k("s_barrier")
    stamp_flush()
    k("L_end:")
    k("s_endpgm")
    k("L_codeend:")

    T = []
    T.append('.section .rodata,"a"'); T.append(".p2align 6")
    T.append(f".amdhsa_kernel {NAME}_kernel")
    T.append("  .amdhsa_next_free_vgpr 128"); T.append("  .amdhsa_next_free_sgpr 102"); T.append("  .amdhsa_accum_offset 128")
    T.append("  .amdhsa_group_segment_fixed_size 0"); T.append("  .amdhsa_kernarg_size 88"); T.append("  .amdhsa_user_sgpr_count 2")
    T.append("  .amdhsa_user_sgpr_kernarg_segment_ptr 1"); T.append("  .amdhsa_system_sgpr_workgroup_id_x 1")
    T.append("  .amdhsa_float_denorm_mode_32 3")
    T.append(".end_amdhsa_kernel")
    open(fname, "w").write("\n".join(H) + "\n" + k.text() + "\n".join(T) + "\n")

SA = {"start": 0, "hint": 1, "qready": 2, "ln": 1, "tpub": 1, "vissued": 2}
SB = {"start": 0, "qkdone": 1, "kready": 2, "varr": 1, "pvdone": 2}
SC = {"start": 0, "bar2": 1, "kend": 2, "varr": 1, "pvdone": 2}
SE = {"start": 0, "bar3": 1, "kend": 2, "varr": 1, "pvdone": 2}
SD = {"start": 0, "kissued": 1, "qready": 2, "vissued": 1, "varr": 2}
if __name__ == "__main__":
    gen("k11.s")
    for n, S in (("sa", SA), ("sb", SB), ("sc", SC), ("sd", SD), ("se", SE)):
        gen(f"k11_{n}.s", stamps=S)
    gen("k11_kf1_sc.s", stamps=SC, kfirst=1)
    gen("k11_kf2_sc.s", stamps=SC, kfirst=2)
    gen("k11_kf4_sc.s", stamps=SC, kfirst=4)
    gen("k11_lp_sc.s", stamps=SC, lst="")
```

```python
import sys, argparse
from asmlib import Asm
NAME = "parallel_sum__sliding_block_cached__dense_activation_relu__decode"

WS_QP = 0x000000
WS_OX = 0x080000
WS_OA = 0x100000
WS_OB = 0x180000
WS_HP = 0x1F0000
WS_ST = 0x228000
WS_HQ = 0x230000
WS_HH = 0x238000
WS_E  = 0x240000
WS_SIZE = 0x241000
STAMP_OFF = 256 << 20
L_CNT_XN = 0; L_MODE = 4; L_F_Q = 8; L_F_HN = 12; L_CNT_K = 16; L_CNT_L = 20; L_TAG = 24; L_F_P = 32
L_ZERO = 64; L_F_D = 96; L_CNT_WO = 112; L_ZEND = 128
L_STAT = 128; L_Q = 1024; L_HN = 2048; L_P = 3072; L_XN = 7168; L_OP = 15360; L_DX = L_OP + 8192; L_O16 = L_DX + 8192; L_WT = L_O16 + 2048; L_END = L_WT + 16384

LOG2E = 0x3fb8aa3b
SCALE = 0x3db504f3
SPIN = 1 << 16

def gen(fname, stamps=None, kvflag=" nt", psleep=2, abl=(), kfirst=0, lst=" sc1", tagmask=0xf, rxor=0, qx=0, ox=0, qrot=0, ffnmap="old", fx=0):
    k = Asm()
    H = []
    H.append(open("cdna_kernels/%s.s.ref" % NAME).read().split("; Override launch")[0].rstrip("\n"))
    H.append(f"; @launch grid=(256,1,1) block=(1024,1,1) lds={L_END}")
    H.append('.amdgcn_target "amdgcn-amd-amdhsa--gfx950"')
    H.append(".text"); H.append(f".globl {NAME}_kernel"); H.append(".p2align 8"); H.append(f".type {NAME}_kernel,@function")
    H.append(f"{NAME}_kernel:")

    VL = "v126"; VZ = "v127"; VT = "v124"
    TA, TB = "s68", "s69"
    SM = "s3"
    def srd(d, lo, off, size):
        if off is None:
            k(f"s_mov_b32 s{d}, s{lo}\ns_mov_b32 s{d+1}, s{lo+1}")
        else:
            k(f"s_add_u32 s{d}, s{lo}, {off}\ns_addc_u32 s{d+1}, s{lo+1}, 0")
        k(f"s_mov_b32 s{d+2}, {size}\ns_mov_b32 s{d+3}, 0x20000")
    SX, SKV, SWA, SWS, SOUT = [f"s[{a}:{a+3}]" for a in (36, 40, 44, 56, 60)]

    def stamp(name):
        if not stamps or name not in stamps: return
        sl = stamps[name]
        k(f"s_memrealtime s[{96+2*sl}:{97+2*sl}]")
    def stamp_flush():
        if not stamps: return
        k(f"""s_waitcnt lgkmcnt(0)
s_mov_b64 exec, 1
s_lshl_b32 s76, s2, 9
s_lshl_b32 s77, s31, 5
s_add_u32 s76, s76, s77
s_add_u32 s76, s76, {STAMP_OFF}
s_add_u32 s76, s24, s76
s_addc_u32 s77, s25, 0
v_mov_b32 v0, s96
v_mov_b32 v1, s97
v_mov_b32 v2, s98
v_mov_b32 v3, s99
v_mov_b32 v4, s100
v_mov_b32 v5, s101
global_store_dwordx4 {VZ}, v[0:3], s[76:77]
global_store_dwordx2 {VZ}, v[4:5], s[76:77] offset:16""")

    def lds_wait(addr, val, vaddr=VZ, vt="v125"):
        lp = k.label("Lw"); dn = k.label("Ld")
        k(f"s_mov_b32 s72, {SPIN}")
        k(f"{lp}:")
        k(f"""ds_read_b32 {vt}, {vaddr} offset:{addr}
s_waitcnt lgkmcnt(0)
v_readfirstlane_b32 s73, {vt}
s_cmp_ge_u32 s73, {val}
s_cbranch_scc1 {dn}
s_sleep 1
s_sub_u32 s72, s72, 1
s_cmp_lg_u32 s72, 0
s_cbranch_scc1 {lp}""")
        k(f"{dn}:")
    def lds_inc(addr, vaddr=VZ, vt="v125"):
        k(f"""s_waitcnt lgkmcnt(0)
v_mov_b32 {vt}, 1
s_mov_b64 exec, 1
ds_add_u32 {vaddr}, {vt} offset:{addr}
s_mov_b64 exec, -1""")
    def rnd(dst, src):
        k(f"v_cvt_pk_bf16_f32 {dst}, {src}, {src}\nv_lshlrev_b32 {dst}, 16, {dst}")
    def row_reduce(op, v, steps=(8, 4, 2, 1)):
        for n in steps:
            k(f"{op}_dpp {v}, {v}, {v} row_ror:{n} row_mask:0xf bank_mask:0xf")
    def xrow_reduce(op, v, t, which=(16, 32)):
        for w in which:
            k(f"v_mov_b32 {t}, {v}\nv_permlane{w}_swap_b32 {v}, {t}\n{op} {v}, {v}, {t}")
    def perms(T, W, w):
        for p in range(4):
            k(f"v_perm_b32 v{T+p}, v{W+4*(2*p+1)+w}, v{W+4*(2*p)+w}, s34")
        for p in range(4):
            k(f"v_perm_b32 v{T+4+p}, v{W+4*(2*p+1)+w}, v{W+4*(2*p)+w}, s35")
    def mfma(D, A, B, C):
        c = "0" if C is None else f"v[{C}:{C+3}]"
        k(f"v_mfma_f32_16x16x32_bf16 v[{D}:{D+3}], v[{A}:{A+3}], v[{B}:{B+3}], {c}")
    def gettags():
        k(f"""ds_read_b64 v[124:125], {VZ} offset:{L_TAG}
s_waitcnt lgkmcnt(0)
v_readfirstlane_b32 {TA}, v124
v_readfirstlane_b32 {TB}, v125""")
    def settag(r):
        k(f"v_bfi_b32 v{r}, {SM}, {VT}, v{r}")
    def tagacc(regs, acc, t1, t2):
        regs = list(regs)
        k(f"v_xor_b32 {acc}, {TA}, v{regs[0]}\nv_xor_b32 {t1}, {TA}, v{regs[1]}\nv_or_b32 {acc}, {acc}, {t1}")
        for i in range(2, len(regs), 2):
            k(f"v_xor_b32 {t1}, {TA}, v{regs[i]}\nv_xor_b32 {t2}, {TA}, v{regs[i+1]}\nv_or3_b32 {acc}, {acc}, {t1}, {t2}")
        k(f"v_and_b32 {acc}, {SM}, {acc}")
    def pairsum(G0, G1, D0, D1):
        k(f"""v_add_f32_dpp v{G0}, v{D0+1}, v{D0} row_shl:8 row_mask:0xf bank_mask:0x3
v_add_f32_dpp v{G1}, v{D1+1}, v{D1} row_shl:8 row_mask:0xf bank_mask:0x3
v_add_f32_dpp v{G0}, v{D0+2}, v{D0+3} row_shr:8 row_mask:0xf bank_mask:0xc
v_add_f32_dpp v{G1}, v{D1+2}, v{D1+3} row_shr:8 row_mask:0xf bank_mask:0xc""")
        settag(G0); settag(G1)
    def arow_addr(vd, vt, rowshift):
        k(f"""v_bfe_u32 {vd}, {VL}, 1, 3
v_lshlrev_b32 {vd}, {rowshift}, {vd}
v_and_b32 {vt}, 1, {VL}
v_lshl_add_u32 {vd}, {vt}, 4, {vd}
v_lshrrev_b32 {vt}, 4, {VL}
v_lshl_add_u32 {vd}, {vt}, 5, {vd}""")
    def poll4(lab, ld, first=True):
        if first:
            for m in range(4): ld(m)
        k(f"s_mov_b32 s72, {SPIN}\n{lab}poll:\ns_waitcnt vmcnt(0)")
        for p in range(4):
            k(f"""v_xor_b32 v48, {TA}, v{32+2*p}
v_xor_b32 v49, {TA}, v{33+2*p}
v_or_b32 v48, v48, v49
v_and_b32 v48, {SM}, v48
v_cmp_ne_u32 s[{4+2*p}:{5+2*p}], 0, v48""")
        k(f"""s_or_b64 s[12:13], s[4:5], s[6:7]
s_or_b64 s[14:15], s[8:9], s[10:11]
s_or_b64 s[12:13], s[12:13], s[14:15]
s_cbranch_scc0 {lab}ok""")
        if psleep: k(f"s_sleep {psleep}")
        for m in range(4):
            k(f"s_cmp_eq_u64 s[{4+2*m}:{5+2*m}], 0\ns_cbranch_scc1 {lab}s{m}")
            ld(m)
            k(f"{lab}s{m}:")
        k(f"""s_sub_u32 s72, s72, 1
s_cmp_lg_u32 s72, 0
s_cbranch_scc1 {lab}poll
{lab}ok:""")

    stamp("start")
    k(f"""s_cmp_ge_u32 s2, 256
s_cbranch_scc1 L_end
s_load_dwordx16 s[4:19], s[0:1], 0
s_load_dwordx4 s[20:23], s[0:1], 64
s_load_dwordx2 s[24:25], s[0:1], 80
s_and_b32 s26, s2, 7
s_lshr_b32 s27, s2, 3
s_xor_b32 s27, s27, {rxor}
s_lshr_b32 s28, s27, 2
s_and_b32 s29, s27, 3
s_lshl_b32 s30, s26, 2
s_add_u32 s30, s30, s29
s_lshl_b32 s32, s28, 3
s_add_u32 s32, s32, s26
s_mov_b32 s34, 0x05040100
s_mov_b32 s35, 0x07060302
s_movk_i32 {SM}, {tagmask}
v_and_b32 {VL}, 63, v0
v_mov_b32 {VZ}, 0
v_lshrrev_b32 v1, 6, v0
v_lshlrev_b32 v2, 2, v0
v_readfirstlane_b32 s31, v1
v_cmp_gt_u32 vcc, {L_ZEND//4}, v0
s_and_saveexec_b64 s[70:71], vcc
ds_write_b32 v2, {VZ}
s_mov_b64 exec, s[70:71]
s_lshl_b32 s74, s28, 24
s_lshl_b32 s75, s26, 21
s_add_u32 s74, s74, s75
s_add_u32 s74, s74, {6144*256}
s_and_b32 s33, s31, 7
v_lshrrev_b32 v108, 4, {VL}
v_and_b32 v111, 7, {VL}
v_lshlrev_b32 v111, 4, v111
v_bfe_u32 v112, {VL}, 3, 1
v_lshlrev_b32 v112, 3, v112
v_lshl_add_u32 v112, v108, 4, v112
v_lshlrev_b32 v120, 4, {VL}
s_and_b32 s75, s33, 3
s_lshl_b32 s75, s75, 10
s_lshr_b32 s76, s33, 2
s_lshl_b32 s76, s76, 16
s_add_u32 s75, s75, s76
s_lshl_b32 s76, s29, 17
s_add_u32 s78, s75, s76
s_mul_i32 s50, s28, {qrot}
s_add_u32 s50, s50, s26
s_and_b32 s50, s50, 7
s_xor_b32 s48, s28, {qx}
s_xor_b32 s49, s28, {ox}
s_nop 0""")
    if ffnmap == "old":
        k("""s_lshr_b32 s64, s28, 1
s_lshl_b32 s64, s64, 3
s_add_u32 s64, s64, s26
s_and_b32 s65, s28, 1
s_add_u32 s65, s65, 1
s_cmp_ge_u32 s64, 28
s_cselect_b32 s65, 0, s65
s_add_u32 s51, s28, 1""")
    else:
        k(f"""s_lshr_b32 s64, s26, 1
s_mul_i32 s64, s64, 7
s_xor_b32 s51, s28, {fx}
s_add_u32 s64, s64, s51
s_cmp_eq_u32 s51, 7
s_cselect_b32 s65, 0, 3
s_and_b32 s51, s26, 1
s_cmp_eq_u32 s51, {0 if ffnmap == "even" else 1}
s_cselect_b32 s65, s65, 0
s_mov_b32 s51, s28""")
    k("s_waitcnt lgkmcnt(0)")
    if "noffn" in abl: k("s_mov_b32 s65, 0")
    k("s_cmp_lt_u32 s31, 8\ns_cbranch_scc1 L_kwave")
    k("s_setprio 3")
    srd(36, 4, None, 8192)
    k(f"""s_lshl_b32 s75, s33, 10
buffer_load_dwordx4 v[96:99], v120, {SX}, s75 offen
s_cmp_eq_u32 s33, 0
s_cbranch_scc1 L_setq
s_cmp_lg_u32 s33, 4
s_cbranch_scc1 L_nq1
s_bitcmp0_b32 s65, 0
s_cbranch_scc1 L_nopf""")
    srd(44, 16, None, 512 * 3584)
    k(f"""s_movk_i32 s77, 3584
s_mov_b32 s79, {57*3584}
s_mul_i32 s75, s29, {128*3584}
s_lshl_b32 s76, s64, 7
s_add_u32 s75, s75, s76
s_branch L_tload
L_setq:""")
    srd(44, 10, None, 4 << 20)
    k(f"""s_mov_b32 s76, {WS_E}
s_load_dword s68, s[24:25], s76
s_movk_i32 s77, 0x2000
s_mov_b32 s79, {57*8192}
s_lshl_b32 s75, s29, 20
s_lshl_b32 s76, s50, 10
s_add_u32 s75, s75, s76
s_lshl_b32 s76, s48, 7
s_add_u32 s75, s75, s76
L_tload:
v_mul_lo_u32 v121, v112, s77
v_add_u32 v121, v121, v111""")
    for ub in range(2):
        for t in range(8):
            r = 32 * ub + 4 * t
            k(f"buffer_load_dwordx4 v[{r}:{r+3}], v121, {SWA}, s75 offen{kvflag}")
            k("s_add_u32 s75, s75, s77" if t < 7 else "s_add_u32 s75, s75, s79")
    k(f"""s_barrier
s_cmp_lg_u32 s33, 0
s_cbranch_scc1 L_notag
s_waitcnt lgkmcnt(0)
s_add_u32 {TA}, {TA}, 1
s_mul_i32 {TB}, {TA}, 0x9e3779b1
s_xor_b32 {TB}, {TB}, 0x5bd1e995
v_mov_b32 v124, {TA}
v_mov_b32 v125, {TB}
ds_write_b64 {VZ}, v[124:125] offset:{L_TAG}
L_notag:
s_waitcnt vmcnt(16)
s_branch L_ln""")
    k("L_nq1:")
    k(f"""s_cmp_lt_u32 s33, 6
s_cbranch_scc1 L_nopf
s_getpc_b64 s[80:81]
L_pc:
s_sub_u32 s80, s80, L_pc-{NAME}_kernel
s_subb_u32 s81, s81, 0
s_mov_b32 s82, L_codeend-{NAME}_kernel
s_mov_b32 s83, 0x20000
s_lshl_b32 s75, s29, 1
s_add_u32 s75, s75, s33
s_sub_u32 s75, s75, 6
s_lshl_b32 s75, s75, 11
buffer_load_dwordx4 v[0:3], v120, s[80:83], s75 offen
buffer_load_dwordx4 v[0:3], v120, s[80:83], s75 offen offset:1024
s_barrier
s_waitcnt vmcnt(2)
s_branch L_ln
L_nopf:
s_barrier
s_waitcnt vmcnt(0)
s_branch L_ln""")

    k.flush()
    k("L_kwave:")
    srd(40, 6, "s74", 524288)
    k(f"""v_bfe_u32 v109, {VL}, 2, 2
v_and_b32 v110, 3, {VL}
v_lshlrev_b32 v121, 8, v109
v_lshl_add_u32 v121, v108, 6, v121
v_lshl_add_u32 v121, v110, 4, v121
s_movk_i32 s77, 0x1000""")
    for t in range(16):
        if t == kfirst: k("s_barrier")
        k(f"buffer_load_dwordx4 v[{4*t}:{4*t+3}], v121, {SKV}, s78 offen{kvflag}\ns_add_u32 s78, s78, s77")
    stamp("kissued")
    k("""s_and_b32 s76, s33, 6
s_cmp_lg_u32 s76, 2
s_cbranch_scc1 L_nowl""")
    srd(44, 12, None, 4 << 20)
    k(f"""s_and_b32 s77, s33, 1
v_bfe_u32 v121, {VL}, 3, 1
v_lshlrev_b32 v121, 6, v121
v_add_u32 v121, v121, v108
v_lshl_add_u32 v121, v121, 10, v111
s_lshl_b32 s75, s30, 17
s_lshl_b32 s76, s49, 7
s_add_u32 s75, s75, s76
s_lshl_b32 s76, s77, 12
s_add_u32 s75, s75, s76
s_lshl_b32 s77, s77, 13
s_add_u32 m0, s77, {L_WT}""")
    for t in range(8):
        k(f"buffer_load_dwordx4 v121, {SWA}, s75 offen{kvflag} lds\ns_add_u32 m0, m0, 0x400\ns_add_u32 s75, s75, 0x2000")
    k("L_nowl:")
    srd(56, 24, None, WS_SIZE)
    srd(36, 4, None, 8192)
    srd(60, 20, None, 8192)
    k(f"""v_lshlrev_b32 v113, 8, v110
v_lshl_add_u32 v113, v108, 6, v113
v_lshl_add_u32 v113, v109, 4, v113
v_lshlrev_b32 v114, 7, v110
v_lshl_add_u32 v114, v108, 5, v114
v_lshl_add_u32 v114, v109, 3, v114
s_lshl_b32 s76, s33, 9
v_add_u32 v114, s76, v114
v_bfe_u32 v116, {VL}, 2, 3
v_lshlrev_b32 v116, 5, v116
v_lshl_add_u32 v116, v110, 2, v116
s_lshl_b32 s76, s33, 5
v_lshlrev_b32 v117, 2, {VL}
v_add_u32 v117, s76, v117
s_lshl_b32 s76, s33, 2
v_mov_b32 v123, s76
v_mov_b32 v122, 0""")
    lds_wait(L_CNT_XN, 8)
    gettags()
    k(f"""s_cmp_ge_u32 s33, 2
s_cbranch_scc1 L_nog
s_lshl_b32 s84, s26, 12
s_lshl_b32 s76, s27, 7
s_add_u32 s79, s84, s76
s_cmp_eq_u32 s33, 1
s_cbranch_scc1 L_gh
s_add_u32 s79, s79, {WS_HQ}
s_lshl_b32 s75, s28, 14
s_lshl_b32 s76, s26, 11
s_add_u32 s75, s75, s76
s_mov_b32 s66, 131072
s_mov_b32 s67, 0xff800000
s_movk_i32 s77, {L_Q}
v_mov_b32 v122, {L_F_Q}
s_branch L_g
L_gh:
s_bitcmp0_b32 s65, 1
s_cbranch_scc1 L_nog
s_add_u32 s79, s79, {WS_HH}
s_lshl_b32 s75, s64, 13
s_add_u32 s75, s75, {WS_HP}
s_movk_i32 s66, 0x800
s_mov_b32 s67, 0
s_movk_i32 s77, {L_HN}
v_mov_b32 v122, {L_F_HN}
L_g:
v_lshlrev_b32 v121, 7, v108
v_add3_u32 v121, v121, v111, s77
v_bfe_u32 v118, {VL}, 3, 1
v_lshl_add_u32 v121, v118, 3, v121
s_mov_b32 s72, {SPIN}""")
    k(f"""L_fpoll:
s_load_dwordx16 s[4:19], s[24:25], s79 glc
s_load_dwordx16 s[80:95], s[24:25], s79 offset:64 glc
s_waitcnt lgkmcnt(0)
s_min_u32 s73, s4, s5
s_max_u32 s76, s4, s5""")
    for i in list(range(6, 20)) + list(range(80, 96)):
        k(f"s_min_u32 s73, s73, s{i}\ns_max_u32 s76, s76, s{i}")
    k(f"""s_xor_b32 s70, s73, s76
s_xor_b32 s73, s73, {TB}
s_xor_b32 s76, s76, {TB}
s_or_b32 s73, s73, s76
s_cmp_lt_u32 s73, 16
s_cbranch_scc1 L_fok
s_sleep 2
s_sub_u32 s72, s72, 1
s_cmp_lg_u32 s72, 0
s_cbranch_scc1 L_fpoll
s_mov_b32 s70, 1
L_fok:
s_cmp_lg_u32 s33, 0
s_cbranch_scc1 L_nomode
s_cmp_eq_u32 s70, 0
s_cselect_b32 s70, 1, 0
v_mov_b32 v118, s70
ds_write_b32 {VZ}, v118 offset:{L_MODE}
L_nomode:""")
    stamp("hint")
    k(f"""s_mov_b32 s72, {SPIN}
L_qpoll:
s_mov_b32 s76, s75""")
    for ks in range(4):
        k(f"""buffer_load_dwordx4 v[{64+8*ks}:{64+8*ks+3}], v120, {SWS}, s76 offen sc1
buffer_load_dwordx4 v[{64+8*ks+4}:{64+8*ks+7}], v120, {SWS}, s76 offen offset:1024 sc1
s_add_u32 s76, s76, s66""")
    k("s_waitcnt vmcnt(0)")
    tagacc(range(64, 96), "v96", "v97", "v98")
    k(f"""v_cmp_ne_u32 vcc, 0, v96
s_cbranch_vccz L_qok
s_sub_u32 s72, s72, 1
s_cmp_lg_u32 s72, 0
s_cbranch_scc1 L_qpoll
L_qok:""")
    for i in range(8):
        k(f"v_add_f32 v{64+i}, v{64+i}, v{72+i}\nv_add_f32 v{80+i}, v{80+i}, v{88+i}")
    for i in range(8):
        k(f"v_add_f32 v{64+i}, v{64+i}, v{80+i}")
    for i in range(8):
        k(f"v_max_f32 v{64+i}, s67, v{64+i}")
    for i in range(4):
        k(f"v_cvt_pk_bf16_f32 v{96+i}, v{64+2*i}, v{65+2*i}")
    k(f"""ds_write_b64 v121, v[96:97]
ds_write_b64 v121, v[98:99] offset:512""")
    lds_inc(0, vaddr="v122")
    k("L_nog:")
    lds_wait(L_F_Q, 1)
    k(f"ds_read_b128 v[96:99], v113 offset:{L_Q}\nds_read_b32 v118, {VZ} offset:{L_MODE}\ns_waitcnt vmcnt(0) lgkmcnt(0)\nv_readfirstlane_b32 s67, v118")
    if qrot: k("s_mov_b32 s67, 1")
    stamp("qready")
    def Dreg(t): return 100 if t == 0 else 4 * (t - 1)
    def qk_step(t, i):
        D = Dreg(t); tb = t >> 2; R = 104 + (t & 3)
        qs = [q for q in range(4) if q != tb]
        q = qs[i]; n = (4 * (tb - q)) % 16
        src1 = f"v{D+tb}" if i == 0 else f"v{R}"
        k(f"v_add_f32_dpp v{R}, v{D+q}, {src1} row_ror:{n} row_mask:0xf bank_mask:{1 << tb:#x}")
    for t in range(16 + 5):
        if t < 16:
            mfma(Dreg(t), 4 * t, 96, None)
        for i in range(3):
            tt = t - 3 - i
            if 0 <= tt < 16: qk_step(tt, i)
    k(f"""s_mov_b32 s76, {SCALE:#x}
s_mov_b32 s77, {LOG2E:#x}
v_cvt_pk_bf16_f32 v0, v104, v105
v_cvt_pk_bf16_f32 v1, v106, v107
v_lshlrev_b32 v2, 16, v0
v_and_b32 v3, 0xffff0000, v0
v_lshlrev_b32 v4, 16, v1
v_and_b32 v5, 0xffff0000, v1
v_mul_f32 v2, s76, v2
v_mul_f32 v3, s76, v3
v_mul_f32 v4, s76, v4
v_mul_f32 v5, s76, v5
v_cvt_pk_bf16_f32 v0, v2, v3
v_cvt_pk_bf16_f32 v1, v4, v5
v_lshlrev_b32 v2, 16, v0
v_and_b32 v3, 0xffff0000, v0
v_lshlrev_b32 v4, 16, v1
v_and_b32 v5, 0xffff0000, v1
v_max3_f32 v6, v2, v3, v4
v_max_f32 v6, v6, v5""")
    row_reduce("v_max_f32", "v6", (4, 8))
    xrow_reduce("v_max_f32", "v6", "v7")
    k(f"""s_mov_b64 exec, 0xf
ds_write_b32 v117, v6 offset:{L_STAT}
s_mov_b64 exec, -1""")
    lds_inc(L_CNT_K)
    lds_wait(L_CNT_K, 8)
    k(f"ds_read_b32 v6, v116 offset:{L_STAT}\ns_waitcnt lgkmcnt(0)")
    row_reduce("v_max_f32", "v6", (4, 8))
    xrow_reduce("v_max_f32", "v6", "v7", (16,))
    for i in range(4): k(f"v_sub_f32 v{2+i}, v{2+i}, v6")
    for i in range(4): k(f"v_mul_f32 v{2+i}, s77, v{2+i}")
    for i in range(4): k(f"v_exp_f32 v{2+i}, v{2+i}")
    k(f"""v_cvt_pk_bf16_f32 v0, v2, v3
v_cvt_pk_bf16_f32 v1, v4, v5
ds_write_b64 v114, v[0:1] offset:{L_P}
v_add_f32 v8, v2, v3
v_add_f32 v9, v4, v5
v_add_f32 v8, v8, v9""")
    row_reduce("v_add_f32", "v8", (4, 8))
    xrow_reduce("v_add_f32", "v8", "v7")
    k(f"""v_mov_b32 v11, 1
s_mov_b64 exec, 0xf
ds_write_b32 v117, v8 offset:{L_STAT+16}
s_mov_b64 exec, -1
s_waitcnt lgkmcnt(0)
s_mov_b64 exec, 1
ds_write_b32 v123, v11 offset:{L_F_P}
ds_add_u32 {VZ}, v11 offset:{L_CNT_L}
s_mov_b64 exec, -1""")
    stamp("qkdone")
    k("s_cmp_lg_u32 s33, 6\ns_cbranch_scc1 L_nostat")
    lds_wait(L_CNT_L, 8)
    k(f"""ds_read_b32 v8, v116 offset:{L_STAT+16}
v_mov_b32 v7, {TA}
v_mov_b32 v9, {TB}
s_lshl_b32 s76, s32, 9
s_add_u32 s76, s76, {WS_ST}
s_lshl_b32 s75, s29, 4
s_add_u32 s76, s76, s75
v_lshlrev_b32 v10, 7, {VL}
s_waitcnt lgkmcnt(0)""")
    row_reduce("v_add_f32", "v8", (4, 8))
    xrow_reduce("v_add_f32", "v8", "v11", (16,))
    k(f"""s_mov_b64 exec, 0xf
buffer_store_dwordx4 v[6:9], v10, {SWS}, s76 offen sc1
s_mov_b64 exec, -1""")
    k("L_nostat:")
    k("s_cmp_ge_u32 s33, 4\ns_cbranch_scc1 L_nowo")
    k(f"""s_lshl_b32 s76, s33, 2
v_add_u32 v121, s76, v120""")
    for n in range(16):
        k(f"ds_read_b32 v{n}, v121 offset:{L_WT + 1024*n}")
    arow_addr("v121", "v118", 8)
    k(f"""v_lshrrev_b32 v122, 3, {VL}
v_lshlrev_b32 v122, 16, v122
v_lshrrev_b32 v118, 1, v111
v_add_u32 v122, v122, v118
s_lshl_b32 s86, s30, 11
s_lshl_b32 s76, s49, 8
s_add_u32 s86, s86, s76
s_lshl_b32 s76, s33, 6
s_add_u32 s86, s86, s76
s_add_u32 s86, s86, {WS_OA}
s_waitcnt lgkmcnt(0)""")
    for ub in range(2):
        for p in range(4):
            k(f"v_perm_b32 v{16+8*ub+p}, v{8*ub+2*p+1}, v{8*ub+2*p}, s34")
            k(f"v_perm_b32 v{16+8*ub+4+p}, v{8*ub+2*p+1}, v{8*ub+2*p}, s35")
    k("L_nowo:")
    k("s_cmp_lg_u32 s33, 7\ns_cbranch_scc1 L_nofin")
    k(f"""v_lshrrev_b32 v108, 3, {VL}
v_lshrrev_b32 v118, 1, v111
v_lshl_add_u32 v110, v108, 11, v118
v_lshl_add_u32 v112, v108, 14, v118
s_lshl_b32 s87, s28, 16
s_lshl_b32 s76, s30, 6
s_add_u32 s87, s87, s76
s_add_u32 s87, s87, {WS_OA}
s_lshl_b32 s84, s28, 11
s_add_u32 s84, s84, s76
s_add_u32 s84, s84, {WS_OB}
s_lshl_b32 s88, s28, 10
s_lshl_b32 s76, s26, 7
s_add_u32 s88, s88, s76
s_lshl_b32 s76, s29, 2
s_add_u32 s88, s88, s76
buffer_load_dword v20, v111, {SX}, s88 offen""")
    k("L_nofin:")
    k("v_and_b32 v123, 12, v123")
    lds_wait(L_F_D, 1, vaddr="v123")
    k(f"""s_lshl_b32 s82, s33, 3
s_add_u32 s82, s82, s26
s_lshl_b32 s89, s82, 13
s_lshl_b32 s82, s82, 9
s_lshl_b32 s83, s29, 7
s_add_u32 s82, s82, s83
s_add_u32 s82, s82, {WS_ST}
s_lshl_b32 s83, s29, 9
s_add_u32 s89, s89, s83
s_add_u32 s89, s89, {WS_OX}
s_add_u32 s90, s89, 4096
s_mov_b32 s72, {SPIN}
L_stpoll:
s_load_dwordx16 s[4:19], s[24:25], s82 glc
s_waitcnt lgkmcnt(0)
s_mov_b32 s73, 0""")
    for p in range(4):
        k(f"""s_xor_b32 s83, s{4+4*p+1}, {TA}
s_or_b32 s73, s73, s83
s_xor_b32 s83, s{4+4*p+3}, {TB}
s_or_b32 s73, s73, s83""")
    k(f"""s_cmp_eq_u32 s73, 0
s_cbranch_scc1 L_stok
s_sleep 12
s_sub_u32 s72, s72, 1
s_cmp_lg_u32 s72, 0
s_cbranch_scc1 L_stpoll
L_stok:
v_mov_b32 v56, s4
v_max_f32 v56, s8, v56
v_max_f32 v56, s12, v56
v_max_f32 v56, s16, v56""")
    for p in range(4): k(f"v_sub_f32 v{52+p}, s{4+4*p}, v56")
    for p in range(4): k(f"v_mul_f32 v{52+p}, s77, v{52+p}")
    for p in range(4): k(f"v_exp_f32 v{52+p}, v{52+p}")
    k(f"""v_mul_f32 v56, s6, v52
v_fmac_f32 v56, s10, v53
v_fmac_f32 v56, s14, v54
v_fmac_f32 v56, s18, v55
v_rcp_f32 v56, v56""")
    for p in range(4): k(f"v_mul_f32 v{52+p}, v{52+p}, v56")
    k(f"""s_lshl_b32 s76, s33, 8
v_lshlrev_b32 v62, 2, {VL}
v_add_u32 v62, s76, v62
v_lshlrev_b32 v61, 3, {VL}
s_lshl_b32 s78, s32, 2
s_add_u32 s78, s78, s29
s_lshl_b32 s78, s78, 11
s_add_u32 s78, s78, {WS_OX}
s_cmp_eq_u32 s67, 1""")
    stamp("kready")
    k("s_barrier")
    stamp("bar2")
    k(f"""ds_read_b32 v96, v62 offset:{L_OP}
ds_read_b32 v97, v62 offset:{L_OP+2048}
ds_read_b32 v98, v62 offset:{L_OP+4096}
ds_read_b32 v99, v62 offset:{L_OP+6144}
s_waitcnt lgkmcnt(2)
v_add_f32 v96, v96, v97
s_waitcnt lgkmcnt(0)
v_add_f32 v98, v98, v99
v_add_f32 v96, v96, v98""")
    settag(96)
    k(f"""s_cbranch_scc1 L_oxpl
buffer_store_dword v96, v62, {SWS}, s78 offen sc1
s_branch L_oxst
L_oxpl:
buffer_store_dword v96, v62, {SWS}, s78 offen
L_oxst:""")
    poll4("L_ox", lambda m: k(f"buffer_load_dwordx2 v[{32+2*m}:{33+2*m}], v61, {SWS}, s{89 + m//2} offen offset:{2048*(m%2)} sc1"))
    k(f"""v_mul_f32 v32, v32, v52
v_mul_f32 v33, v33, v52
v_mul_f32 v36, v36, v54
v_mul_f32 v37, v37, v54
v_fmac_f32 v32, v34, v53
v_fmac_f32 v33, v35, v53
v_fmac_f32 v36, v38, v55
v_fmac_f32 v37, v39, v55
v_add_f32 v32, v32, v36
v_add_f32 v33, v33, v37
v_cvt_pk_bf16_f32 v32, v32, v33
ds_write_b32 v62, v32 offset:{L_O16}
s_waitcnt lgkmcnt(0)
s_barrier""")
    stamp("bar3")
    k("s_cmp_ge_u32 s33, 4\ns_cbranch_scc1 L_notg2")
    k(f"""ds_read_b128 v[96:99], v121 offset:{L_O16}
ds_read_b128 v[100:103], v121 offset:{L_O16+128}
s_waitcnt lgkmcnt(1)""")
    mfma(104, 96, 16, None); mfma(108, 96, 20, None)
    k("s_waitcnt lgkmcnt(0)")
    mfma(104, 100, 24, 104); mfma(108, 100, 28, 108)
    pairsum(112, 113, 104, 108)
    k(f"buffer_store_dwordx2 v[112:113], v122, {SWS}, s86 offen sc1")
    stamp("kend")
    stamp_flush()
    k("s_endpgm")
    k.flush()
    k("L_notg2:")
    k("s_cmp_eq_u32 s33, 7\ns_cbranch_scc1 L_final")
    stamp("kend")
    stamp_flush()
    k("s_endpgm")
    k.flush()
    k("L_final:")
    def gather(vaddr, sbase, step, lab, d0, d1, partial):
        if partial:
            k(f"v_and_b32 v38, {SM}, {VT}\nv_and_b32 v39, {SM}, {VT}")
        def ld(m):
            if partial and m == 3: k("s_mov_b32 exec_hi, 0")
            k(f"s_add_u32 s85, {sbase}, {m*step}\nbuffer_load_dwordx2 v[{32+2*m}:{33+2*m}], {vaddr}, {SWS}, s85 offen sc1")
            if partial and m == 3: k("s_mov_b64 exec, -1")
        poll4(lab, ld)
        k(f"""v_add_f32 v32, v32, v34
v_add_f32 v33, v33, v35
v_add_f32 v36, v36, v38
v_add_f32 v37, v37, v39
v_add_f32 {d0}, v32, v36
v_add_f32 {d1}, v33, v37
v_add_f32_dpp {d0}, {d0}, {d0} row_ror:8 row_mask:0xf bank_mask:0xf
v_add_f32_dpp {d1}, {d1}, {d1} row_ror:8 row_mask:0xf bank_mask:0xf""")
        for w in (16, 32):
            k(f"""v_mov_b32 v48, {d0}
v_mov_b32 v49, {d1}
v_permlane{w}_swap_b32 {d0}, v48
v_permlane{w}_swap_b32 {d1}, v49
v_add_f32 {d0}, {d0}, v48
v_add_f32 {d1}, {d1}, v49""")
        k(f"""v_cvt_pk_bf16_f32 v48, {d0}, {d1}
v_lshlrev_b32 {d0}, 16, v48
v_and_b32 {d1}, 0xffff0000, v48""")
    if "noffn" not in abl: gather("v112", "s84", 8 * 16384, "L_ob", "v22", "v23", True)
    k("v_and_b32 v21, 0xffff0000, v20\nv_lshlrev_b32 v20, 16, v20")
    gather("v110", "s87", 16384, "L_oa", "v24", "v25", False)
    k(f"""v_add_f32 v20, v20, v24
v_add_f32 v21, v21, v25
v_cvt_pk_bf16_f32 v16, v20, v21
v_lshlrev_b32 v20, 16, v16
v_and_b32 v21, 0xffff0000, v16
v_add_f32 v20, v20, v22
v_add_f32 v21, v21, v23
v_cvt_pk_bf16_f32 v20, v20, v21
s_mov_b64 exec, 0xff
buffer_store_dword v20, v111, {SOUT}, s88 offen
s_mov_b64 exec, -1""")
    stamp("kend")
    stamp_flush()
    k(f"""s_cmp_lg_u32 s2, 0
s_cbranch_scc1 L_end
s_mov_b32 s76, {WS_E}
s_mov_b64 exec, 1
buffer_store_dword {VT}, {VZ}, {SWS}, s76 offen
s_endpgm""")

    k.flush()
    k("L_ln:")
    for i in range(4):
        k(f"v_lshlrev_b32 v{100+2*i}, 16, v{96+i}\nv_and_b32 v{101+2*i}, 0xffff0000, v{96+i}")
    k("""v_add_f32 v96, v100, v101
v_add_f32 v97, v102, v103
v_add_f32 v98, v104, v105
v_add_f32 v99, v106, v107
v_add_f32 v96, v96, v97
v_add_f32 v98, v98, v99
v_add_f32 v96, v96, v98""")
    row_reduce("v_add_f32", "v96")
    xrow_reduce("v_add_f32", "v96", "v97")
    k("v_mul_f32 v96, 0x3b000000, v96")
    k("v_sub_f32 v98, v100, v96\nv_mul_f32 v97, v98, v98")
    for i in range(1, 8):
        k(f"v_sub_f32 v98, v{100+i}, v96\nv_fmac_f32 v97, v98, v98")
    row_reduce("v_add_f32", "v97")
    xrow_reduce("v_add_f32", "v97", "v98")
    k("v_mul_f32 v97, 0x3b000000, v97")
    rnd("v96", "v96"); rnd("v97", "v97")
    k("v_add_f32 v97, 0x3727c5ac, v97")
    rnd("v97", "v97")
    k("v_sqrt_f32 v97, v97")
    rnd("v97", "v97")
    k("v_rcp_f32 v98, v97")
    for i in range(0, 8, 2):
        a, b2 = 100 + i, 101 + i
        k(f"""v_sub_f32 v{a}, v{a}, v96
v_sub_f32 v{b2}, v{b2}, v96
v_cvt_pk_bf16_f32 v99, v{a}, v{b2}
v_lshlrev_b32 v{a}, 16, v99
v_and_b32 v{b2}, 0xffff0000, v99""")
    for i in range(8):
        a = 100 + i
        k(f"""v_mul_f32 v99, v{a}, v98
v_fma_f32 v{a}, -v99, v97, v{a}
v_fma_f32 v{a}, v{a}, v98, v99""")
    for i in range(4):
        k(f"v_cvt_pk_bf16_f32 v{96+i}, v{100+2*i}, v{101+2*i}")
    k(f"""s_lshl_b32 s75, s33, 10
v_add_u32 v122, s75, v120
ds_write_b128 v122, v[96:99] offset:{L_XN}""")
    lds_inc(L_CNT_XN)
    stamp("ln")
    srd(56, 24, None, WS_SIZE)
    srd(40, 8, "s74", 524288)
    k(f"""s_mov_b32 s66, 0
s_cmp_eq_u32 s33, 0
s_cbranch_scc1 L_tq
s_cmp_lt_u32 s33, 3
s_cbranch_scc1 L_f2l
s_cmp_lg_u32 s33, 4
s_cbranch_scc1 L_vload
s_bitcmp0_b32 s65, 0
s_cbranch_scc1 L_vload""")
    k(f"""v_lshrrev_b32 v121, 3, {VL}
v_lshlrev_b32 v123, 7, v121
v_lshlrev_b32 v121, 8, v121
v_lshrrev_b32 v122, 2, v111
v_add_u32 v123, v123, v122
s_lshl_b32 s75, s64, 2
s_add_u32 s75, s75, s29
s_lshl_b32 s75, s75, 11
s_add_u32 s75, s75, {WS_HP}
s_lshl_b32 s76, s26, 12
s_lshl_b32 s77, s51, 9
s_add_u32 s76, s76, s77
s_lshl_b32 s77, s29, 5
s_add_u32 s76, s76, s77
s_add_u32 s76, s76, {WS_HH}
s_branch L_tile
L_tq:
v_lshrrev_b32 v121, 3, {VL}
v_lshlrev_b32 v121, 14, v121
v_lshlrev_b32 v123, 7, {VL}
s_lshl_b32 s75, s29, 17
s_lshl_b32 s76, s50, 11
s_add_u32 s75, s75, s76
s_lshl_b32 s77, s48, 8
s_add_u32 s75, s75, s77
s_lshl_b32 s76, s50, 12
s_lshl_b32 s77, s27, 2
s_add_u32 s76, s76, s77
s_add_u32 s76, s76, {WS_HQ}
L_tile:
v_add_u32 v121, v111, v121""")
    arow_addr("v122", "v118", 10)
    k(f"""s_lshl_b32 s77, s29, 8
v_add_u32 v122, s77, v122""")
    lds_wait(L_CNT_XN, 8)
    k(f"""ds_read_b128 v[96:99], v122 offset:{L_XN}
ds_read_b128 v[100:103], v122 offset:{L_XN+128}""")
    gettags()
    k(f"""s_getreg_b32 s77, hwreg(HW_REG_XCC_ID)
s_and_b32 s77, s77, 15
s_andn2_b32 s79, {TB}, 15
s_or_b32 s77, s77, s79
v_mov_b32 v122, s77""")
    for ub in range(2):
        k(f"s_waitcnt vmcnt({8 - 8*ub})")
        for w in range(4):
            T = 104 + 8 * (w & 1)
            perms(T, 32 * ub, w)
            mfma(64 + 8 * w, 96 + 4 * ub, T, None if ub == 0 else 64 + 8 * w)
            mfma(68 + 8 * w, 96 + 4 * ub, T + 4, None if ub == 0 else 68 + 8 * w)
    for w in range(4):
        pairsum(2 * w, 2 * w + 1, 64 + 8 * w, 68 + 8 * w)
    k(f"""buffer_store_dwordx4 v[0:3], v121, {SWS}, s75 offen{lst}
buffer_store_dwordx4 v[4:7], v121, {SWS}, s75 offen offset:128{lst}
s_mov_b32 exec_hi, 0
buffer_store_dword v122, v123, {SWS}, s76 offen sc1
s_mov_b64 exec, -1""")
    stamp("tpub")
    k("s_branch L_vload")
    k.flush()
    k("L_f2l:")
    k("s_bitcmp0_b32 s65, 1\ns_cbranch_scc1 L_vload")
    srd(44, 18, None, 1792 * 1024)
    k(f"""s_setprio 0
s_mov_b32 s66, 1
v_lshl_add_u32 v121, v112, 10, v111
s_lshl_b32 s75, s64, 16
s_lshl_b32 s76, s29, 8
s_add_u32 s75, s75, s76
s_sub_u32 s76, s33, 1
s_lshl_b32 s76, s76, 7
s_add_u32 s75, s75, s76
s_add_u32 s76, s75, 4096""")
    for t in range(8):
        k(f"buffer_load_dwordx4 v[{64+4*t}:{64+4*t+3}], v121, {SWA}, s{75 + t//4} offen offset:{(t%4)*1024}{kvflag}")
    k("s_branch L_vload")
    k.flush()
    k("L_vload:")
    k(f"""s_setprio 0
s_movk_i32 s77, 0x1000""")
    for t in range(16):
        k(f"buffer_load_dwordx4 v[{4*t}:{4*t+3}], v120, {SKV}, s78 offen{kvflag}\ns_add_u32 s78, s78, s77")
    stamp("vissued")
    k("""s_cmp_eq_u32 s66, 0
s_cbranch_scc1 L_noj
s_waitcnt vmcnt(16)""")
    k("L_f2:")
    arow_addr("v122", "v118", 7)
    k(f"""v_lshrrev_b32 v121, 3, {VL}
v_lshlrev_b32 v121, 11, v121
v_and_b32 v123, 7, {VL}
v_lshl_add_u32 v121, v123, 3, v121
s_lshl_b32 s75, s64, 14
s_lshl_b32 s76, s29, 9
s_add_u32 s75, s75, s76
s_sub_u32 s76, s33, 1
s_lshl_b32 s76, s76, 8
s_add_u32 s75, s75, s76
s_add_u32 s75, s75, {WS_OB}""")
    lds_wait(L_F_HN, 1)
    k(f"ds_read_b128 v[112:115], v122 offset:{L_HN}")
    gettags()
    k("s_setprio 3")
    for w in range(4):
        G = 116 + 2 * (w & 1)
        perms(96, 64, w)
        mfma(104, 112, 96, None)
        mfma(108, 112, 100, None)
        pairsum(G, G + 1, 104, 108)
        k(f"buffer_store_dwordx2 v[{G}:{G+1}], v121, {SWS}, s75 offen offset:{64*w} sc1")
    k("s_setprio 0")
    stamp("tpub")
    k("L_noj:")
    k(f"""v_lshrrev_b32 v108, 4, {VL}
v_and_b32 v110, 3, {VL}
v_bfe_u32 v109, {VL}, 2, 2
v_lshlrev_b32 v122, 7, v110
v_lshl_add_u32 v122, v108, 5, v122
s_lshl_b32 s75, s33, 9
s_add_u32 s75, s75, {L_P}
v_add_u32 v122, s75, v122
v_mov_b32 v123, {L_ZERO}""")
    for dl in range(4):
        k(f"v_cmp_eq_u32 vcc, {dl}, v109\nv_cndmask_b32 v{112+dl}, v123, v122, vcc")
    k(f"""s_lshl_b32 s75, s33, 2
v_mov_b32 v123, s75
s_and_b32 s75, s33, 3
s_lshl_b32 s76, s75, 2
v_mov_b32 v121, s76
s_lshl_b32 s75, s75, 11
v_add_u32 v120, s75, v120
v_lshlrev_b32 v122, 2, {VL}
v_add_u32 v122, s75, v122""")
    lds_wait(L_F_P, 1, vaddr="v123")
    for ub in range(2):
        for dl in range(4):
            r = 64 + 16 * ub + 4 * dl
            k(f"ds_read_b128 v[{r}:{r+3}], v{112+dl} offset:{16*ub}")
    k("s_cmp_ge_u32 s33, 4\ns_cbranch_scc1 L_g3")
    for i in range(8): k(f"v_mov_b32 v{96+i}, 0")
    k("s_branch L_pv\nL_g3:")
    lds_wait(L_F_D, 1, vaddr="v121")
    k(f"""ds_read_b128 v[96:99], v120 offset:{L_DX}
ds_read_b128 v[100:103], v120 offset:{L_DX+1024}
L_pv:
s_waitcnt lgkmcnt(0)
s_waitcnt vmcnt(8)""")
    for w in range(4):
        T = 104 + 8 * (w & 1)
        perms(T, 0, w)
        for hh in range(2):
            di = 2 * w + hh; x = di >> 2; dl = di & 3
            mfma(96 + 4 * x, 64 + 4 * dl, T + 4 * hh, 96 + 4 * x)
    for p in range(4):
        k(f"s_waitcnt vmcnt({6 - 2*p})")
        if p == 3: stamp("varr")
        for w in range(4):
            k(f"v_perm_b32 v{8*w+p}, v{32+4*(2*p+1)+w}, v{32+4*(2*p)+w}, s34")
            k(f"v_perm_b32 v{8*w+4+p}, v{32+4*(2*p+1)+w}, v{32+4*(2*p)+w}, s35")
            if p == 3 and w >= 1:
                di = 2 * (w - 1)
                for d in (di, di + 1):
                    mfma(96 + 4 * (d >> 2), 80 + 4 * (d & 3), 4 * d, 96 + 4 * (d >> 2))
    for d in (6, 7):
        mfma(96 + 4 * (d >> 2), 80 + 4 * (d & 3), 4 * d, 96 + 4 * (d >> 2))
    k("s_cmp_ge_u32 s33, 4\ns_cbranch_scc1 L_g3b")
    k(f"""ds_write_b128 v120, v[96:99] offset:{L_DX}
ds_write_b128 v120, v[100:103] offset:{L_DX+1024}""")
    lds_inc(L_F_D, vaddr="v121")
    stamp("pvdone")
    stamp_flush()
    k("s_endpgm")
    k.flush()
    k("L_g3b:")
    for x in range(2):
        for h in range(4):
            k(f"ds_write_b32 v122, v{96+4*x+h} offset:{L_OP + h*512 + x*256}")
    k("s_waitcnt lgkmcnt(0)")
    stamp("pvdone")
    k("s_barrier")
    stamp_flush()
    k("L_end:")
    k("s_endpgm")
    k("L_codeend:")

    T = []
    T.append('.section .rodata,"a"'); T.append(".p2align 6")
    T.append(f".amdhsa_kernel {NAME}_kernel")
    T.append("  .amdhsa_next_free_vgpr 128"); T.append("  .amdhsa_next_free_sgpr 102"); T.append("  .amdhsa_accum_offset 128")
    T.append("  .amdhsa_group_segment_fixed_size 0"); T.append("  .amdhsa_kernarg_size 88"); T.append("  .amdhsa_user_sgpr_count 2")
    T.append("  .amdhsa_user_sgpr_kernarg_segment_ptr 1"); T.append("  .amdhsa_system_sgpr_workgroup_id_x 1")
    T.append("  .amdhsa_float_denorm_mode_32 3")
    T.append(".end_amdhsa_kernel")
    open(fname, "w").write("\n".join(H) + "\n" + k.text() + "\n".join(T) + "\n")

SA = {"start": 0, "hint": 1, "qready": 2, "ln": 1, "tpub": 1, "vissued": 2}
SB = {"start": 0, "qkdone": 1, "kready": 2, "varr": 1, "pvdone": 2}
SC = {"start": 0, "bar2": 1, "kend": 2, "varr": 1, "pvdone": 2}
SE = {"start": 0, "bar3": 1, "kend": 2, "varr": 1, "pvdone": 2}
SD = {"start": 0, "kissued": 1, "qready": 2, "vissued": 1, "varr": 2}
if __name__ == "__main__":
    gen("k13_old_sc.s", stamps=SC)
    gen("k13_x_sc.s", stamps=SC, qx=5, ox=7)
    gen("k13_even_sc.s", stamps=SC, ffnmap="even", qx=4, ox=5)
    gen("k13_even2_sc.s", stamps=SC, ffnmap="even", fx=4)
    gen("k13_odd_sc.s", stamps=SC, ffnmap="odd", qx=4, ox=5)
```

```python
from gen13 import *
gen("k13_x.s", qx=5, ox=7)
gen("k13_x_c1.s", qx=5, ox=7)
gen("k13_even.s", ffnmap="even", qx=4, ox=5)
gen("k13_even_c1.s", ffnmap="even", qx=4, ox=5)
gen("k13_old.s")
gen("k13_odd.s", ffnmap="odd", qx=4, ox=5)
```

```python
import sys, argparse
from asmlib import Asm
NAME = "parallel_sum__sliding_block_cached__dense_activation_relu__decode"

WS_QP = 0x000000
WS_OX = 0x080000
WS_OA = 0x100000
WS_OB = 0x180000
WS_HP = 0x1F0000
WS_ST = 0x228000
WS_HQ = 0x230000
WS_HH = 0x238000
WS_E  = 0x240000
WS_SIZE = 0x241000
STAMP_OFF = 256 << 20
L_CNT_XN = 0; L_MODE = 4; L_F_Q = 8; L_F_HN = 12; L_CNT_K = 16; L_CNT_L = 20; L_TAG = 24; L_F_P = 32
L_ZERO = 64; L_F_D = 96; L_CNT_VI = 112; L_ZEND = 128
L_STAT = 128; L_Q = 1024; L_HN = 2048; L_P = 3072; L_XN = 7168; L_OP = 15360; L_DX = L_OP + 8192; L_O16 = L_DX + 8192; L_WT = L_O16 + 2048; L_END = L_WT + 16384

LOG2E = 0x3fb8aa3b
SCALE = 0x3db504f3
SPIN = 1 << 16

def gen(fname, stamps=None, kvflag=" nt", psleep=0, abl=(), kfirst=0, lst=" sc1", tagmask=0xf, rxor=0, qx=5, ox=7, qrot=0, ffnmap="old", fx=0, probe=0, oasleep=0, dblx=0, dbla=4, pre=4, obpre=0, oadelay=0):
    k = Asm()
    H = []
    H.append(open("cdna_kernels/%s.s.ref" % NAME).read().split("; Override launch")[0].rstrip("\n"))
    H.append(f"; @launch grid=(256,1,1) block=(1024,1,1) lds={L_END}")
    H.append('.amdgcn_target "amdgcn-amd-amdhsa--gfx950"')
    H.append(".text"); H.append(f".globl {NAME}_kernel"); H.append(".p2align 8"); H.append(f".type {NAME}_kernel,@function")
    H.append(f"{NAME}_kernel:")

    VL = "v126"; VZ = "v127"; VT = "v124"
    TA, TB = "s68", "s69"
    SM = "s3"
    def srd(d, lo, off, size):
        if off is None:
            k(f"s_mov_b32 s{d}, s{lo}\ns_mov_b32 s{d+1}, s{lo+1}")
        else:
            k(f"s_add_u32 s{d}, s{lo}, {off}\ns_addc_u32 s{d+1}, s{lo+1}, 0")
        k(f"s_mov_b32 s{d+2}, {size}\ns_mov_b32 s{d+3}, 0x20000")
    SX, SKV, SWA, SWS, SOUT = [f"s[{a}:{a+3}]" for a in (36, 40, 44, 56, 60)]

    def stamp(name):
        if not stamps or name not in stamps: return
        sl = stamps[name]
        k(f"s_memrealtime s[{96+2*sl}:{97+2*sl}]")
    def stamp_flush():
        if not stamps: return
        k(f"""s_waitcnt lgkmcnt(0)
s_mov_b64 exec, 1
s_lshl_b32 s76, s2, 9
s_lshl_b32 s77, s31, 5
s_add_u32 s76, s76, s77
s_add_u32 s76, s76, {STAMP_OFF}
s_add_u32 s76, s24, s76
s_addc_u32 s77, s25, 0
v_mov_b32 v0, s96
v_mov_b32 v1, s97
v_mov_b32 v2, s98
v_mov_b32 v3, s99
v_mov_b32 v4, s100
v_mov_b32 v5, s101
global_store_dwordx4 {VZ}, v[0:3], s[76:77]
global_store_dwordx2 {VZ}, v[4:5], s[76:77] offset:16""")

    def lds_wait(addr, val, vaddr=VZ, vt="v125"):
        lp = k.label("Lw"); dn = k.label("Ld")
        k(f"s_mov_b32 s72, {SPIN}")
        k(f"{lp}:")
        k(f"""ds_read_b32 {vt}, {vaddr} offset:{addr}
s_waitcnt lgkmcnt(0)
v_readfirstlane_b32 s73, {vt}
s_cmp_ge_u32 s73, {val}
s_cbranch_scc1 {dn}
s_sleep 1
s_sub_u32 s72, s72, 1
s_cmp_lg_u32 s72, 0
s_cbranch_scc1 {lp}""")
        k(f"{dn}:")
    def lds_inc(addr, vaddr=VZ, vt="v125"):
        k(f"""s_waitcnt lgkmcnt(0)
v_mov_b32 {vt}, 1
s_mov_b64 exec, 1
ds_add_u32 {vaddr}, {vt} offset:{addr}
s_mov_b64 exec, -1""")
    def rnd(dst, src):
        k(f"v_cvt_pk_bf16_f32 {dst}, {src}, {src}\nv_lshlrev_b32 {dst}, 16, {dst}")
    def row_reduce(op, v, steps=(8, 4, 2, 1)):
        for n in steps:
            k(f"{op}_dpp {v}, {v}, {v} row_ror:{n} row_mask:0xf bank_mask:0xf")
    def xrow_reduce(op, v, t, which=(16, 32)):
        for w in which:
            k(f"v_mov_b32 {t}, {v}\nv_permlane{w}_swap_b32 {v}, {t}\n{op} {v}, {v}, {t}")
    def perms(T, W, w):
        for p in range(4):
            k(f"v_perm_b32 v{T+p}, v{W+4*(2*p+1)+w}, v{W+4*(2*p)+w}, s34")
        for p in range(4):
            k(f"v_perm_b32 v{T+4+p}, v{W+4*(2*p+1)+w}, v{W+4*(2*p)+w}, s35")
    def mfma(D, A, B, C):
        c = "0" if C is None else f"v[{C}:{C+3}]"
        k(f"v_mfma_f32_16x16x32_bf16 v[{D}:{D+3}], v[{A}:{A+3}], v[{B}:{B+3}], {c}")
    def gettags():
        k(f"""ds_read_b64 v[124:125], {VZ} offset:{L_TAG}
s_waitcnt lgkmcnt(0)
v_readfirstlane_b32 {TA}, v124
v_readfirstlane_b32 {TB}, v125""")
    SM8 = "s52"
    def settag(r, m=None):
        k(f"v_bfi_b32 v{r}, {m or SM8}, {VT}, v{r}")
    def tagacc(regs, acc, t1, t2):
        regs = list(regs)
        k(f"v_xor_b32 {acc}, {TA}, v{regs[0]}\nv_xor_b32 {t1}, {TA}, v{regs[1]}\nv_or_b32 {acc}, {acc}, {t1}")
        for i in range(2, len(regs), 2):
            k(f"v_xor_b32 {t1}, {TA}, v{regs[i]}\nv_xor_b32 {t2}, {TA}, v{regs[i+1]}\nv_or3_b32 {acc}, {acc}, {t1}, {t2}")
        k(f"v_and_b32 {acc}, {SM}, {acc}")
    def pairsum(G0, G1, D0, D1, m=None):
        k(f"""v_add_f32_dpp v{G0}, v{D0+1}, v{D0} row_shl:8 row_mask:0xf bank_mask:0x3
v_add_f32_dpp v{G1}, v{D1+1}, v{D1} row_shl:8 row_mask:0xf bank_mask:0x3
v_add_f32_dpp v{G0}, v{D0+2}, v{D0+3} row_shr:8 row_mask:0xf bank_mask:0xc
v_add_f32_dpp v{G1}, v{D1+2}, v{D1+3} row_shr:8 row_mask:0xf bank_mask:0xc""")
        settag(G0, m); settag(G1, m)
    def arow_addr(vd, vt, rowshift):
        k(f"""v_bfe_u32 {vd}, {VL}, 1, 3
v_lshlrev_b32 {vd}, {rowshift}, {vd}
v_and_b32 {vt}, 1, {VL}
v_lshl_add_u32 {vd}, {vt}, 4, {vd}
v_lshrrev_b32 {vt}, 4, {VL}
v_lshl_add_u32 {vd}, {vt}, 5, {vd}""")
    def poll4(lab, ld, slp=None, dbl=0, partial=False, w1=False):
        slp = psleep if slp is None else slp
        def check(B, ok):
            for p in range(4):
                k(f"v_bitop3_b32 v{48+p}, v{B+2*p}, v{B+1+2*p}, {VT} bitop3:0x7e")
            for p in range(4):
                k(f"v_cmp_ne_u32_sdwa s[{4+2*p}:{5+2*p}], v{48+p}, {VZ} src0_sel:BYTE_0 src1_sel:DWORD")
            k(f"""s_or_b64 s[12:13], s[4:5], s[6:7]
s_or_b64 s[14:15], s[8:9], s[10:11]
s_or_b64 s[12:13], s[12:13], s[14:15]
s_cbranch_scc0 {ok}""")
        def reissue(B):
            for m in range(4):
                k(f"s_cmp_lg_u64 s[{4+2*m}:{5+2*m}], 0\ns_cselect_b64 exec, -1, 0")
                if partial and m == 3: k("s_mov_b32 exec_hi, 0")
                ld(m, B)
            k("s_mov_b64 exec, -1")
        k(f"s_mov_b32 s72, {SPIN}")
        if not dbl:
            if w1:
                k(f"s_waitcnt vmcnt(1)\ns_branch {lab}c")
            k(f"{lab}poll:\ns_waitcnt vmcnt(0)\n{lab}c:")
            check(32, f"{lab}ok")
            if slp: k(f"s_sleep {slp}")
            reissue(32)
            k(f"""s_sub_u32 s72, s72, 1
s_cmp_lg_u32 s72, 0
s_cbranch_scc1 {lab}poll
{lab}ok:""")
        else:
            k("s_waitcnt vmcnt(0)")
            check(32, f"{lab}ok")
            for i in range(8): k(f"v_mov_b32 v{40+i}, v{32+i}")
            reissue(32)
            k(f"s_sleep {dbl}")
            reissue(40)
            k(f"{lab}poll:\ns_waitcnt vmcnt(4)")
            check(32, f"{lab}ok")
            reissue(32)
            k("s_waitcnt vmcnt(4)")
            check(40, f"{lab}okb")
            reissue(40)
            k(f"""s_sub_u32 s72, s72, 1
s_cmp_lg_u32 s72, 0
s_cbranch_scc1 {lab}poll
{lab}okb:
s_waitcnt vmcnt(0)""" if False else f"""s_sub_u32 s72, s72, 1
s_cmp_lg_u32 s72, 0
s_cbranch_scc1 {lab}poll
{lab}okb:""")
            return True
        return False

    stamp("start")
    if probe: k("s_memrealtime s[96:97]")
    k(f"""s_cmp_ge_u32 s2, 256
s_cbranch_scc1 L_end
s_load_dwordx16 s[4:19], s[0:1], 0
s_load_dwordx4 s[20:23], s[0:1], 64
s_load_dwordx2 s[24:25], s[0:1], 80
s_and_b32 s26, s2, 7
s_lshr_b32 s27, s2, 3
s_xor_b32 s27, s27, {rxor}
s_lshr_b32 s28, s27, 2
s_and_b32 s29, s27, 3
s_lshl_b32 s30, s26, 2
s_add_u32 s30, s30, s29
s_lshl_b32 s32, s28, 3
s_add_u32 s32, s32, s26
s_mov_b32 s34, 0x05040100
s_mov_b32 s35, 0x07060302
s_movk_i32 {SM}, {tagmask}
s_movk_i32 s52, 0xff
v_and_b32 {VL}, 63, v0
v_mov_b32 {VZ}, 0
v_lshrrev_b32 v1, 6, v0
v_lshlrev_b32 v2, 2, v0
v_readfirstlane_b32 s31, v1
v_cmp_gt_u32 vcc, {L_ZEND//4}, v0
s_and_saveexec_b64 s[70:71], vcc
ds_write_b32 v2, {VZ}
s_mov_b64 exec, s[70:71]
s_lshl_b32 s74, s28, 24
s_lshl_b32 s75, s26, 21
s_add_u32 s74, s74, s75
s_add_u32 s74, s74, {6144*256}
s_and_b32 s33, s31, 7
v_lshrrev_b32 v108, 4, {VL}
v_and_b32 v111, 7, {VL}
v_lshlrev_b32 v111, 4, v111
v_bfe_u32 v112, {VL}, 3, 1
v_lshlrev_b32 v112, 3, v112
v_lshl_add_u32 v112, v108, 4, v112
v_lshlrev_b32 v120, 4, {VL}
s_and_b32 s75, s33, 3
s_lshl_b32 s75, s75, 10
s_lshr_b32 s76, s33, 2
s_lshl_b32 s76, s76, 16
s_add_u32 s75, s75, s76
s_lshl_b32 s76, s29, 17
s_add_u32 s78, s75, s76
s_mul_i32 s50, s28, {qrot}
s_add_u32 s50, s50, s26
s_and_b32 s50, s50, 7
s_xor_b32 s48, s28, {qx}
s_xor_b32 s49, s28, {ox}
s_nop 0""")
    if ffnmap == "old":
        k("""s_lshr_b32 s64, s28, 1
s_lshl_b32 s64, s64, 3
s_add_u32 s64, s64, s26
s_and_b32 s65, s28, 1
s_add_u32 s65, s65, 1
s_cmp_ge_u32 s64, 28
s_cselect_b32 s65, 0, s65
s_add_u32 s51, s28, 1""")
    else:
        k(f"""s_lshr_b32 s64, s26, 1
s_mul_i32 s64, s64, 7
s_xor_b32 s51, s28, {fx}
s_add_u32 s64, s64, s51
s_cmp_eq_u32 s51, 7
s_cselect_b32 s65, 0, 3
s_and_b32 s51, s26, 1
s_cmp_eq_u32 s51, {0 if ffnmap == "even" else 1}
s_cselect_b32 s65, s65, 0
s_mov_b32 s51, s28""")
    k("s_waitcnt lgkmcnt(0)")
    if "noffn" in abl: k("s_mov_b32 s65, 0")
    k("s_cmp_lt_u32 s31, 8\ns_cbranch_scc1 L_kwave")
    k("s_setprio 3")
    srd(36, 4, None, 8192)
    k(f"""s_lshl_b32 s75, s33, 10
buffer_load_dwordx4 v[96:99], v120, {SX}, s75 offen
s_cmp_eq_u32 s33, 0
s_cbranch_scc1 L_setq
s_cmp_lg_u32 s33, 4
s_cbranch_scc1 L_nq1
s_bitcmp0_b32 s65, 0
s_cbranch_scc1 L_nopf""")
    srd(44, 16, None, 512 * 3584)
    k(f"""s_movk_i32 s77, 3584
s_mov_b32 s79, {57*3584}
s_mul_i32 s75, s29, {128*3584}
s_lshl_b32 s76, s64, 7
s_add_u32 s75, s75, s76
s_branch L_tload
L_setq:""")
    srd(44, 10, None, 4 << 20)
    k(f"""s_mov_b32 s76, {WS_E}
s_load_dword s68, s[24:25], s76
s_movk_i32 s77, 0x2000
s_mov_b32 s79, {57*8192}
s_lshl_b32 s75, s29, 20
s_lshl_b32 s76, s50, 10
s_add_u32 s75, s75, s76
s_lshl_b32 s76, s48, 7
s_add_u32 s75, s75, s76
L_tload:
v_mul_lo_u32 v121, v112, s77
v_add_u32 v121, v121, v111""")
    for ub in range(2):
        for t in range(8):
            r = 32 * ub + 4 * t
            k(f"buffer_load_dwordx4 v[{r}:{r+3}], v121, {SWA}, s75 offen{kvflag}")
            k("s_add_u32 s75, s75, s77" if t < 7 else "s_add_u32 s75, s75, s79")
    k(f"""s_barrier
s_cmp_lg_u32 s33, 0
s_cbranch_scc1 L_notag
s_waitcnt lgkmcnt(0)
s_add_u32 {TA}, {TA}, 1
s_mul_i32 {TB}, {TA}, 0x9e3779b1
s_xor_b32 {TB}, {TB}, 0x5bd1e995
v_mov_b32 v124, {TA}
v_mov_b32 v125, {TB}
ds_write_b64 {VZ}, v[124:125] offset:{L_TAG}
L_notag:
s_waitcnt vmcnt(16)
s_branch L_ln""")
    k("L_nq1:")
    k(f"""s_cmp_lt_u32 s33, 6
s_cbranch_scc1 L_nopf
s_getpc_b64 s[80:81]
L_pc:
s_sub_u32 s80, s80, L_pc-{NAME}_kernel
s_subb_u32 s81, s81, 0
s_mov_b32 s82, L_codeend-{NAME}_kernel
s_mov_b32 s83, 0x20000
s_lshl_b32 s75, s29, 1
s_add_u32 s75, s75, s33
s_sub_u32 s75, s75, 6
s_lshl_b32 s75, s75, 11
buffer_load_dwordx4 v[0:3], v120, s[80:83], s75 offen
buffer_load_dwordx4 v[0:3], v120, s[80:83], s75 offen offset:1024
s_barrier
s_waitcnt vmcnt(2)
s_branch L_ln
L_nopf:
s_barrier
s_waitcnt vmcnt(0)
s_branch L_ln""")

    k.flush()
    k("L_kwave:")
    srd(40, 6, "s74", 524288)
    k(f"""v_bfe_u32 v109, {VL}, 2, 2
v_and_b32 v110, 3, {VL}
v_lshlrev_b32 v121, 8, v109
v_lshl_add_u32 v121, v108, 6, v121
v_lshl_add_u32 v121, v110, 4, v121
s_movk_i32 s77, 0x1000""")
    for t in range(16):
        if t == kfirst: k("s_barrier")
        k(f"buffer_load_dwordx4 v[{4*t}:{4*t+3}], v121, {SKV}, s78 offen{kvflag}\ns_add_u32 s78, s78, s77")
    stamp("kissued")
    k("""s_and_b32 s76, s33, 6
s_cmp_lg_u32 s76, 2
s_cbranch_scc1 L_nowl""")
    srd(44, 12, None, 4 << 20)
    k(f"""s_and_b32 s77, s33, 1
v_bfe_u32 v121, {VL}, 3, 1
v_lshlrev_b32 v121, 6, v121
v_add_u32 v121, v121, v108
v_lshl_add_u32 v121, v121, 10, v111
s_lshl_b32 s75, s30, 17
s_lshl_b32 s76, s49, 7
s_add_u32 s75, s75, s76
s_lshl_b32 s76, s77, 12
s_add_u32 s75, s75, s76
s_lshl_b32 s77, s77, 13
s_add_u32 m0, s77, {L_WT}""")
    for t in range(8):
        k(f"buffer_load_dwordx4 v121, {SWA}, s75 offen{kvflag} lds\ns_add_u32 m0, m0, 0x400\ns_add_u32 s75, s75, 0x2000")
    k("L_nowl:")
    srd(56, 24, None, WS_SIZE)
    srd(36, 4, None, 8192)
    srd(60, 20, None, 8192)
    k(f"""v_lshlrev_b32 v113, 8, v110
v_lshl_add_u32 v113, v108, 6, v113
v_lshl_add_u32 v113, v109, 4, v113
v_lshlrev_b32 v114, 7, v110
v_lshl_add_u32 v114, v108, 5, v114
v_lshl_add_u32 v114, v109, 3, v114
s_lshl_b32 s76, s33, 9
v_add_u32 v114, s76, v114
v_bfe_u32 v116, {VL}, 2, 3
v_lshlrev_b32 v116, 5, v116
v_lshl_add_u32 v116, v110, 2, v116
s_lshl_b32 s76, s33, 5
v_lshlrev_b32 v117, 2, {VL}
v_add_u32 v117, s76, v117
s_lshl_b32 s76, s33, 2
v_mov_b32 v123, s76
v_mov_b32 v122, 0""")
    lds_wait(L_CNT_XN, 8)
    gettags()
    k(f"""s_cmp_ge_u32 s33, 2
s_cbranch_scc1 L_nog
s_lshl_b32 s84, s26, 12
s_lshl_b32 s76, s27, 7
s_add_u32 s79, s84, s76
s_cmp_eq_u32 s33, 1
s_cbranch_scc1 L_gh
s_add_u32 s79, s79, {WS_HQ}
s_lshl_b32 s75, s28, 14
s_lshl_b32 s76, s26, 11
s_add_u32 s75, s75, s76
s_mov_b32 s66, 131072
s_mov_b32 s67, 0xff800000
s_movk_i32 s77, {L_Q}
v_mov_b32 v122, {L_F_Q}
s_branch L_g
L_gh:
s_bitcmp0_b32 s65, 1
s_cbranch_scc1 L_nog
s_add_u32 s79, s79, {WS_HH}
s_lshl_b32 s75, s64, 13
s_add_u32 s75, s75, {WS_HP}
s_movk_i32 s66, 0x800
s_mov_b32 s67, 0
s_movk_i32 s77, {L_HN}
v_mov_b32 v122, {L_F_HN}
L_g:
v_lshlrev_b32 v121, 7, v108
v_add3_u32 v121, v121, v111, s77
v_bfe_u32 v118, {VL}, 3, 1
v_lshl_add_u32 v121, v118, 3, v121
s_mov_b32 s72, {SPIN}""")
    k(f"""L_fpoll:
s_load_dwordx16 s[4:19], s[24:25], s79 glc
s_load_dwordx16 s[80:95], s[24:25], s79 offset:64 glc
s_waitcnt lgkmcnt(0)
s_min_u32 s73, s4, s5
s_max_u32 s76, s4, s5""")
    for i in list(range(6, 20)) + list(range(80, 96)):
        k(f"s_min_u32 s73, s73, s{i}\ns_max_u32 s76, s76, s{i}")
    k(f"""s_xor_b32 s70, s73, s76
s_xor_b32 s73, s73, {TB}
s_xor_b32 s76, s76, {TB}
s_or_b32 s73, s73, s76
s_cmp_lt_u32 s73, 16
s_cbranch_scc1 L_fok
s_sleep 2
s_sub_u32 s72, s72, 1
s_cmp_lg_u32 s72, 0
s_cbranch_scc1 L_fpoll
s_mov_b32 s70, 1
L_fok:
s_cmp_lg_u32 s33, 0
s_cbranch_scc1 L_nomode
s_cmp_eq_u32 s70, 0
s_cselect_b32 s70, 1, 0
v_mov_b32 v118, s70
ds_write_b32 {VZ}, v118 offset:{L_MODE}
L_nomode:""")
    stamp("hint")
    k(f"""s_mov_b32 s72, {SPIN}
L_qpoll:
s_mov_b32 s76, s75""")
    for ks in range(4):
        k(f"""buffer_load_dwordx4 v[{64+8*ks}:{64+8*ks+3}], v120, {SWS}, s76 offen sc1
buffer_load_dwordx4 v[{64+8*ks+4}:{64+8*ks+7}], v120, {SWS}, s76 offen offset:1024 sc1
s_add_u32 s76, s76, s66""")
    k("s_waitcnt vmcnt(0)")
    tagacc(range(64, 96), "v96", "v97", "v98")
    k(f"""v_cmp_ne_u32 vcc, 0, v96
s_cbranch_vccz L_qok
s_sub_u32 s72, s72, 1
s_cmp_lg_u32 s72, 0
s_cbranch_scc1 L_qpoll
L_qok:""")
    for i in range(8):
        k(f"v_add_f32 v{64+i}, v{64+i}, v{72+i}\nv_add_f32 v{80+i}, v{80+i}, v{88+i}")
    for i in range(8):
        k(f"v_add_f32 v{64+i}, v{64+i}, v{80+i}")
    for i in range(8):
        k(f"v_max_f32 v{64+i}, s67, v{64+i}")
    for i in range(4):
        k(f"v_cvt_pk_bf16_f32 v{96+i}, v{64+2*i}, v{65+2*i}")
    k(f"""ds_write_b64 v121, v[96:97]
ds_write_b64 v121, v[98:99] offset:512""")
    lds_inc(0, vaddr="v122")
    k("L_nog:")
    lds_wait(L_F_Q, 1)
    k(f"ds_read_b128 v[96:99], v113 offset:{L_Q}\nds_read_b32 v118, {VZ} offset:{L_MODE}\ns_waitcnt vmcnt(0) lgkmcnt(0)\nv_readfirstlane_b32 s67, v118")
    if qrot: k("s_mov_b32 s67, 1")
    stamp("qready")
    def Dreg(t): return 100 if t == 0 else 4 * (t - 1)
    def qk_step(t, i):
        D = Dreg(t); tb = t >> 2; R = 104 + (t & 3)
        qs = [q for q in range(4) if q != tb]
        q = qs[i]; n = (4 * (tb - q)) % 16
        src1 = f"v{D+tb}" if i == 0 else f"v{R}"
        k(f"v_add_f32_dpp v{R}, v{D+q}, {src1} row_ror:{n} row_mask:0xf bank_mask:{1 << tb:#x}")
    for t in range(16 + 5):
        if t < 16:
            mfma(Dreg(t), 4 * t, 96, None)
        for i in range(3):
            tt = t - 3 - i
            if 0 <= tt < 16: qk_step(tt, i)
    k(f"""s_mov_b32 s76, {SCALE:#x}
s_mov_b32 s77, {LOG2E:#x}
v_cvt_pk_bf16_f32 v0, v104, v105
v_cvt_pk_bf16_f32 v1, v106, v107
v_lshlrev_b32 v2, 16, v0
v_and_b32 v3, 0xffff0000, v0
v_lshlrev_b32 v4, 16, v1
v_and_b32 v5, 0xffff0000, v1
v_mul_f32 v2, s76, v2
v_mul_f32 v3, s76, v3
v_mul_f32 v4, s76, v4
v_mul_f32 v5, s76, v5
v_cvt_pk_bf16_f32 v0, v2, v3
v_cvt_pk_bf16_f32 v1, v4, v5
v_lshlrev_b32 v2, 16, v0
v_and_b32 v3, 0xffff0000, v0
v_lshlrev_b32 v4, 16, v1
v_and_b32 v5, 0xffff0000, v1
v_max3_f32 v6, v2, v3, v4
v_max_f32 v6, v6, v5""")
    row_reduce("v_max_f32", "v6", (4, 8))
    xrow_reduce("v_max_f32", "v6", "v7")
    k(f"""s_mov_b64 exec, 0xf
ds_write_b32 v117, v6 offset:{L_STAT}
s_mov_b64 exec, -1""")
    lds_inc(L_CNT_K)
    lds_wait(L_CNT_K, 8)
    k(f"ds_read_b32 v6, v116 offset:{L_STAT}\ns_waitcnt lgkmcnt(0)")
    row_reduce("v_max_f32", "v6", (4, 8))
    xrow_reduce("v_max_f32", "v6", "v7", (16,))
    for i in range(4): k(f"v_sub_f32 v{2+i}, v{2+i}, v6")
    for i in range(4): k(f"v_mul_f32 v{2+i}, s77, v{2+i}")
    for i in range(4): k(f"v_exp_f32 v{2+i}, v{2+i}")
    k(f"""v_cvt_pk_bf16_f32 v0, v2, v3
v_cvt_pk_bf16_f32 v1, v4, v5
ds_write_b64 v114, v[0:1] offset:{L_P}
v_add_f32 v8, v2, v3
v_add_f32 v9, v4, v5
v_add_f32 v8, v8, v9""")
    row_reduce("v_add_f32", "v8", (4, 8))
    xrow_reduce("v_add_f32", "v8", "v7")
    k(f"""v_mov_b32 v11, 1
s_mov_b64 exec, 0xf
ds_write_b32 v117, v8 offset:{L_STAT+16}
s_mov_b64 exec, -1
s_waitcnt lgkmcnt(0)
s_mov_b64 exec, 1
ds_write_b32 v123, v11 offset:{L_F_P}
ds_add_u32 {VZ}, v11 offset:{L_CNT_L}
s_mov_b64 exec, -1""")
    stamp("qkdone")
    k("s_cmp_lg_u32 s33, 6\ns_cbranch_scc1 L_nostat")
    lds_wait(L_CNT_L, 8)
    k(f"""ds_read_b32 v8, v116 offset:{L_STAT+16}
v_mov_b32 v7, {TA}
v_mov_b32 v9, {TB}
s_lshl_b32 s76, s32, 9
s_add_u32 s76, s76, {WS_ST}
s_lshl_b32 s75, s29, 4
s_add_u32 s76, s76, s75
v_lshlrev_b32 v10, 7, {VL}
s_waitcnt lgkmcnt(0)""")
    row_reduce("v_add_f32", "v8", (4, 8))
    xrow_reduce("v_add_f32", "v8", "v11", (16,))
    k(f"""s_mov_b64 exec, 0xf
buffer_store_dwordx4 v[6:9], v10, {SWS}, s76 offen sc1
s_mov_b64 exec, -1""")
    k("L_nostat:")
    k("s_cmp_ge_u32 s33, 4\ns_cbranch_scc1 L_nowo")
    k(f"""s_lshl_b32 s76, s33, 2
v_add_u32 v121, s76, v120""")
    for n in range(16):
        k(f"ds_read_b32 v{n}, v121 offset:{L_WT + 1024*n}")
    arow_addr("v121", "v118", 8)
    k(f"""v_lshrrev_b32 v122, 3, {VL}
v_lshlrev_b32 v122, 16, v122
v_lshrrev_b32 v118, 1, v111
v_add_u32 v122, v122, v118
s_lshl_b32 s86, s30, 11
s_lshl_b32 s76, s49, 8
s_add_u32 s86, s86, s76
s_lshl_b32 s76, s33, 6
s_add_u32 s86, s86, s76
s_add_u32 s86, s86, {WS_OA}
s_waitcnt lgkmcnt(0)""")
    for ub in range(2):
        for p in range(4):
            k(f"v_perm_b32 v{16+8*ub+p}, v{8*ub+2*p+1}, v{8*ub+2*p}, s34")
            k(f"v_perm_b32 v{16+8*ub+4+p}, v{8*ub+2*p+1}, v{8*ub+2*p}, s35")
    k("L_nowo:")
    k("s_cmp_lg_u32 s33, 7\ns_cbranch_scc1 L_nofin")
    k(f"""v_lshrrev_b32 v108, 3, {VL}
v_lshrrev_b32 v118, 1, v111
v_lshl_add_u32 v110, v108, 11, v118
v_lshl_add_u32 v112, v108, 14, v118
s_lshl_b32 s87, s28, 16
s_lshl_b32 s76, s30, 6
s_add_u32 s87, s87, s76
s_add_u32 s87, s87, {WS_OA}
s_lshl_b32 s84, s28, 11
s_add_u32 s84, s84, s76
s_add_u32 s84, s84, {WS_OB}
s_lshl_b32 s88, s28, 10
s_lshl_b32 s76, s26, 7
s_add_u32 s88, s88, s76
s_lshl_b32 s76, s29, 2
s_add_u32 s88, s88, s76
buffer_load_dword v20, v111, {SX}, s88 offen""")
    k("L_nofin:")
    k("v_and_b32 v123, 12, v123")
    lds_wait(L_F_D, 1, vaddr="v123")
    k(f"""s_lshl_b32 s82, s33, 3
s_add_u32 s82, s82, s26
s_lshl_b32 s89, s82, 13
s_lshl_b32 s82, s82, 9
s_lshl_b32 s83, s29, 7
s_add_u32 s82, s82, s83
s_add_u32 s82, s82, {WS_ST}
s_lshl_b32 s83, s29, 9
s_add_u32 s89, s89, s83
s_add_u32 s89, s89, {WS_OX}
s_add_u32 s90, s89, 4096
s_mov_b32 s72, {SPIN}
L_stpoll:
s_load_dwordx16 s[4:19], s[24:25], s82 glc
s_waitcnt lgkmcnt(0)
s_mov_b32 s73, 0""")
    for p in range(4):
        k(f"""s_xor_b32 s83, s{4+4*p+1}, {TA}
s_or_b32 s73, s73, s83
s_xor_b32 s83, s{4+4*p+3}, {TB}
s_or_b32 s73, s73, s83""")
    k(f"""s_cmp_eq_u32 s73, 0
s_cbranch_scc1 L_stok
s_sleep 12
s_sub_u32 s72, s72, 1
s_cmp_lg_u32 s72, 0
s_cbranch_scc1 L_stpoll
L_stok:
v_mov_b32 v56, s4
v_max_f32 v56, s8, v56
v_max_f32 v56, s12, v56
v_max_f32 v56, s16, v56""")
    for p in range(4): k(f"v_sub_f32 v{52+p}, s{4+4*p}, v56")
    for p in range(4): k(f"v_mul_f32 v{52+p}, s77, v{52+p}")
    for p in range(4): k(f"v_exp_f32 v{52+p}, v{52+p}")
    k(f"""v_mul_f32 v56, s6, v52
v_fmac_f32 v56, s10, v53
v_fmac_f32 v56, s14, v54
v_fmac_f32 v56, s18, v55
v_rcp_f32 v56, v56""")
    for p in range(4): k(f"v_mul_f32 v{52+p}, v{52+p}, v56")
    k(f"""s_lshl_b32 s76, s33, 8
v_lshlrev_b32 v62, 2, {VL}
v_add_u32 v62, s76, v62
v_lshlrev_b32 v61, 3, {VL}
s_lshl_b32 s78, s32, 2
s_add_u32 s78, s78, s29
s_lshl_b32 s78, s78, 11
s_add_u32 s78, s78, {WS_OX}""")
    ldx = lambda m, B: k(f"buffer_load_dwordx2 v[{B+2*m}:{B+1+2*m}], v61, {SWS}, s{89 + m//2} offen offset:{2048*(m%2)} sc1")
    if pre:
        lds_wait(L_CNT_VI, pre)
        for m in range(4): ldx(m, 32)
        if obpre:
            k(f"""s_cmp_lg_u32 s33, 7
s_cbranch_scc1 L_noob
v_and_b32 v70, {SM8}, {VT}
v_and_b32 v71, {SM8}, {VT}""")
            for m in range(4):
                if m == 3: k("s_mov_b32 exec_hi, 0")
                k(f"s_add_u32 s85, s84, {m*8*16384}\nbuffer_load_dwordx2 v[{64+2*m}:{65+2*m}], v112, {SWS}, s85 offen sc1")
            k("s_mov_b64 exec, -1\nL_noob:")
    k("s_cmp_eq_u32 s67, 1")
    stamp("kready")
    k("s_barrier")
    stamp("bar2")
    k(f"""ds_read_b32 v96, v62 offset:{L_OP}
ds_read_b32 v97, v62 offset:{L_OP+2048}
ds_read_b32 v98, v62 offset:{L_OP+4096}
ds_read_b32 v99, v62 offset:{L_OP+6144}
s_waitcnt lgkmcnt(2)
v_add_f32 v96, v96, v97
s_waitcnt lgkmcnt(0)
v_add_f32 v98, v98, v99
v_add_f32 v96, v96, v98""")
    settag(96)
    k(f"""s_cbranch_scc1 L_oxpl
buffer_store_dword v96, v62, {SWS}, s78 offen sc1
s_branch L_oxst
L_oxpl:
buffer_store_dword v96, v62, {SWS}, s78 offen
L_oxst:""")
    stamp("oxst")
    if stamps and "poll1" in stamps:
        k("s_waitcnt vmcnt(0)"); stamp("poll1")
    if not pre:
        for m in range(4): ldx(m, 32)
    def oxcomb(B):
        k(f"""v_mul_f32 v58, v{B}, v52
v_mul_f32 v59, v{B+1}, v52
v_mul_f32 v56, v{B+4}, v54
v_mul_f32 v57, v{B+5}, v54
v_fmac_f32 v58, v{B+2}, v53
v_fmac_f32 v59, v{B+3}, v53
v_fmac_f32 v56, v{B+6}, v55
v_fmac_f32 v57, v{B+7}, v55""")
    if poll4("L_ox", ldx, dbl=dblx, w1=bool(pre)):
        oxcomb(40)
        k("s_branch L_oxj\nL_oxok:")
    stamp("oxok")
    oxcomb(32)
    k(f"""L_oxj:
v_add_f32 v58, v58, v56
v_add_f32 v59, v59, v57
v_cvt_pk_bf16_f32 v58, v58, v59
ds_write_b32 v62, v58 offset:{L_O16}
s_waitcnt lgkmcnt(0)
s_barrier""")
    stamp("bar3")
    k("s_cmp_ge_u32 s33, 4\ns_cbranch_scc1 L_notg2")
    k(f"""ds_read_b128 v[96:99], v121 offset:{L_O16}
ds_read_b128 v[100:103], v121 offset:{L_O16+128}
s_waitcnt lgkmcnt(1)""")
    mfma(104, 96, 16, None); mfma(108, 96, 20, None)
    k("s_waitcnt lgkmcnt(0)")
    mfma(104, 100, 24, 104); mfma(108, 100, 28, 108)
    pairsum(112, 113, 104, 108)
    k(f"buffer_store_dwordx2 v[112:113], v122, {SWS}, s86 offen sc1")
    stamp("kend")
    stamp_flush()
    k("s_endpgm")
    k.flush()
    k("L_notg2:")
    k("s_cmp_eq_u32 s33, 7\ns_cbranch_scc1 L_final")
    stamp("kend")
    stamp_flush()
    k("s_endpgm")
    k.flush()
    k("L_final:")
    def gather(vaddr, sbase, step, lab, d0, d1, partial, dbl):
        k("s_waitcnt vmcnt(0)")
        if partial:
            k(f"v_and_b32 v38, {SM8}, {VT}\nv_and_b32 v39, {SM8}, {VT}")
        for m in range(4): k(f"s_add_u32 s{80+m}, {sbase}, {m*step}")
        ld = lambda m, B: k(f"buffer_load_dwordx2 v[{B+2*m}:{B+1+2*m}], {vaddr}, {SWS}, s{80+m} offen sc1")
        if partial and obpre:
            for i in range(8): k(f"v_mov_b32 v{32+i}, v{64+i}")
        else:
            if not partial and oadelay: k(f"s_sleep {oadelay}")
            for m in range(4):
                if partial and m == 3: k("s_mov_b32 exec_hi, 0")
                ld(m, 32)
            if partial: k("s_mov_b64 exec, -1")
        def comb(B):
            k(f"""v_add_f32 v56, v{B}, v{B+2}
v_add_f32 v57, v{B+1}, v{B+3}
v_add_f32 v58, v{B+4}, v{B+6}
v_add_f32 v59, v{B+5}, v{B+7}""")
        if poll4(lab, ld, slp=oasleep, dbl=dbl, partial=partial):
            comb(40)
            k(f"s_branch {lab}j\n{lab}ok:")
        comb(32)
        k(f"""{lab}j:
v_add_f32 {d0}, v56, v58
v_add_f32 {d1}, v57, v59
v_add_f32_dpp {d0}, {d0}, {d0} row_ror:8 row_mask:0xf bank_mask:0xf
v_add_f32_dpp {d1}, {d1}, {d1} row_ror:8 row_mask:0xf bank_mask:0xf""")
        for w in (16, 32):
            k(f"""v_mov_b32 v48, {d0}
v_mov_b32 v49, {d1}
v_permlane{w}_swap_b32 {d0}, v48
v_permlane{w}_swap_b32 {d1}, v49
v_add_f32 {d0}, {d0}, v48
v_add_f32 {d1}, {d1}, v49""")
        k(f"""v_cvt_pk_bf16_f32 v48, {d0}, {d1}
v_lshlrev_b32 {d0}, 16, v48
v_and_b32 {d1}, 0xffff0000, v48""")
    if "noffn" not in abl: gather("v112", "s84", 8 * 16384, "L_ob", "v22", "v23", True, 0)
    k("v_and_b32 v21, 0xffff0000, v20\nv_lshlrev_b32 v20, 16, v20")
    gather("v110", "s87", 16384, "L_oa", "v24", "v25", False, dbla)
    k(f"""v_add_f32 v20, v20, v24
v_add_f32 v21, v21, v25
v_cvt_pk_bf16_f32 v16, v20, v21
v_lshlrev_b32 v20, 16, v16
v_and_b32 v21, 0xffff0000, v16
v_add_f32 v20, v20, v22
v_add_f32 v21, v21, v23
v_cvt_pk_bf16_f32 v20, v20, v21
s_mov_b64 exec, 0xff
buffer_store_dword v20, v111, {SOUT}, s88 offen
s_mov_b64 exec, -1""")
    stamp("kend")
    stamp_flush()
    k(f"""s_cmp_lg_u32 s2, 0
s_cbranch_scc1 L_end
s_mov_b32 s76, {WS_E}
s_mov_b64 exec, 1
buffer_store_dword {VT}, {VZ}, {SWS}, s76 offen""")
    if probe:
        k(f"""s_memrealtime s[98:99]
s_waitcnt lgkmcnt(0)
s_sub_u32 s76, s98, s96
s_mul_i32 s76, s76, {probe}
L_probe:
s_memrealtime s[100:101]
s_waitcnt lgkmcnt(0)
s_sub_u32 s77, s100, s98
s_cmp_lt_u32 s77, s76
s_cbranch_scc1 L_probe""")
    k("s_endpgm")

    k.flush()
    k("L_ln:")
    for i in range(4):
        k(f"v_lshlrev_b32 v{100+2*i}, 16, v{96+i}\nv_and_b32 v{101+2*i}, 0xffff0000, v{96+i}")
    k("""v_add_f32 v96, v100, v101
v_add_f32 v97, v102, v103
v_add_f32 v98, v104, v105
v_add_f32 v99, v106, v107
v_add_f32 v96, v96, v97
v_add_f32 v98, v98, v99
v_add_f32 v96, v96, v98""")
    row_reduce("v_add_f32", "v96")
    xrow_reduce("v_add_f32", "v96", "v97")
    k("v_mul_f32 v96, 0x3b000000, v96")
    k("v_sub_f32 v98, v100, v96\nv_mul_f32 v97, v98, v98")
    for i in range(1, 8):
        k(f"v_sub_f32 v98, v{100+i}, v96\nv_fmac_f32 v97, v98, v98")
    row_reduce("v_add_f32", "v97")
    xrow_reduce("v_add_f32", "v97", "v98")
    k("v_mul_f32 v97, 0x3b000000, v97")
    rnd("v96", "v96"); rnd("v97", "v97")
    k("v_add_f32 v97, 0x3727c5ac, v97")
    rnd("v97", "v97")
    k("v_sqrt_f32 v97, v97")
    rnd("v97", "v97")
    k("v_rcp_f32 v98, v97")
    for i in range(0, 8, 2):
        a, b2 = 100 + i, 101 + i
        k(f"""v_sub_f32 v{a}, v{a}, v96
v_sub_f32 v{b2}, v{b2}, v96
v_cvt_pk_bf16_f32 v99, v{a}, v{b2}
v_lshlrev_b32 v{a}, 16, v99
v_and_b32 v{b2}, 0xffff0000, v99""")
    for i in range(8):
        a = 100 + i
        k(f"""v_mul_f32 v99, v{a}, v98
v_fma_f32 v{a}, -v99, v97, v{a}
v_fma_f32 v{a}, v{a}, v98, v99""")
    for i in range(4):
        k(f"v_cvt_pk_bf16_f32 v{96+i}, v{100+2*i}, v{101+2*i}")
    k(f"""s_lshl_b32 s75, s33, 10
v_add_u32 v122, s75, v120
ds_write_b128 v122, v[96:99] offset:{L_XN}""")
    lds_inc(L_CNT_XN)
    stamp("ln")
    srd(56, 24, None, WS_SIZE)
    srd(40, 8, "s74", 524288)
    k(f"""s_mov_b32 s66, 0
s_cmp_eq_u32 s33, 0
s_cbranch_scc1 L_tq
s_cmp_lt_u32 s33, 3
s_cbranch_scc1 L_f2l
s_cmp_lg_u32 s33, 4
s_cbranch_scc1 L_vload
s_bitcmp0_b32 s65, 0
s_cbranch_scc1 L_vload""")
    k(f"""v_lshrrev_b32 v121, 3, {VL}
v_lshlrev_b32 v123, 7, v121
v_lshlrev_b32 v121, 8, v121
v_lshrrev_b32 v122, 2, v111
v_add_u32 v123, v123, v122
s_lshl_b32 s75, s64, 2
s_add_u32 s75, s75, s29
s_lshl_b32 s75, s75, 11
s_add_u32 s75, s75, {WS_HP}
s_lshl_b32 s76, s26, 12
s_lshl_b32 s77, s51, 9
s_add_u32 s76, s76, s77
s_lshl_b32 s77, s29, 5
s_add_u32 s76, s76, s77
s_add_u32 s76, s76, {WS_HH}
s_branch L_tile
L_tq:
v_lshrrev_b32 v121, 3, {VL}
v_lshlrev_b32 v121, 14, v121
v_lshlrev_b32 v123, 7, {VL}
s_lshl_b32 s75, s29, 17
s_lshl_b32 s76, s50, 11
s_add_u32 s75, s75, s76
s_lshl_b32 s77, s48, 8
s_add_u32 s75, s75, s77
s_lshl_b32 s76, s50, 12
s_lshl_b32 s77, s27, 2
s_add_u32 s76, s76, s77
s_add_u32 s76, s76, {WS_HQ}
L_tile:
v_add_u32 v121, v111, v121""")
    arow_addr("v122", "v118", 10)
    k(f"""s_lshl_b32 s77, s29, 8
v_add_u32 v122, s77, v122""")
    lds_wait(L_CNT_XN, 8)
    k(f"""ds_read_b128 v[96:99], v122 offset:{L_XN}
ds_read_b128 v[100:103], v122 offset:{L_XN+128}""")
    gettags()
    k(f"""s_getreg_b32 s77, hwreg(HW_REG_XCC_ID)
s_and_b32 s77, s77, 15
s_andn2_b32 s79, {TB}, 15
s_or_b32 s77, s77, s79
v_mov_b32 v122, s77""")
    for ub in range(2):
        k(f"s_waitcnt vmcnt({8 - 8*ub})")
        for w in range(4):
            T = 104 + 8 * (w & 1)
            perms(T, 32 * ub, w)
            mfma(64 + 8 * w, 96 + 4 * ub, T, None if ub == 0 else 64 + 8 * w)
            mfma(68 + 8 * w, 96 + 4 * ub, T + 4, None if ub == 0 else 68 + 8 * w)
    for w in range(4):
        pairsum(2 * w, 2 * w + 1, 64 + 8 * w, 68 + 8 * w, SM)
    k(f"""buffer_store_dwordx4 v[0:3], v121, {SWS}, s75 offen{lst}
buffer_store_dwordx4 v[4:7], v121, {SWS}, s75 offen offset:128{lst}
s_mov_b32 exec_hi, 0
buffer_store_dword v122, v123, {SWS}, s76 offen sc1
s_mov_b64 exec, -1""")
    stamp("tpub")
    k("s_branch L_vload")
    k.flush()
    k("L_f2l:")
    k("s_bitcmp0_b32 s65, 1\ns_cbranch_scc1 L_vload")
    srd(44, 18, None, 1792 * 1024)
    k(f"""s_setprio 0
s_mov_b32 s66, 1
v_lshl_add_u32 v121, v112, 10, v111
s_lshl_b32 s75, s64, 16
s_lshl_b32 s76, s29, 8
s_add_u32 s75, s75, s76
s_sub_u32 s76, s33, 1
s_lshl_b32 s76, s76, 7
s_add_u32 s75, s75, s76
s_add_u32 s76, s75, 4096""")
    for t in range(8):
        k(f"buffer_load_dwordx4 v[{64+4*t}:{64+4*t+3}], v121, {SWA}, s{75 + t//4} offen offset:{(t%4)*1024}{kvflag}")
    k("s_branch L_vload")
    k.flush()
    k("L_vload:")
    k(f"""s_setprio 0
s_movk_i32 s77, 0x1000""")
    for t in range(16):
        k(f"buffer_load_dwordx4 v[{4*t}:{4*t+3}], v120, {SKV}, s78 offen{kvflag}\ns_add_u32 s78, s78, s77")
    stamp("vissued")
    if pre:
        k("s_cmp_lt_u32 s33, 4\ns_cbranch_scc1 L_novi")
        lds_inc(L_CNT_VI)
        k("L_novi:")
    k("""s_cmp_eq_u32 s66, 0
s_cbranch_scc1 L_noj
s_waitcnt vmcnt(16)""")
    k("L_f2:")
    arow_addr("v122", "v118", 7)
    k(f"""v_lshrrev_b32 v121, 3, {VL}
v_lshlrev_b32 v121, 11, v121
v_and_b32 v123, 7, {VL}
v_lshl_add_u32 v121, v123, 3, v121
s_lshl_b32 s75, s64, 14
s_lshl_b32 s76, s29, 9
s_add_u32 s75, s75, s76
s_sub_u32 s76, s33, 1
s_lshl_b32 s76, s76, 8
s_add_u32 s75, s75, s76
s_add_u32 s75, s75, {WS_OB}""")
    lds_wait(L_F_HN, 1)
    k(f"ds_read_b128 v[112:115], v122 offset:{L_HN}")
    gettags()
    k("s_setprio 3")
    for w in range(4):
        G = 116 + 2 * (w & 1)
        perms(96, 64, w)
        mfma(104, 112, 96, None)
        mfma(108, 112, 100, None)
        pairsum(G, G + 1, 104, 108)
        k(f"buffer_store_dwordx2 v[{G}:{G+1}], v121, {SWS}, s75 offen offset:{64*w} sc1")
    k("s_setprio 0")
    stamp("tpub")
    k("L_noj:")
    k(f"""v_lshrrev_b32 v108, 4, {VL}
v_and_b32 v110, 3, {VL}
v_bfe_u32 v109, {VL}, 2, 2
v_lshlrev_b32 v122, 7, v110
v_lshl_add_u32 v122, v108, 5, v122
s_lshl_b32 s75, s33, 9
s_add_u32 s75, s75, {L_P}
v_add_u32 v122, s75, v122
v_mov_b32 v123, {L_ZERO}""")
    for dl in range(4):
        k(f"v_cmp_eq_u32 vcc, {dl}, v109\nv_cndmask_b32 v{112+dl}, v123, v122, vcc")
    k(f"""s_lshl_b32 s75, s33, 2
v_mov_b32 v123, s75
s_and_b32 s75, s33, 3
s_lshl_b32 s76, s75, 2
v_mov_b32 v121, s76
s_lshl_b32 s75, s75, 11
v_add_u32 v120, s75, v120
v_lshlrev_b32 v122, 2, {VL}
v_add_u32 v122, s75, v122""")
    lds_wait(L_F_P, 1, vaddr="v123")
    for ub in range(2):
        for dl in range(4):
            r = 64 + 16 * ub + 4 * dl
            k(f"ds_read_b128 v[{r}:{r+3}], v{112+dl} offset:{16*ub}")
    k("s_cmp_ge_u32 s33, 4\ns_cbranch_scc1 L_g3")
    for i in range(8): k(f"v_mov_b32 v{96+i}, 0")
    k("s_branch L_pv\nL_g3:")
    lds_wait(L_F_D, 1, vaddr="v121")
    k(f"""ds_read_b128 v[96:99], v120 offset:{L_DX}
ds_read_b128 v[100:103], v120 offset:{L_DX+1024}
L_pv:
s_waitcnt lgkmcnt(0)
s_waitcnt vmcnt(8)""")
    for w in range(4):
        T = 104 + 8 * (w & 1)
        perms(T, 0, w)
        for hh in range(2):
            di = 2 * w + hh; x = di >> 2; dl = di & 3
            mfma(96 + 4 * x, 64 + 4 * dl, T + 4 * hh, 96 + 4 * x)
    for p in range(4):
        k(f"s_waitcnt vmcnt({6 - 2*p})")
        if p == 3: stamp("varr")
        for w in range(4):
            k(f"v_perm_b32 v{8*w+p}, v{32+4*(2*p+1)+w}, v{32+4*(2*p)+w}, s34")
            k(f"v_perm_b32 v{8*w+4+p}, v{32+4*(2*p+1)+w}, v{32+4*(2*p)+w}, s35")
            if p == 3 and w >= 1:
                di = 2 * (w - 1)
                for d in (di, di + 1):
                    mfma(96 + 4 * (d >> 2), 80 + 4 * (d & 3), 4 * d, 96 + 4 * (d >> 2))
    for d in (6, 7):
        mfma(96 + 4 * (d >> 2), 80 + 4 * (d & 3), 4 * d, 96 + 4 * (d >> 2))
    k("s_cmp_ge_u32 s33, 4\ns_cbranch_scc1 L_g3b")
    k(f"""ds_write_b128 v120, v[96:99] offset:{L_DX}
ds_write_b128 v120, v[100:103] offset:{L_DX+1024}""")
    lds_inc(L_F_D, vaddr="v121")
    stamp("pvdone")
    stamp_flush()
    k("s_endpgm")
    k.flush()
    k("L_g3b:")
    for x in range(2):
        for h in range(4):
            k(f"ds_write_b32 v122, v{96+4*x+h} offset:{L_OP + h*512 + x*256}")
    k("s_waitcnt lgkmcnt(0)")
    stamp("pvdone")
    k("s_barrier")
    stamp_flush()
    k("L_end:")
    k("s_endpgm")
    k("L_codeend:")

    T = []
    T.append('.section .rodata,"a"'); T.append(".p2align 6")
    T.append(f".amdhsa_kernel {NAME}_kernel")
    T.append("  .amdhsa_next_free_vgpr 128"); T.append("  .amdhsa_next_free_sgpr 102"); T.append("  .amdhsa_accum_offset 128")
    T.append("  .amdhsa_group_segment_fixed_size 0"); T.append("  .amdhsa_kernarg_size 88"); T.append("  .amdhsa_user_sgpr_count 2")
    T.append("  .amdhsa_user_sgpr_kernarg_segment_ptr 1"); T.append("  .amdhsa_system_sgpr_workgroup_id_x 1")
    T.append("  .amdhsa_float_denorm_mode_32 3")
    T.append(".end_amdhsa_kernel")
    open(fname, "w").write("\n".join(H) + "\n" + k.text() + "\n".join(T) + "\n")

SA = {"start": 0, "hint": 1, "qready": 2, "ln": 1, "tpub": 1, "vissued": 2}
SB = {"start": 0, "qkdone": 1, "kready": 2, "varr": 1, "pvdone": 2}
SC = {"start": 0, "bar2": 1, "kend": 2, "varr": 1, "pvdone": 2}
SE = {"start": 0, "bar3": 1, "kend": 2, "varr": 1, "pvdone": 2}
SD = {"start": 0, "kissued": 1, "qready": 2, "vissued": 1, "varr": 2}
if __name__ == "__main__":
    gen("k18.s")
    gen("k18_nob_sc.s", stamps=SC, obpre=0)
    gen("k18_d0_sc.s", stamps=SC)
    gen("k18_d4_sc.s", stamps=SC, oadelay=4)
    gen("k18_d8_sc.s", stamps=SC, oadelay=8)
    gen("k18_d12_sc.s", stamps=SC, oadelay=12)
```

```python
import sys, argparse
from asmlib import Asm
NAME = "parallel_sum__sliding_block_cached__dense_activation_relu__decode"

WS_QP = 0x000000
WS_OX = 0x080000
WS_OA = 0x100000
WS_OB = 0x180000
WS_HP = 0x1F0000
WS_ST = 0x228000
WS_HQ = 0x230000
WS_HH = 0x238000
WS_E  = 0x240000
WS_SIZE = 0x241000
STAMP_OFF = 256 << 20
L_CNT_XN = 0; L_MODE = 4; L_F_Q = 8; L_F_HN = 12; L_CNT_K = 16; L_CNT_L = 20; L_TAG = 24; L_F_P = 32
L_ZERO = 64; L_F_D = 96; L_CNT_VI = 112; L_CNT_WO = 116; L_ZEND = 128
L_STAT = 128; L_Q = 1024; L_HN = 2048; L_P = 3072; L_XN = 7168; L_OP = 15360; L_DX = L_OP + 8192; L_O16 = L_DX + 8192; L_WT = L_O16 + 2048; L_END = L_WT + 16384

LOG2E = 0x3fb8aa3b
SCALE = 0x3db504f3
SPIN = 1 << 16

def gen(fname, stamps=None, kvflag=" nt", psleep=0, abl=(), kfirst=0, lst=" sc1", tagmask=0xf, rxor=0, qx=5, ox=7, qrot=0, ffnmap="old", fx=0, probe=0, oasleep=0, dblx=0, dbla=4, pre=8, obpre=0, oadelay=0, wfl=None, hst=" sc1", strict=1):
    k = Asm()
    if wfl is None: wfl = kvflag
    H = []
    H.append(open("cdna_kernels/%s.s.ref" % NAME).read().split("; Override launch")[0].rstrip("\n"))
    H.append(f"; @launch grid=(256,1,1) block=(1024,1,1) lds={L_END}")
    H.append('.amdgcn_target "amdgcn-amd-amdhsa--gfx950"')
    H.append(".text"); H.append(f".globl {NAME}_kernel"); H.append(".p2align 8"); H.append(f".type {NAME}_kernel,@function")
    H.append(f"{NAME}_kernel:")

    VL = "v126"; VZ = "v127"; VT = "v124"
    TA, TB = "s68", "s69"
    SM = "s3"
    def srd(d, lo, off, size):
        if off is None:
            k(f"s_mov_b32 s{d}, s{lo}\ns_mov_b32 s{d+1}, s{lo+1}")
        else:
            k(f"s_add_u32 s{d}, s{lo}, {off}\ns_addc_u32 s{d+1}, s{lo+1}, 0")
        k(f"s_mov_b32 s{d+2}, {size}\ns_mov_b32 s{d+3}, 0x20000")
    SX, SKV, SWA, SWS, SOUT = [f"s[{a}:{a+3}]" for a in (36, 40, 44, 56, 60)]

    def stamp(name):
        if not stamps or name not in stamps: return
        sl = stamps[name]
        k(f"s_memrealtime s[{96+2*sl}:{97+2*sl}]")
    def stamp_flush():
        if not stamps: return
        k(f"""s_waitcnt lgkmcnt(0)
s_mov_b64 exec, 1
s_lshl_b32 s76, s2, 9
s_lshl_b32 s77, s31, 5
s_add_u32 s76, s76, s77
s_add_u32 s76, s76, {STAMP_OFF}
s_add_u32 s76, s24, s76
s_addc_u32 s77, s25, 0
v_mov_b32 v0, s96
v_mov_b32 v1, s97
v_mov_b32 v2, s98
v_mov_b32 v3, s99
v_mov_b32 v4, s100
v_mov_b32 v5, s101
global_store_dwordx4 {VZ}, v[0:3], s[76:77]
global_store_dwordx2 {VZ}, v[4:5], s[76:77] offset:16""")

    def lds_wait(addr, val, vaddr=VZ, vt="v125", slp=1):
        lp = k.label("Lw"); dn = k.label("Ld")
        k(f"s_mov_b32 s72, {SPIN}")
        k(f"{lp}:")
        k(f"""ds_read_b32 {vt}, {vaddr} offset:{addr}
s_waitcnt lgkmcnt(0)
v_readfirstlane_b32 s73, {vt}
s_cmp_ge_u32 s73, {val}
s_cbranch_scc1 {dn}
{"s_sleep 1" if slp else "s_nop 0"}
s_sub_u32 s72, s72, 1
s_cmp_lg_u32 s72, 0
s_cbranch_scc1 {lp}""")
        k(f"{dn}:")
    def lds_inc(addr, vaddr=VZ, vt="v125"):
        k(f"""s_waitcnt lgkmcnt(0)
v_mov_b32 {vt}, 1
s_mov_b64 exec, 1
ds_add_u32 {vaddr}, {vt} offset:{addr}
s_mov_b64 exec, -1""")
    def rnd(dst, src):
        k(f"v_cvt_pk_bf16_f32 {dst}, {src}, {src}\nv_lshlrev_b32 {dst}, 16, {dst}")
    def row_reduce(op, v, steps=(8, 4, 2, 1)):
        for n in steps:
            k(f"{op}_dpp {v}, {v}, {v} row_ror:{n} row_mask:0xf bank_mask:0xf")
    def xrow_reduce(op, v, t, which=(16, 32)):
        for w in which:
            k(f"v_mov_b32 {t}, {v}\nv_permlane{w}_swap_b32 {v}, {t}\n{op} {v}, {v}, {t}")
    def perms(T, W, w):
        for p in range(4):
            k(f"v_perm_b32 v{T+p}, v{W+4*(2*p+1)+w}, v{W+4*(2*p)+w}, s34")
        for p in range(4):
            k(f"v_perm_b32 v{T+4+p}, v{W+4*(2*p+1)+w}, v{W+4*(2*p)+w}, s35")
    def mfma(D, A, B, C):
        c = "0" if C is None else f"v[{C}:{C+3}]"
        k(f"v_mfma_f32_16x16x32_bf16 v[{D}:{D+3}], v[{A}:{A+3}], v[{B}:{B+3}], {c}")
    def gettags():
        k(f"""ds_read_b64 v[124:125], {VZ} offset:{L_TAG}
s_waitcnt lgkmcnt(0)
v_readfirstlane_b32 {TA}, v124
v_readfirstlane_b32 {TB}, v125""")
    SM8 = "s52"
    def settag(r, m=None):
        k(f"v_bfi_b32 v{r}, {m or SM8}, {VT}, v{r}")
    def tagacc(regs, acc, t1, t2):
        regs = list(regs)
        k(f"v_xor_b32 {acc}, {TA}, v{regs[0]}\nv_xor_b32 {t1}, {TA}, v{regs[1]}\nv_or_b32 {acc}, {acc}, {t1}")
        for i in range(2, len(regs), 2):
            k(f"v_xor_b32 {t1}, {TA}, v{regs[i]}\nv_xor_b32 {t2}, {TA}, v{regs[i+1]}\nv_or3_b32 {acc}, {acc}, {t1}, {t2}")
        k(f"v_and_b32 {acc}, {SM}, {acc}")
    def pairsum(G0, G1, D0, D1, m=None):
        k(f"""v_add_f32_dpp v{G0}, v{D0+1}, v{D0} row_shl:8 row_mask:0xf bank_mask:0x3
v_add_f32_dpp v{G1}, v{D1+1}, v{D1} row_shl:8 row_mask:0xf bank_mask:0x3
v_add_f32_dpp v{G0}, v{D0+2}, v{D0+3} row_shr:8 row_mask:0xf bank_mask:0xc
v_add_f32_dpp v{G1}, v{D1+2}, v{D1+3} row_shr:8 row_mask:0xf bank_mask:0xc""")
        settag(G0, m); settag(G1, m)
    def arow_addr(vd, vt, rowshift):
        k(f"""v_bfe_u32 {vd}, {VL}, 1, 3
v_lshlrev_b32 {vd}, {rowshift}, {vd}
v_and_b32 {vt}, 1, {VL}
v_lshl_add_u32 {vd}, {vt}, 4, {vd}
v_lshrrev_b32 {vt}, 4, {VL}
v_lshl_add_u32 {vd}, {vt}, 5, {vd}""")
    def poll4(lab, ld, slp=None, dbl=0, partial=False, w1=False):
        slp = psleep if slp is None else slp
        def check(B, ok):
            for p in range(4):
                k(f"v_bitop3_b32 v{48+p}, v{B+2*p}, v{B+1+2*p}, {VT} bitop3:0x7e")
            for p in range(4):
                k(f"v_cmp_ne_u32_sdwa s[{4+2*p}:{5+2*p}], v{48+p}, {VZ} src0_sel:BYTE_0 src1_sel:DWORD")
            k(f"""s_or_b64 s[12:13], s[4:5], s[6:7]
s_or_b64 s[14:15], s[8:9], s[10:11]
s_or_b64 s[12:13], s[12:13], s[14:15]
s_cbranch_scc0 {ok}""")
        def reissue(B):
            for m in range(4):
                k(f"s_cmp_lg_u64 s[{4+2*m}:{5+2*m}], 0\ns_cselect_b64 exec, -1, 0")
                if partial and m == 3: k("s_mov_b32 exec_hi, 0")
                ld(m, B)
            k("s_mov_b64 exec, -1")
        k(f"s_mov_b32 s72, {SPIN}")
        if not dbl:
            if w1:
                k(f"s_waitcnt vmcnt(1)\ns_branch {lab}c")
            k(f"{lab}poll:\ns_waitcnt vmcnt(0)\n{lab}c:")
            check(32, f"{lab}ok")
            if slp: k(f"s_sleep {slp}")
            reissue(32)
            k(f"""s_sub_u32 s72, s72, 1
s_cmp_lg_u32 s72, 0
s_cbranch_scc1 {lab}poll
{lab}ok:""")
        else:
            k("s_waitcnt vmcnt(0)")
            check(32, f"{lab}ok")
            for i in range(8): k(f"v_mov_b32 v{40+i}, v{32+i}")
            reissue(32)
            k(f"s_sleep {dbl}")
            reissue(40)
            k(f"{lab}poll:\ns_waitcnt vmcnt(4)")
            check(32, f"{lab}ok")
            reissue(32)
            k("s_waitcnt vmcnt(4)")
            check(40, f"{lab}okb")
            reissue(40)
            k(f"""s_sub_u32 s72, s72, 1
s_cmp_lg_u32 s72, 0
s_cbranch_scc1 {lab}poll
{lab}okb:
s_waitcnt vmcnt(0)""" if False else f"""s_sub_u32 s72, s72, 1
s_cmp_lg_u32 s72, 0
s_cbranch_scc1 {lab}poll
{lab}okb:""")
            return True
        return False

    stamp("start")
    if probe: k("s_memrealtime s[96:97]")
    k(f"""s_cmp_ge_u32 s2, 256
s_cbranch_scc1 L_end
s_load_dwordx16 s[4:19], s[0:1], 0
s_load_dwordx4 s[20:23], s[0:1], 64
s_load_dwordx2 s[24:25], s[0:1], 80
s_and_b32 s26, s2, 7
s_lshr_b32 s27, s2, 3
s_xor_b32 s27, s27, {rxor}
s_lshr_b32 s28, s27, 2
s_and_b32 s29, s27, 3
s_lshl_b32 s30, s26, 2
s_add_u32 s30, s30, s29
s_lshl_b32 s32, s28, 3
s_add_u32 s32, s32, s26
s_mov_b32 s34, 0x05040100
s_mov_b32 s35, 0x07060302
s_movk_i32 {SM}, {tagmask}
s_movk_i32 s52, 0xff
v_and_b32 {VL}, 63, v0
v_mov_b32 {VZ}, 0
v_lshrrev_b32 v1, 6, v0
v_lshlrev_b32 v2, 2, v0
v_readfirstlane_b32 s31, v1
v_cmp_gt_u32 vcc, {L_ZEND//4}, v0
s_and_saveexec_b64 s[70:71], vcc
ds_write_b32 v2, {VZ}
s_mov_b64 exec, s[70:71]
s_lshl_b32 s74, s28, 24
s_lshl_b32 s75, s26, 21
s_add_u32 s74, s74, s75
s_add_u32 s74, s74, {6144*256}
s_and_b32 s33, s31, 7
v_lshrrev_b32 v108, 4, {VL}
v_and_b32 v111, 7, {VL}
v_lshlrev_b32 v111, 4, v111
v_bfe_u32 v112, {VL}, 3, 1
v_lshlrev_b32 v112, 3, v112
v_lshl_add_u32 v112, v108, 4, v112
v_lshlrev_b32 v120, 4, {VL}
s_and_b32 s75, s33, 3
s_lshl_b32 s75, s75, 10
s_lshr_b32 s76, s33, 2
s_lshl_b32 s76, s76, 16
s_add_u32 s75, s75, s76
s_lshl_b32 s76, s29, 17
s_add_u32 s78, s75, s76
s_mul_i32 s50, s28, {qrot}
s_add_u32 s50, s50, s26
s_and_b32 s50, s50, 7
s_xor_b32 s48, s28, {qx}
s_xor_b32 s49, s28, {ox}
s_nop 0""")
    if ffnmap == "old":
        k("""s_lshr_b32 s64, s28, 1
s_lshl_b32 s64, s64, 3
s_add_u32 s64, s64, s26
s_and_b32 s65, s28, 1
s_add_u32 s65, s65, 1
s_cmp_ge_u32 s64, 28
s_cselect_b32 s65, 0, s65
s_add_u32 s51, s28, 1""")
    else:
        k(f"""s_lshr_b32 s64, s26, 1
s_mul_i32 s64, s64, 7
s_xor_b32 s51, s28, {fx}
s_add_u32 s64, s64, s51
s_cmp_eq_u32 s51, 7
s_cselect_b32 s65, 0, 3
s_and_b32 s51, s26, 1
s_cmp_eq_u32 s51, {0 if ffnmap == "even" else 1}
s_cselect_b32 s65, s65, 0
s_mov_b32 s51, s28""")
    k("s_waitcnt lgkmcnt(0)")
    if "noffn" in abl: k("s_mov_b32 s65, 0")
    k("s_cmp_lt_u32 s31, 8\ns_cbranch_scc1 L_kwave")
    k("s_setprio 3")
    srd(36, 4, None, 8192)
    k(f"""s_lshl_b32 s75, s33, 10
buffer_load_dwordx4 v[96:99], v120, {SX}, s75 offen
s_cmp_eq_u32 s33, 0
s_cbranch_scc1 L_setq
s_cmp_lg_u32 s33, 4
s_cbranch_scc1 L_nq1
s_bitcmp0_b32 s65, 0
s_cbranch_scc1 L_nopf""")
    srd(44, 16, None, 512 * 3584)
    k(f"""s_movk_i32 s77, 3584
s_mov_b32 s79, {57*3584}
s_mul_i32 s75, s29, {128*3584}
s_lshl_b32 s76, s64, 7
s_add_u32 s75, s75, s76
s_branch L_tload
L_setq:""")
    srd(44, 10, None, 4 << 20)
    k(f"""s_mov_b32 s76, {WS_E}
s_load_dword s68, s[24:25], s76
s_movk_i32 s77, 0x2000
s_mov_b32 s79, {57*8192}
s_lshl_b32 s75, s29, 20
s_lshl_b32 s76, s50, 10
s_add_u32 s75, s75, s76
s_lshl_b32 s76, s48, 7
s_add_u32 s75, s75, s76
L_tload:
v_mul_lo_u32 v121, v112, s77
v_add_u32 v121, v121, v111""")
    for ub in range(2):
        for t in range(8):
            r = 32 * ub + 4 * t
            k(f"buffer_load_dwordx4 v[{r}:{r+3}], v121, {SWA}, s75 offen{wfl}")
            k("s_add_u32 s75, s75, s77" if t < 7 else "s_add_u32 s75, s75, s79")
    k(f"""s_barrier
s_cmp_lg_u32 s33, 0
s_cbranch_scc1 L_notag
s_waitcnt lgkmcnt(0)
s_add_u32 {TA}, {TA}, 1
s_mul_i32 {TB}, {TA}, 0x9e3779b1
s_xor_b32 {TB}, {TB}, 0x5bd1e995
v_mov_b32 v124, {TA}
v_mov_b32 v125, {TB}
ds_write_b64 {VZ}, v[124:125] offset:{L_TAG}
L_notag:
s_waitcnt vmcnt(16)
s_branch L_ln""")
    k("L_nq1:")
    k(f"""s_cmp_lt_u32 s33, 6
s_cbranch_scc1 L_nopf
s_getpc_b64 s[80:81]
L_pc:
s_sub_u32 s80, s80, L_pc-{NAME}_kernel
s_subb_u32 s81, s81, 0
s_mov_b32 s82, L_codeend-{NAME}_kernel
s_mov_b32 s83, 0x20000
s_lshl_b32 s75, s29, 1
s_add_u32 s75, s75, s33
s_sub_u32 s75, s75, 6
s_lshl_b32 s75, s75, 11
buffer_load_dwordx4 v[0:3], v120, s[80:83], s75 offen
buffer_load_dwordx4 v[0:3], v120, s[80:83], s75 offen offset:1024
s_barrier
s_waitcnt vmcnt(2)
s_branch L_ln
L_nopf:
s_barrier
s_waitcnt vmcnt(0)
s_branch L_ln""")

    k.flush()
    k("L_kwave:")
    srd(40, 6, "s74", 524288)
    k(f"""v_bfe_u32 v109, {VL}, 2, 2
v_and_b32 v110, 3, {VL}
v_lshlrev_b32 v121, 8, v109
v_lshl_add_u32 v121, v108, 6, v121
v_lshl_add_u32 v121, v110, 4, v121
s_movk_i32 s77, 0x1000""")
    for t in range(16):
        if t == kfirst: k("s_barrier")
        k(f"buffer_load_dwordx4 v[{4*t}:{4*t+3}], v121, {SKV}, s78 offen{kvflag}\ns_add_u32 s78, s78, s77")
    stamp("kissued")
    srd(56, 24, None, WS_SIZE)
    srd(36, 4, None, 8192)
    srd(60, 20, None, 8192)
    k(f"""v_lshlrev_b32 v113, 8, v110
v_lshl_add_u32 v113, v108, 6, v113
v_lshl_add_u32 v113, v109, 4, v113
v_lshlrev_b32 v114, 7, v110
v_lshl_add_u32 v114, v108, 5, v114
v_lshl_add_u32 v114, v109, 3, v114
s_lshl_b32 s76, s33, 9
v_add_u32 v114, s76, v114
v_bfe_u32 v116, {VL}, 2, 3
v_lshlrev_b32 v116, 5, v116
v_lshl_add_u32 v116, v110, 2, v116
s_lshl_b32 s76, s33, 5
v_lshlrev_b32 v117, 2, {VL}
v_add_u32 v117, s76, v117
s_lshl_b32 s76, s33, 2
v_mov_b32 v123, s76
v_mov_b32 v122, 0""")
    lds_wait(L_CNT_XN, 8)
    gettags()
    k(f"""s_cmp_ge_u32 s33, 2
s_cbranch_scc1 L_nog
s_lshl_b32 s84, s26, 12
s_lshl_b32 s76, s27, 7
s_add_u32 s79, s84, s76
s_cmp_eq_u32 s33, 1
s_cbranch_scc1 L_gh
s_add_u32 s79, s79, {WS_HQ}
s_lshl_b32 s75, s28, 14
s_lshl_b32 s76, s26, 11
s_add_u32 s75, s75, s76
s_mov_b32 s66, 131072
s_mov_b32 s67, 0xff800000
s_movk_i32 s77, {L_Q}
v_mov_b32 v122, {L_F_Q}
s_branch L_g
L_gh:
s_bitcmp0_b32 s65, 1
s_cbranch_scc1 L_nog
s_add_u32 s79, s79, {WS_HH}
s_lshl_b32 s75, s64, 13
s_add_u32 s75, s75, {WS_HP}
s_movk_i32 s66, 0x800
s_mov_b32 s67, 0
s_movk_i32 s77, {L_HN}
v_mov_b32 v122, {L_F_HN}
L_g:
v_lshlrev_b32 v121, 7, v108
v_add3_u32 v121, v121, v111, s77
v_bfe_u32 v118, {VL}, 3, 1
v_lshl_add_u32 v121, v118, 3, v121
s_mov_b32 s72, {SPIN}""")
    k(f"""L_fpoll:
s_load_dwordx16 s[4:19], s[24:25], s79 glc
s_load_dwordx16 s[80:95], s[24:25], s79 offset:64 glc
s_waitcnt lgkmcnt(0)
s_min_u32 s73, s4, s5
s_max_u32 s76, s4, s5""")
    for i in list(range(6, 20)) + list(range(80, 96)):
        k(f"s_min_u32 s73, s73, s{i}\ns_max_u32 s76, s76, s{i}")
    k(f"""s_xor_b32 s70, s73, s76
s_xor_b32 s73, s73, {TB}
s_xor_b32 s76, s76, {TB}
s_or_b32 s73, s73, s76
s_cmp_lt_u32 s73, 16
s_cbranch_scc1 L_fok
s_sleep 2
s_sub_u32 s72, s72, 1
s_cmp_lg_u32 s72, 0
s_cbranch_scc1 L_fpoll
s_mov_b32 s70, 1
L_fok:
s_cmp_lg_u32 s33, 0
s_cbranch_scc1 L_nomode
s_cmp_eq_u32 s70, 0
s_cselect_b32 s70, 1, 0
v_mov_b32 v118, s70
ds_write_b32 {VZ}, v118 offset:{L_MODE}
L_nomode:""")
    stamp("hint")
    k(f"""s_mov_b32 s72, {SPIN}
L_qpoll:
s_mov_b32 s76, s75""")
    for ks in range(4):
        k(f"""buffer_load_dwordx4 v[{64+8*ks}:{64+8*ks+3}], v120, {SWS}, s76 offen sc1
buffer_load_dwordx4 v[{64+8*ks+4}:{64+8*ks+7}], v120, {SWS}, s76 offen offset:1024 sc1
s_add_u32 s76, s76, s66""")
    k("s_waitcnt vmcnt(0)")
    tagacc(range(64, 96), "v96", "v97", "v98")
    k(f"""v_cmp_ne_u32 vcc, 0, v96
s_cbranch_vccz L_qok
s_sub_u32 s72, s72, 1
s_cmp_lg_u32 s72, 0
s_cbranch_scc1 L_qpoll
L_qok:""")
    for i in range(8):
        k(f"v_add_f32 v{64+i}, v{64+i}, v{72+i}\nv_add_f32 v{80+i}, v{80+i}, v{88+i}")
    for i in range(8):
        k(f"v_add_f32 v{64+i}, v{64+i}, v{80+i}")
    for i in range(8):
        k(f"v_max_f32 v{64+i}, s67, v{64+i}")
    for i in range(4):
        k(f"v_cvt_pk_bf16_f32 v{96+i}, v{64+2*i}, v{65+2*i}")
    k(f"""ds_write_b64 v121, v[96:97]
ds_write_b64 v121, v[98:99] offset:512""")
    lds_inc(0, vaddr="v122")
    k("L_nog:")
    lds_wait(L_F_Q, 1)
    k(f"ds_read_b128 v[96:99], v113 offset:{L_Q}\nds_read_b32 v118, {VZ} offset:{L_MODE}\ns_waitcnt vmcnt(0) lgkmcnt(0)\nv_readfirstlane_b32 s67, v118")
    if qrot: k("s_mov_b32 s67, 1")
    stamp("qready")
    def Dreg(t): return 100 if t == 0 else 4 * (t - 1)
    def qk_step(t, i):
        D = Dreg(t); tb = t >> 2; R = 104 + (t & 3)
        qs = [q for q in range(4) if q != tb]
        q = qs[i]; n = (4 * (tb - q)) % 16
        src1 = f"v{D+tb}" if i == 0 else f"v{R}"
        k(f"v_add_f32_dpp v{R}, v{D+q}, {src1} row_ror:{n} row_mask:0xf bank_mask:{1 << tb:#x}")
    for t in range(16 + 5):
        if t < 16:
            mfma(Dreg(t), 4 * t, 96, None)
        for i in range(3):
            tt = t - 3 - i
            if 0 <= tt < 16: qk_step(tt, i)
    k(f"""s_mov_b32 s76, {SCALE:#x}
s_mov_b32 s77, {LOG2E:#x}
v_cvt_pk_bf16_f32 v0, v104, v105
v_cvt_pk_bf16_f32 v1, v106, v107
v_lshlrev_b32 v2, 16, v0
v_and_b32 v3, 0xffff0000, v0
v_lshlrev_b32 v4, 16, v1
v_and_b32 v5, 0xffff0000, v1
v_mul_f32 v2, s76, v2
v_mul_f32 v3, s76, v3
v_mul_f32 v4, s76, v4
v_mul_f32 v5, s76, v5
v_cvt_pk_bf16_f32 v0, v2, v3
v_cvt_pk_bf16_f32 v1, v4, v5
v_lshlrev_b32 v2, 16, v0
v_and_b32 v3, 0xffff0000, v0
v_lshlrev_b32 v4, 16, v1
v_and_b32 v5, 0xffff0000, v1
v_max3_f32 v6, v2, v3, v4
v_max_f32 v6, v6, v5""")
    row_reduce("v_max_f32", "v6", (4, 8))
    xrow_reduce("v_max_f32", "v6", "v7")
    k(f"""s_mov_b64 exec, 0xf
ds_write_b32 v117, v6 offset:{L_STAT}
s_mov_b64 exec, -1""")
    lds_inc(L_CNT_K)
    lds_wait(L_CNT_K, 8)
    k(f"ds_read_b32 v6, v116 offset:{L_STAT}\ns_waitcnt lgkmcnt(0)")
    row_reduce("v_max_f32", "v6", (4, 8))
    xrow_reduce("v_max_f32", "v6", "v7", (16,))
    for i in range(4): k(f"v_sub_f32 v{2+i}, v{2+i}, v6")
    for i in range(4): k(f"v_mul_f32 v{2+i}, s77, v{2+i}")
    for i in range(4): k(f"v_exp_f32 v{2+i}, v{2+i}")
    k(f"""v_cvt_pk_bf16_f32 v0, v2, v3
v_cvt_pk_bf16_f32 v1, v4, v5
ds_write_b64 v114, v[0:1] offset:{L_P}
v_add_f32 v8, v2, v3
v_add_f32 v9, v4, v5
v_add_f32 v8, v8, v9""")
    row_reduce("v_add_f32", "v8", (4, 8))
    xrow_reduce("v_add_f32", "v8", "v7")
    k(f"""v_mov_b32 v11, 1
s_mov_b64 exec, 0xf
ds_write_b32 v117, v8 offset:{L_STAT+16}
s_mov_b64 exec, -1
s_waitcnt lgkmcnt(0)
s_mov_b64 exec, 1
ds_write_b32 v123, v11 offset:{L_F_P}
ds_add_u32 {VZ}, v11 offset:{L_CNT_L}
s_mov_b64 exec, -1""")
    stamp("qkdone")
    k("s_cmp_lg_u32 s33, 6\ns_cbranch_scc1 L_nostat")
    lds_wait(L_CNT_L, 8)
    k(f"""ds_read_b32 v8, v116 offset:{L_STAT+16}
v_mov_b32 v7, {TA}
v_mov_b32 v9, {TB}
s_lshl_b32 s76, s32, 9
s_add_u32 s76, s76, {WS_ST}
s_lshl_b32 s75, s29, 4
s_add_u32 s76, s76, s75
v_lshlrev_b32 v10, 7, {VL}
s_waitcnt lgkmcnt(0)""")
    row_reduce("v_add_f32", "v8", (4, 8))
    xrow_reduce("v_add_f32", "v8", "v11", (16,))
    k(f"""s_mov_b64 exec, 0xf
buffer_store_dwordx4 v[6:9], v10, {SWS}, s76 offen sc1
s_mov_b64 exec, -1""")
    k("L_nostat:")
    k("s_cmp_lg_u32 s33, 7\ns_cbranch_scc1 L_nofin")
    k(f"""v_lshrrev_b32 v108, 3, {VL}
v_lshrrev_b32 v118, 1, v111
v_lshl_add_u32 v110, v108, 11, v118
v_lshl_add_u32 v112, v108, 14, v118
s_lshl_b32 s87, s28, 16
s_lshl_b32 s76, s30, 6
s_add_u32 s87, s87, s76
s_add_u32 s87, s87, {WS_OA}
s_lshl_b32 s84, s28, 11
s_add_u32 s84, s84, s76
s_add_u32 s84, s84, {WS_OB}
s_lshl_b32 s88, s28, 10
s_lshl_b32 s76, s26, 7
s_add_u32 s88, s88, s76
s_lshl_b32 s76, s29, 2
s_add_u32 s88, s88, s76
buffer_load_dword v20, v111, {SX}, s88 offen""")
    k("L_nofin:")
    k("v_and_b32 v123, 12, v123")
    lds_wait(L_F_D, 1, vaddr="v123")
    k(f"""s_lshl_b32 s82, s33, 3
s_add_u32 s82, s82, s26
s_lshl_b32 s89, s82, 13
s_lshl_b32 s82, s82, 9
s_lshl_b32 s83, s29, 7
s_add_u32 s82, s82, s83
s_add_u32 s82, s82, {WS_ST}
s_lshl_b32 s83, s29, 9
s_add_u32 s89, s89, s83
s_add_u32 s89, s89, {WS_OX}
s_add_u32 s90, s89, 4096
s_mov_b32 s72, {SPIN}
L_stpoll:
s_load_dwordx16 s[4:19], s[24:25], s82 glc
s_waitcnt lgkmcnt(0)
s_mov_b32 s73, 0""")
    for p in range(4):
        k(f"""s_xor_b32 s83, s{4+4*p+1}, {TA}
s_or_b32 s73, s73, s83
s_xor_b32 s83, s{4+4*p+3}, {TB}
s_or_b32 s73, s73, s83""")
    k(f"""s_cmp_eq_u32 s73, 0
s_cbranch_scc1 L_stok
s_sleep 12
s_sub_u32 s72, s72, 1
s_cmp_lg_u32 s72, 0
s_cbranch_scc1 L_stpoll
L_stok:
v_mov_b32 v56, s4
v_max_f32 v56, s8, v56
v_max_f32 v56, s12, v56
v_max_f32 v56, s16, v56""")
    for p in range(4): k(f"v_sub_f32 v{52+p}, s{4+4*p}, v56")
    for p in range(4): k(f"v_mul_f32 v{52+p}, s77, v{52+p}")
    for p in range(4): k(f"v_exp_f32 v{52+p}, v{52+p}")
    k(f"""v_mul_f32 v56, s6, v52
v_fmac_f32 v56, s10, v53
v_fmac_f32 v56, s14, v54
v_fmac_f32 v56, s18, v55
v_rcp_f32 v56, v56""")
    for p in range(4): k(f"v_mul_f32 v{52+p}, v{52+p}, v56")
    k(f"""s_lshl_b32 s76, s33, 8
v_lshlrev_b32 v62, 2, {VL}
v_add_u32 v62, s76, v62
v_lshlrev_b32 v61, 3, {VL}
s_lshl_b32 s78, s32, 2
s_add_u32 s78, s78, s29
s_lshl_b32 s78, s78, 11
s_add_u32 s78, s78, {WS_OX}""")
    ldx = lambda m, B: k(f"buffer_load_dwordx2 v[{B+2*m}:{B+1+2*m}], v61, {SWS}, s{89 + m//2} offen offset:{2048*(m%2)} sc1")
    if pre:
        lds_wait(L_CNT_VI, pre)
        for m in range(4): ldx(m, 32)
        if obpre:
            k(f"""s_cmp_lg_u32 s33, 7
s_cbranch_scc1 L_noob
v_and_b32 v70, {SM8}, {VT}
v_and_b32 v71, {SM8}, {VT}""")
            for m in range(4):
                if m == 3: k("s_mov_b32 exec_hi, 0")
                k(f"s_add_u32 s85, s84, {m*8*16384}\nbuffer_load_dwordx2 v[{64+2*m}:{65+2*m}], v112, {SWS}, s85 offen sc1")
            k("s_mov_b64 exec, -1\nL_noob:")
    k("s_cmp_eq_u32 s67, 1")
    stamp("kready")
    k("s_barrier")
    stamp("bar2")
    k(f"""ds_read_b32 v96, v62 offset:{L_OP}
ds_read_b32 v97, v62 offset:{L_OP+2048}
ds_read_b32 v98, v62 offset:{L_OP+4096}
ds_read_b32 v99, v62 offset:{L_OP+6144}
s_waitcnt lgkmcnt(2)
v_add_f32 v96, v96, v97
s_waitcnt lgkmcnt(0)
v_add_f32 v98, v98, v99
v_add_f32 v96, v96, v98""")
    settag(96)
    k(f"""s_cbranch_scc1 L_oxpl
buffer_store_dword v96, v62, {SWS}, s78 offen sc1
s_branch L_oxst
L_oxpl:
buffer_store_dword v96, v62, {SWS}, s78 offen
L_oxst:""")
    stamp("oxst")
    if stamps and "poll1" in stamps:
        k("s_waitcnt vmcnt(0)"); stamp("poll1")
    if not pre:
        for m in range(4): ldx(m, 32)
    def oxcomb(B):
        k(f"""v_mul_f32 v58, v{B}, v52
v_mul_f32 v59, v{B+1}, v52
v_mul_f32 v56, v{B+4}, v54
v_mul_f32 v57, v{B+5}, v54
v_fmac_f32 v58, v{B+2}, v53
v_fmac_f32 v59, v{B+3}, v53
v_fmac_f32 v56, v{B+6}, v55
v_fmac_f32 v57, v{B+7}, v55""")
    if poll4("L_ox", ldx, dbl=dblx, w1=bool(pre)):
        oxcomb(40)
        k("s_branch L_oxj\nL_oxok:")
    stamp("oxok")
    oxcomb(32)
    k(f"""L_oxj:
v_add_f32 v58, v58, v56
v_add_f32 v59, v59, v57
v_cvt_pk_bf16_f32 v58, v58, v59
ds_write_b32 v62, v58 offset:{L_O16}
s_waitcnt lgkmcnt(0)
s_barrier""")
    stamp("bar3")
    k("s_cmp_eq_u32 s33, 7\ns_cbranch_scc1 L_final")
    stamp("kend")
    stamp_flush()
    k("s_endpgm")
    k.flush()
    k("L_final:")
    def gather(vaddr, sbase, step, lab, d0, d1, partial, dbl):
        k("s_waitcnt vmcnt(0)")
        if partial:
            k(f"v_and_b32 v38, {SM8}, {VT}\nv_and_b32 v39, {SM8}, {VT}")
        for m in range(4): k(f"s_add_u32 s{80+m}, {sbase}, {m*step}")
        ld = lambda m, B: k(f"buffer_load_dwordx2 v[{B+2*m}:{B+1+2*m}], {vaddr}, {SWS}, s{80+m} offen sc1")
        if partial and obpre:
            for i in range(8): k(f"v_mov_b32 v{32+i}, v{64+i}")
        else:
            if not partial and oadelay: k(f"s_sleep {oadelay}")
            for m in range(4):
                if partial and m == 3: k("s_mov_b32 exec_hi, 0")
                ld(m, 32)
            if partial: k("s_mov_b64 exec, -1")
        def comb(B):
            k(f"""v_add_f32 v56, v{B}, v{B+2}
v_add_f32 v57, v{B+1}, v{B+3}
v_add_f32 v58, v{B+4}, v{B+6}
v_add_f32 v59, v{B+5}, v{B+7}""")
        if poll4(lab, ld, slp=oasleep, dbl=dbl, partial=partial):
            comb(40)
            k(f"s_branch {lab}j\n{lab}ok:")
        comb(32)
        k(f"""{lab}j:
v_add_f32 {d0}, v56, v58
v_add_f32 {d1}, v57, v59
v_add_f32_dpp {d0}, {d0}, {d0} row_ror:8 row_mask:0xf bank_mask:0xf
v_add_f32_dpp {d1}, {d1}, {d1} row_ror:8 row_mask:0xf bank_mask:0xf""")
        for w in (16, 32):
            k(f"""v_mov_b32 v48, {d0}
v_mov_b32 v49, {d1}
v_permlane{w}_swap_b32 {d0}, v48
v_permlane{w}_swap_b32 {d1}, v49
v_add_f32 {d0}, {d0}, v48
v_add_f32 {d1}, {d1}, v49""")
        k(f"""v_cvt_pk_bf16_f32 v48, {d0}, {d1}
v_lshlrev_b32 {d0}, 16, v48
v_and_b32 {d1}, 0xffff0000, v48""")
    if "noffn" not in abl: gather("v112", "s84", 8 * 16384, "L_ob", "v22", "v23", True, 0)
    k("v_and_b32 v21, 0xffff0000, v20\nv_lshlrev_b32 v20, 16, v20")
    gather("v110", "s87", 16384, "L_oa", "v24", "v25", False, dbla)
    k(f"""v_add_f32 v20, v20, v24
v_add_f32 v21, v21, v25
v_cvt_pk_bf16_f32 v16, v20, v21
v_lshlrev_b32 v20, 16, v16
v_and_b32 v21, 0xffff0000, v16
v_add_f32 v20, v20, v22
v_add_f32 v21, v21, v23
v_cvt_pk_bf16_f32 v20, v20, v21
s_mov_b64 exec, 0xff
buffer_store_dword v20, v111, {SOUT}, s88 offen
s_mov_b64 exec, -1""")
    stamp("kend")
    stamp_flush()
    k(f"""s_cmp_lg_u32 s2, 0
s_cbranch_scc1 L_end
s_mov_b32 s76, {WS_E}
s_mov_b64 exec, 1
buffer_store_dword {VT}, {VZ}, {SWS}, s76 offen""")
    if probe:
        k(f"""s_memrealtime s[98:99]
s_waitcnt lgkmcnt(0)
s_sub_u32 s76, s98, s96
s_mul_i32 s76, s76, {probe}
L_probe:
s_memrealtime s[100:101]
s_waitcnt lgkmcnt(0)
s_sub_u32 s77, s100, s98
s_cmp_lt_u32 s77, s76
s_cbranch_scc1 L_probe""")
    k("s_endpgm")

    k.flush()
    k("L_ln:")
    for i in range(4):
        k(f"v_lshlrev_b32 v{100+2*i}, 16, v{96+i}\nv_and_b32 v{101+2*i}, 0xffff0000, v{96+i}")
    k("""v_add_f32 v96, v100, v101
v_add_f32 v97, v102, v103
v_add_f32 v98, v104, v105
v_add_f32 v99, v106, v107
v_add_f32 v96, v96, v97
v_add_f32 v98, v98, v99
v_add_f32 v96, v96, v98""")
    row_reduce("v_add_f32", "v96")
    xrow_reduce("v_add_f32", "v96", "v97")
    k("v_mul_f32 v96, 0x3b000000, v96")
    k("v_sub_f32 v98, v100, v96\nv_mul_f32 v97, v98, v98")
    for i in range(1, 8):
        k(f"v_sub_f32 v98, v{100+i}, v96\nv_fmac_f32 v97, v98, v98")
    row_reduce("v_add_f32", "v97")
    xrow_reduce("v_add_f32", "v97", "v98")
    k("v_mul_f32 v97, 0x3b000000, v97")
    rnd("v96", "v96"); rnd("v97", "v97")
    k("v_add_f32 v97, 0x3727c5ac, v97")
    rnd("v97", "v97")
    k("v_sqrt_f32 v97, v97")
    rnd("v97", "v97")
    k("v_rcp_f32 v98, v97")
    for i in range(0, 8, 2):
        a, b2 = 100 + i, 101 + i
        k(f"""v_sub_f32 v{a}, v{a}, v96
v_sub_f32 v{b2}, v{b2}, v96
v_cvt_pk_bf16_f32 v99, v{a}, v{b2}
v_lshlrev_b32 v{a}, 16, v99
v_and_b32 v{b2}, 0xffff0000, v99""")
    for i in range(8):
        a = 100 + i
        k(f"""v_mul_f32 v99, v{a}, v98
v_fma_f32 v{a}, -v99, v97, v{a}
v_fma_f32 v{a}, v{a}, v98, v99""")
    for i in range(4):
        k(f"v_cvt_pk_bf16_f32 v{96+i}, v{100+2*i}, v{101+2*i}")
    k(f"""s_lshl_b32 s75, s33, 10
v_add_u32 v122, s75, v120
ds_write_b128 v122, v[96:99] offset:{L_XN}""")
    lds_inc(L_CNT_XN)
    stamp("ln")
    srd(56, 24, None, WS_SIZE)
    srd(40, 8, "s74", 524288)
    k(f"""s_mov_b32 s66, 0
s_cmp_eq_u32 s33, 0
s_cbranch_scc1 L_tq
s_cmp_lt_u32 s33, 3
s_cbranch_scc1 L_f2l
s_cmp_lg_u32 s33, 4
s_cbranch_scc1 L_vload
s_bitcmp0_b32 s65, 0
s_cbranch_scc1 L_vload""")
    k(f"""v_lshrrev_b32 v121, 3, {VL}
v_lshlrev_b32 v123, 7, v121
v_lshlrev_b32 v121, 8, v121
v_lshrrev_b32 v122, 2, v111
v_add_u32 v123, v123, v122
s_lshl_b32 s75, s64, 2
s_add_u32 s75, s75, s29
s_lshl_b32 s75, s75, 11
s_add_u32 s75, s75, {WS_HP}
s_lshl_b32 s76, s26, 12
s_lshl_b32 s77, s51, 9
s_add_u32 s76, s76, s77
s_lshl_b32 s77, s29, 5
s_add_u32 s76, s76, s77
s_add_u32 s76, s76, {WS_HH}
s_branch L_tile
L_tq:
v_lshrrev_b32 v121, 3, {VL}
v_lshlrev_b32 v121, 14, v121
v_lshlrev_b32 v123, 7, {VL}
s_lshl_b32 s75, s29, 17
s_lshl_b32 s76, s50, 11
s_add_u32 s75, s75, s76
s_lshl_b32 s77, s48, 8
s_add_u32 s75, s75, s77
s_lshl_b32 s76, s50, 12
s_lshl_b32 s77, s27, 2
s_add_u32 s76, s76, s77
s_add_u32 s76, s76, {WS_HQ}
L_tile:
v_add_u32 v121, v111, v121""")
    arow_addr("v122", "v118", 10)
    k(f"""s_lshl_b32 s77, s29, 8
v_add_u32 v122, s77, v122""")
    lds_wait(L_CNT_XN, 8)
    k(f"""ds_read_b128 v[96:99], v122 offset:{L_XN}
ds_read_b128 v[100:103], v122 offset:{L_XN+128}""")
    gettags()
    k(f"""s_getreg_b32 s77, hwreg(HW_REG_XCC_ID)
s_and_b32 s77, s77, 15
s_andn2_b32 s79, {TB}, 15
s_or_b32 s77, s77, s79
v_mov_b32 v122, s77""")
    for ub in range(2):
        k(f"s_waitcnt vmcnt({8 - 8*ub})")
        for w in range(4):
            T = 104 + 8 * (w & 1)
            perms(T, 32 * ub, w)
            mfma(64 + 8 * w, 96 + 4 * ub, T, None if ub == 0 else 64 + 8 * w)
            mfma(68 + 8 * w, 96 + 4 * ub, T + 4, None if ub == 0 else 68 + 8 * w)
    for w in range(4):
        pairsum(2 * w, 2 * w + 1, 64 + 8 * w, 68 + 8 * w, SM)
    k(f"""buffer_store_dwordx4 v[0:3], v121, {SWS}, s75 offen{lst}
buffer_store_dwordx4 v[4:7], v121, {SWS}, s75 offen offset:128{lst}
s_mov_b32 exec_hi, 0
buffer_store_dword v122, v123, {SWS}, s76 offen{hst}
s_mov_b64 exec, -1""")
    stamp("tpub")
    k("s_branch L_vload")
    k.flush()
    k("L_f2l:")
    k("s_bitcmp0_b32 s65, 1\ns_cbranch_scc1 L_vload")
    srd(44, 18, None, 1792 * 1024)
    k(f"""s_setprio 0
s_mov_b32 s66, 1
v_lshl_add_u32 v121, v112, 10, v111
s_lshl_b32 s75, s64, 16
s_lshl_b32 s76, s29, 8
s_add_u32 s75, s75, s76
s_sub_u32 s76, s33, 1
s_lshl_b32 s76, s76, 7
s_add_u32 s75, s75, s76
s_add_u32 s76, s75, 4096""")
    for t in range(8):
        k(f"buffer_load_dwordx4 v[{64+4*t}:{64+4*t+3}], v121, {SWA}, s{75 + t//4} offen offset:{(t%4)*1024}{wfl}")
    k("s_branch L_vload")
    k.flush()
    k("L_vload:")
    k(f"""s_setprio 0
s_movk_i32 s77, 0x1000""")
    for t in range(16):
        k(f"buffer_load_dwordx4 v[{4*t}:{4*t+3}], v120, {SKV}, s78 offen{kvflag}\ns_add_u32 s78, s78, s77")
    k("s_cmp_lt_u32 s33, 4\ns_cbranch_scc1 L_novi")
    srd(44, 12, None, 4 << 20)
    k(f"""v_bfe_u32 v121, {VL}, 3, 1
v_lshlrev_b32 v121, 6, v121
v_lshrrev_b32 v122, 4, {VL}
v_add_u32 v121, v121, v122
v_and_b32 v122, 7, {VL}
v_lshlrev_b32 v122, 4, v122
v_lshl_add_u32 v121, v121, 10, v122
s_lshl_b32 s75, s30, 17
s_lshl_b32 s76, s49, 7
s_add_u32 s75, s75, s76
s_bfe_u32 s76, s33, 0x10001
s_lshl_b32 s76, s76, 12
s_add_u32 s75, s75, s76
s_and_b32 s76, s33, 1
s_lshl_b32 s76, s76, 15
s_add_u32 s75, s75, s76
s_and_b32 s77, s33, 3
s_lshl_b32 s77, s77, 12
s_add_u32 m0, s77, {L_WT}""")
    if strict:
        lds_inc(L_CNT_VI)
        lds_wait(L_CNT_VI, 4)
    for t in range(4):
        k(f"buffer_load_dwordx4 v121, {SWA}, s75 offen{wfl} lds\ns_add_u32 m0, m0, 0x400\ns_add_u32 s75, s75, 0x2000")
    lds_inc(L_CNT_VI)
    k("L_novi:")
    stamp("vissued")
    k("""s_cmp_eq_u32 s66, 0
s_cbranch_scc1 L_noj
s_waitcnt vmcnt(16)""")
    k("L_f2:")
    arow_addr("v122", "v118", 7)
    k(f"""v_lshrrev_b32 v121, 3, {VL}
v_lshlrev_b32 v121, 11, v121
v_and_b32 v123, 7, {VL}
v_lshl_add_u32 v121, v123, 3, v121
s_lshl_b32 s75, s64, 14
s_lshl_b32 s76, s29, 9
s_add_u32 s75, s75, s76
s_sub_u32 s76, s33, 1
s_lshl_b32 s76, s76, 8
s_add_u32 s75, s75, s76
s_add_u32 s75, s75, {WS_OB}""")
    lds_wait(L_F_HN, 1)
    k(f"ds_read_b128 v[112:115], v122 offset:{L_HN}")
    gettags()
    k("s_setprio 3")
    for w in range(4):
        G = 116 + 2 * (w & 1)
        perms(96, 64, w)
        mfma(104, 112, 96, None)
        mfma(108, 112, 100, None)
        pairsum(G, G + 1, 104, 108)
        k(f"buffer_store_dwordx2 v[{G}:{G+1}], v121, {SWS}, s75 offen offset:{64*w} sc1")
    k("s_setprio 0")
    stamp("tpub")
    k("L_noj:")
    k(f"""v_lshrrev_b32 v108, 4, {VL}
v_and_b32 v110, 3, {VL}
v_bfe_u32 v109, {VL}, 2, 2
v_lshlrev_b32 v122, 7, v110
v_lshl_add_u32 v122, v108, 5, v122
s_lshl_b32 s75, s33, 9
s_add_u32 s75, s75, {L_P}
v_add_u32 v122, s75, v122
v_mov_b32 v123, {L_ZERO}""")
    for dl in range(4):
        k(f"v_cmp_eq_u32 vcc, {dl}, v109\nv_cndmask_b32 v{112+dl}, v123, v122, vcc")
    k(f"""s_lshl_b32 s75, s33, 2
v_mov_b32 v123, s75
s_and_b32 s75, s33, 3
s_lshl_b32 s76, s75, 2
v_mov_b32 v121, s76
s_lshl_b32 s75, s75, 11
v_add_u32 v120, s75, v120
v_lshlrev_b32 v122, 2, {VL}
v_add_u32 v122, s75, v122""")
    lds_wait(L_F_P, 1, vaddr="v123")
    for ub in range(2):
        for dl in range(4):
            r = 64 + 16 * ub + 4 * dl
            k(f"ds_read_b128 v[{r}:{r+3}], v{112+dl} offset:{16*ub}")
    k("s_cmp_ge_u32 s33, 4\ns_cbranch_scc1 L_g3")
    for i in range(8): k(f"v_mov_b32 v{96+i}, 0")
    k("s_branch L_pv\nL_g3:")
    lds_wait(L_F_D, 1, vaddr="v121")
    k(f"""ds_read_b128 v[96:99], v120 offset:{L_DX}
ds_read_b128 v[100:103], v120 offset:{L_DX+1024}
L_pv:
s_waitcnt lgkmcnt(0)
s_cmp_ge_u32 s33, 4""")
    def vwait(n):
        lab = k.label("Lv")
        k(f"s_cbranch_scc1 {lab}\ns_waitcnt vmcnt({n})\n{lab}:\ns_waitcnt vmcnt({n+4})")
    vwait(8)
    for w in range(4):
        T = 104 + 8 * (w & 1)
        perms(T, 0, w)
        for hh in range(2):
            di = 2 * w + hh; x = di >> 2; dl = di & 3
            mfma(96 + 4 * x, 64 + 4 * dl, T + 4 * hh, 96 + 4 * x)
    for p in range(4):
        vwait(6 - 2 * p)
        if p == 3: stamp("varr")
        for w in range(4):
            k(f"v_perm_b32 v{8*w+p}, v{32+4*(2*p+1)+w}, v{32+4*(2*p)+w}, s34")
            k(f"v_perm_b32 v{8*w+4+p}, v{32+4*(2*p+1)+w}, v{32+4*(2*p)+w}, s35")
            if p == 3 and w >= 1:
                di = 2 * (w - 1)
                for d in (di, di + 1):
                    mfma(96 + 4 * (d >> 2), 80 + 4 * (d & 3), 4 * d, 96 + 4 * (d >> 2))
    for d in (6, 7):
        mfma(96 + 4 * (d >> 2), 80 + 4 * (d & 3), 4 * d, 96 + 4 * (d >> 2))
    k("s_cmp_ge_u32 s33, 4\ns_cbranch_scc1 L_g3b")
    k(f"""ds_write_b128 v120, v[96:99] offset:{L_DX}
ds_write_b128 v120, v[100:103] offset:{L_DX+1024}""")
    lds_inc(L_F_D, vaddr="v121")
    stamp("pvdone")
    stamp_flush()
    k("s_endpgm")
    k.flush()
    k("L_g3b:")
    for x in range(2):
        for h in range(4):
            k(f"ds_write_b32 v122, v{96+4*x+h} offset:{L_OP + h*512 + x*256}")
    k("s_waitcnt lgkmcnt(0)")
    stamp("pvdone")
    k("s_barrier")
    gettags()
    arow_addr("v123", "v118", 8)
    k(f"""s_and_b32 s77, s33, 3
s_lshl_b32 s76, s77, 2
v_lshlrev_b32 v121, 4, {VL}
v_add_u32 v121, s76, v121
v_lshrrev_b32 v122, 3, {VL}
v_lshlrev_b32 v122, 16, v122
v_and_b32 v118, 7, {VL}
v_lshl_add_u32 v122, v118, 3, v122
s_lshl_b32 s86, s30, 11
s_lshl_b32 s76, s49, 8
s_add_u32 s86, s86, s76
s_lshl_b32 s76, s77, 6
s_add_u32 s86, s86, s76
s_add_u32 s86, s86, {WS_OA}
s_waitcnt vmcnt(0)""")
    lds_inc(L_CNT_WO)
    lds_wait(L_CNT_WO, 4, slp=0)
    for n in range(16):
        k(f"ds_read_b32 v{n}, v121 offset:{L_WT + 1024*n}")
    for ub in range(2):
        k(f"s_waitcnt lgkmcnt({8 - 8*ub})")
        for p in range(4):
            k(f"v_perm_b32 v{16+8*ub+p}, v{8*ub+2*p+1}, v{8*ub+2*p}, s34")
            k(f"v_perm_b32 v{16+8*ub+4+p}, v{8*ub+2*p+1}, v{8*ub+2*p}, s35")
    stamp("woready")
    k(f"""s_barrier
ds_read_b128 v[96:99], v123 offset:{L_O16}
ds_read_b128 v[100:103], v123 offset:{L_O16+128}
s_waitcnt lgkmcnt(1)""")
    mfma(104, 96, 16, None); mfma(108, 96, 20, None)
    k("s_waitcnt lgkmcnt(0)")
    mfma(104, 100, 24, 104); mfma(108, 100, 28, 108)
    pairsum(112, 113, 104, 108)
    k(f"buffer_store_dwordx2 v[112:113], v122, {SWS}, s86 offen sc1")
    stamp("gend")
    stamp_flush()
    k("L_end:")
    k("s_endpgm")
    k("L_codeend:")

    T = []
    T.append('.section .rodata,"a"'); T.append(".p2align 6")
    T.append(f".amdhsa_kernel {NAME}_kernel")
    T.append("  .amdhsa_next_free_vgpr 128"); T.append("  .amdhsa_next_free_sgpr 102"); T.append("  .amdhsa_accum_offset 128")
    T.append("  .amdhsa_group_segment_fixed_size 0"); T.append("  .amdhsa_kernarg_size 88"); T.append("  .amdhsa_user_sgpr_count 2")
    T.append("  .amdhsa_user_sgpr_kernarg_segment_ptr 1"); T.append("  .amdhsa_system_sgpr_workgroup_id_x 1")
    T.append("  .amdhsa_float_denorm_mode_32 3")
    T.append(".end_amdhsa_kernel")
    open(fname, "w").write("\n".join(H) + "\n" + k.text() + "\n".join(T) + "\n")

SA = {"start": 0, "hint": 1, "qready": 2, "ln": 1, "tpub": 1, "vissued": 2}
SB = {"start": 0, "qkdone": 1, "kready": 2, "varr": 1, "pvdone": 2}
SC = {"start": 0, "bar2": 1, "kend": 2, "varr": 1, "pvdone": 2}
SE = {"start": 0, "bar3": 1, "kend": 2, "varr": 1, "pvdone": 2}
SD = {"start": 0, "kissued": 1, "qready": 2, "vissued": 1, "varr": 2}
SI = {"start": 0, "bar2": 1, "kend": 2, "woready": 1, "gend": 2}
if __name__ == "__main__":
    gen("k19.s")
    gen("k19_sc.s", stamps=SI)
```

```python
import sys, argparse
from asmlib import Asm
NAME = "parallel_sum__sliding_block_cached__dense_activation_relu__decode"

WS_QP = 0x000000
WS_OX = 0x080000
WS_OA = 0x100000
WS_OB = 0x180000
WS_HP = 0x1F0000
WS_ST = 0x228000
WS_HQ = 0x230000
WS_HH = 0x238000
WS_E  = 0x240000
WS_SIZE = 0x241000
STAMP_OFF = 256 << 20
L_CNT_XN = 0; L_MODE = 4; L_F_Q = 8; L_F_HN = 12; L_CNT_K = 16; L_CNT_L = 20; L_TAG = 24; L_F_P = 32
L_ZERO = 64; L_F_D = 96; L_CNT_VI = 112; L_CNT_WO = 116; L_ZEND = 128
L_STAT = 128; L_Q = 1024; L_HN = 2048; L_P = 3072; L_XN = 7168; L_OP = 15360; L_DX = L_OP + 8192; L_O16 = L_DX + 8192; L_WT = L_O16 + 2048; L_END = L_WT + 16384

LOG2E = 0x3fb8aa3b
SCALE = 0x3db504f3
SPIN = 1 << 16

def gen(fname, stamps=None, kvflag=" nt", psleep=0, abl=(), kfirst=0, lst=" sc1", tagmask=0xf, rxor=0, qx=5, ox=7, qrot=0, ffnmap="old", fx=0, probe=0, oasleep=0, dblx=0, dbla=4, pre=8, obpre=0, oadelay=0, wfl=None, hst=" sc1", strict=1, rot=1, rotw=2):
    k = Asm()
    if wfl is None: wfl = kvflag
    H = []
    H.append(open("cdna_kernels/%s.s.ref" % NAME).read().split("; Override launch")[0].rstrip("\n"))
    H.append(f"; @launch grid=(256,1,1) block=(1024,1,1) lds={L_END}")
    H.append('.amdgcn_target "amdgcn-amd-amdhsa--gfx950"')
    H.append(".text"); H.append(f".globl {NAME}_kernel"); H.append(".p2align 8"); H.append(f".type {NAME}_kernel,@function")
    H.append(f"{NAME}_kernel:")

    VL = "v126"; VZ = "v127"; VT = "v124"
    TA, TB = "s68", "s69"
    SM = "s3"
    def srd(d, lo, off, size):
        if off is None:
            k(f"s_mov_b32 s{d}, s{lo}\ns_mov_b32 s{d+1}, s{lo+1}")
        else:
            k(f"s_add_u32 s{d}, s{lo}, {off}\ns_addc_u32 s{d+1}, s{lo+1}, 0")
        k(f"s_mov_b32 s{d+2}, {size}\ns_mov_b32 s{d+3}, 0x20000")
    SX, SKV, SWA, SWS, SOUT = [f"s[{a}:{a+3}]" for a in (36, 40, 44, 56, 60)]

    def stamp(name):
        if not stamps or name not in stamps: return
        sl = stamps[name]
        k(f"s_memrealtime s[{96+2*sl}:{97+2*sl}]")
    def stamp_flush():
        if not stamps: return
        k(f"""s_waitcnt lgkmcnt(0)
s_mov_b64 exec, 1
s_lshl_b32 s76, s2, 9
s_lshl_b32 s77, s31, 5
s_add_u32 s76, s76, s77
s_add_u32 s76, s76, {STAMP_OFF}
s_add_u32 s76, s24, s76
s_addc_u32 s77, s25, 0
v_mov_b32 v0, s96
v_mov_b32 v1, s97
v_mov_b32 v2, s98
v_mov_b32 v3, s99
v_mov_b32 v4, s100
v_mov_b32 v5, s101
global_store_dwordx4 {VZ}, v[0:3], s[76:77]
global_store_dwordx2 {VZ}, v[4:5], s[76:77] offset:16""")

    def lds_wait(addr, val, vaddr=VZ, vt="v125", slp=1):
        lp = k.label("Lw"); dn = k.label("Ld")
        k(f"s_mov_b32 s72, {SPIN}")
        k(f"{lp}:")
        k(f"""ds_read_b32 {vt}, {vaddr} offset:{addr}
s_waitcnt lgkmcnt(0)
v_readfirstlane_b32 s73, {vt}
s_cmp_ge_u32 s73, {val}
s_cbranch_scc1 {dn}
{"s_sleep 1" if slp else "s_nop 0"}
s_sub_u32 s72, s72, 1
s_cmp_lg_u32 s72, 0
s_cbranch_scc1 {lp}""")
        k(f"{dn}:")
    def lds_inc(addr, vaddr=VZ, vt="v125"):
        k(f"""s_waitcnt lgkmcnt(0)
v_mov_b32 {vt}, 1
s_mov_b64 exec, 1
ds_add_u32 {vaddr}, {vt} offset:{addr}
s_mov_b64 exec, -1""")
    def rnd(dst, src):
        k(f"v_cvt_pk_bf16_f32 {dst}, {src}, {src}\nv_lshlrev_b32 {dst}, 16, {dst}")
    def row_reduce(op, v, steps=(8, 4, 2, 1)):
        for n in steps:
            k(f"{op}_dpp {v}, {v}, {v} row_ror:{n} row_mask:0xf bank_mask:0xf")
    def xrow_reduce(op, v, t, which=(16, 32)):
        for w in which:
            k(f"v_mov_b32 {t}, {v}\nv_permlane{w}_swap_b32 {v}, {t}\n{op} {v}, {v}, {t}")
    def perms(T, W, w):
        for p in range(4):
            k(f"v_perm_b32 v{T+p}, v{W+4*(2*p+1)+w}, v{W+4*(2*p)+w}, s34")
        for p in range(4):
            k(f"v_perm_b32 v{T+4+p}, v{W+4*(2*p+1)+w}, v{W+4*(2*p)+w}, s35")
    def mfma(D, A, B, C):
        c = "0" if C is None else f"v[{C}:{C+3}]"
        k(f"v_mfma_f32_16x16x32_bf16 v[{D}:{D+3}], v[{A}:{A+3}], v[{B}:{B+3}], {c}")
    def gettags():
        k(f"""ds_read_b64 v[124:125], {VZ} offset:{L_TAG}
s_waitcnt lgkmcnt(0)
v_readfirstlane_b32 {TA}, v124
v_readfirstlane_b32 {TB}, v125""")
    SM8 = "s52"
    def settag(r, m=None):
        k(f"v_bfi_b32 v{r}, {m or SM8}, {VT}, v{r}")
    def tagacc(regs, acc, t1, t2):
        regs = list(regs)
        k(f"v_xor_b32 {acc}, {TA}, v{regs[0]}\nv_xor_b32 {t1}, {TA}, v{regs[1]}\nv_or_b32 {acc}, {acc}, {t1}")
        for i in range(2, len(regs), 2):
            k(f"v_xor_b32 {t1}, {TA}, v{regs[i]}\nv_xor_b32 {t2}, {TA}, v{regs[i+1]}\nv_or3_b32 {acc}, {acc}, {t1}, {t2}")
        k(f"v_and_b32 {acc}, {SM}, {acc}")
    def pairsum(G0, G1, D0, D1, m=None):
        k(f"""v_add_f32_dpp v{G0}, v{D0+1}, v{D0} row_shl:8 row_mask:0xf bank_mask:0x3
v_add_f32_dpp v{G1}, v{D1+1}, v{D1} row_shl:8 row_mask:0xf bank_mask:0x3
v_add_f32_dpp v{G0}, v{D0+2}, v{D0+3} row_shr:8 row_mask:0xf bank_mask:0xc
v_add_f32_dpp v{G1}, v{D1+2}, v{D1+3} row_shr:8 row_mask:0xf bank_mask:0xc""")
        settag(G0, m); settag(G1, m)
    def arow_addr(vd, vt, rowshift):
        k(f"""v_bfe_u32 {vd}, {VL}, 1, 3
v_lshlrev_b32 {vd}, {rowshift}, {vd}
v_and_b32 {vt}, 1, {VL}
v_lshl_add_u32 {vd}, {vt}, 4, {vd}
v_lshrrev_b32 {vt}, 4, {VL}
v_lshl_add_u32 {vd}, {vt}, 5, {vd}""")
    def poll4(lab, ld, slp=None, dbl=0, partial=False, w1=False):
        slp = psleep if slp is None else slp
        def check(B, ok):
            for p in range(4):
                k(f"v_bitop3_b32 v{48+p}, v{B+2*p}, v{B+1+2*p}, {VT} bitop3:0x7e")
            for p in range(4):
                k(f"v_cmp_ne_u32_sdwa s[{4+2*p}:{5+2*p}], v{48+p}, {VZ} src0_sel:BYTE_0 src1_sel:DWORD")
            k(f"""s_or_b64 s[12:13], s[4:5], s[6:7]
s_or_b64 s[14:15], s[8:9], s[10:11]
s_or_b64 s[12:13], s[12:13], s[14:15]
s_cbranch_scc0 {ok}""")
        def reissue(B):
            for m in range(4):
                k(f"s_cmp_lg_u64 s[{4+2*m}:{5+2*m}], 0\ns_cselect_b64 exec, -1, 0")
                if partial and m == 3: k("s_mov_b32 exec_hi, 0")
                ld(m, B)
            k("s_mov_b64 exec, -1")
        k(f"s_mov_b32 s72, {SPIN}")
        if not dbl:
            if w1:
                k(f"s_waitcnt vmcnt(1)\ns_branch {lab}c")
            k(f"{lab}poll:\ns_waitcnt vmcnt(0)\n{lab}c:")
            check(32, f"{lab}ok")
            if slp: k(f"s_sleep {slp}")
            reissue(32)
            k(f"""s_sub_u32 s72, s72, 1
s_cmp_lg_u32 s72, 0
s_cbranch_scc1 {lab}poll
{lab}ok:""")
        else:
            k("s_waitcnt vmcnt(0)")
            check(32, f"{lab}ok")
            for i in range(8): k(f"v_mov_b32 v{40+i}, v{32+i}")
            reissue(32)
            k(f"s_sleep {dbl}")
            reissue(40)
            k(f"{lab}poll:\ns_waitcnt vmcnt(4)")
            check(32, f"{lab}ok")
            reissue(32)
            k("s_waitcnt vmcnt(4)")
            check(40, f"{lab}okb")
            reissue(40)
            k(f"""s_sub_u32 s72, s72, 1
s_cmp_lg_u32 s72, 0
s_cbranch_scc1 {lab}poll
{lab}okb:
s_waitcnt vmcnt(0)""" if False else f"""s_sub_u32 s72, s72, 1
s_cmp_lg_u32 s72, 0
s_cbranch_scc1 {lab}poll
{lab}okb:""")
            return True
        return False

    stamp("start")
    if probe: k("s_memrealtime s[96:97]")
    k(f"""s_cmp_ge_u32 s2, 256
s_cbranch_scc1 L_end
s_load_dwordx16 s[4:19], s[0:1], 0
s_load_dwordx4 s[20:23], s[0:1], 64
s_load_dwordx2 s[24:25], s[0:1], 80
s_and_b32 s26, s2, 7
s_lshr_b32 s27, s2, 3
s_xor_b32 s27, s27, {rxor}
s_lshr_b32 s28, s27, 2
s_and_b32 s29, s27, 3
s_lshl_b32 s30, s26, 2
s_add_u32 s30, s30, s29
s_lshl_b32 s32, s28, 3
s_add_u32 s32, s32, s26
s_mov_b32 s34, 0x05040100
s_mov_b32 s35, 0x07060302
s_movk_i32 {SM}, {tagmask}
s_movk_i32 s52, 0xff
v_and_b32 {VL}, 63, v0
v_mov_b32 {VZ}, 0
v_lshrrev_b32 v1, 6, v0
v_lshlrev_b32 v2, 2, v0
v_readfirstlane_b32 s31, v1
v_cmp_gt_u32 vcc, {L_ZEND//4}, v0
s_and_saveexec_b64 s[70:71], vcc
ds_write_b32 v2, {VZ}
s_mov_b64 exec, s[70:71]
s_lshl_b32 s74, s28, 24
s_lshl_b32 s75, s26, 21
s_add_u32 s74, s74, s75
s_add_u32 s74, s74, {6144*256}
s_and_b32 s33, s31, 7
v_lshrrev_b32 v108, 4, {VL}
v_and_b32 v111, 7, {VL}
v_lshlrev_b32 v111, 4, v111
v_bfe_u32 v112, {VL}, 3, 1
v_lshlrev_b32 v112, 3, v112
v_lshl_add_u32 v112, v108, 4, v112
v_lshlrev_b32 v120, 4, {VL}
s_and_b32 s75, s33, 3
s_lshl_b32 s75, s75, 10
s_lshr_b32 s76, s33, 2
s_lshl_b32 s76, s76, 16
s_add_u32 s75, s75, s76
s_lshl_b32 s76, s29, 17
s_add_u32 s78, s75, s76
s_mul_i32 s53, s33, {rotw}
s_add_u32 s53, s53, s27
s_and_b32 s53, s53, {15 if rot else 0}
s_lshl_b32 s53, s53, 12
s_mov_b32 s54, 0xffff
s_mul_i32 s50, s28, {qrot}
s_add_u32 s50, s50, s26
s_and_b32 s50, s50, 7
s_xor_b32 s48, s28, {qx}
s_xor_b32 s49, s28, {ox}
s_nop 0""")
    if ffnmap == "old":
        k("""s_lshr_b32 s64, s28, 1
s_lshl_b32 s64, s64, 3
s_add_u32 s64, s64, s26
s_and_b32 s65, s28, 1
s_add_u32 s65, s65, 1
s_cmp_ge_u32 s64, 28
s_cselect_b32 s65, 0, s65
s_add_u32 s51, s28, 1""")
    else:
        k(f"""s_lshr_b32 s64, s26, 1
s_mul_i32 s64, s64, 7
s_xor_b32 s51, s28, {fx}
s_add_u32 s64, s64, s51
s_cmp_eq_u32 s51, 7
s_cselect_b32 s65, 0, 3
s_and_b32 s51, s26, 1
s_cmp_eq_u32 s51, {0 if ffnmap == "even" else 1}
s_cselect_b32 s65, s65, 0
s_mov_b32 s51, s28""")
    k("s_waitcnt lgkmcnt(0)")
    if "noffn" in abl: k("s_mov_b32 s65, 0")
    k("s_cmp_lt_u32 s31, 8\ns_cbranch_scc1 L_kwave")
    k("s_setprio 3")
    srd(36, 4, None, 8192)
    k(f"""s_lshl_b32 s75, s33, 10
buffer_load_dwordx4 v[96:99], v120, {SX}, s75 offen
s_cmp_eq_u32 s33, 0
s_cbranch_scc1 L_setq
s_cmp_lg_u32 s33, 4
s_cbranch_scc1 L_nq1
s_bitcmp0_b32 s65, 0
s_cbranch_scc1 L_nopf""")
    srd(44, 16, None, 512 * 3584)
    k(f"""s_movk_i32 s77, 3584
s_mov_b32 s79, {57*3584}
s_mul_i32 s75, s29, {128*3584}
s_lshl_b32 s76, s64, 7
s_add_u32 s75, s75, s76
s_branch L_tload
L_setq:""")
    srd(44, 10, None, 4 << 20)
    k(f"""s_mov_b32 s76, {WS_E}
s_load_dword s68, s[24:25], s76
s_movk_i32 s77, 0x2000
s_mov_b32 s79, {57*8192}
s_lshl_b32 s75, s29, 20
s_lshl_b32 s76, s50, 10
s_add_u32 s75, s75, s76
s_lshl_b32 s76, s48, 7
s_add_u32 s75, s75, s76
L_tload:
v_mul_lo_u32 v121, v112, s77
v_add_u32 v121, v121, v111""")
    for ub in range(2):
        for t in range(8):
            r = 32 * ub + 4 * t
            k(f"buffer_load_dwordx4 v[{r}:{r+3}], v121, {SWA}, s75 offen{wfl}")
            k("s_add_u32 s75, s75, s77" if t < 7 else "s_add_u32 s75, s75, s79")
    k(f"""s_barrier
s_cmp_lg_u32 s33, 0
s_cbranch_scc1 L_notag
s_waitcnt lgkmcnt(0)
s_add_u32 {TA}, {TA}, 1
s_mul_i32 {TB}, {TA}, 0x9e3779b1
s_xor_b32 {TB}, {TB}, 0x5bd1e995
v_mov_b32 v124, {TA}
v_mov_b32 v125, {TB}
ds_write_b64 {VZ}, v[124:125] offset:{L_TAG}
L_notag:
s_waitcnt vmcnt(16)
s_branch L_ln""")
    k("L_nq1:")
    k(f"""s_cmp_lt_u32 s33, 6
s_cbranch_scc1 L_nopf
s_getpc_b64 s[80:81]
L_pc:
s_sub_u32 s80, s80, L_pc-{NAME}_kernel
s_subb_u32 s81, s81, 0
s_mov_b32 s82, L_codeend-{NAME}_kernel
s_mov_b32 s83, 0x20000
s_lshl_b32 s75, s29, 1
s_add_u32 s75, s75, s33
s_sub_u32 s75, s75, 6
s_lshl_b32 s75, s75, 11
buffer_load_dwordx4 v[0:3], v120, s[80:83], s75 offen
buffer_load_dwordx4 v[0:3], v120, s[80:83], s75 offen offset:1024
s_barrier
s_waitcnt vmcnt(2)
s_branch L_ln
L_nopf:
s_barrier
s_waitcnt vmcnt(0)
s_branch L_ln""")

    k.flush()
    k("L_kwave:")
    srd(40, 6, "s74", 524288)
    k(f"""v_bfe_u32 v109, {VL}, 2, 2
v_and_b32 v110, 3, {VL}
v_lshlrev_b32 v121, 8, v109
v_lshl_add_u32 v121, v108, 6, v121
v_lshl_add_u32 v121, v110, 4, v121
s_movk_i32 s77, 0x1000""")
    for t in range(16):
        if t == kfirst: k("s_barrier")
        k(f"s_add_u32 s55, s78, s53\nbuffer_load_dwordx4 v[{4*t}:{4*t+3}], v121, {SKV}, s55 offen{kvflag}\ns_add_u32 s53, s53, s77\ns_and_b32 s53, s53, s54")
    stamp("kissued")
    srd(56, 24, None, WS_SIZE)
    srd(36, 4, None, 8192)
    srd(60, 20, None, 8192)
    k(f"""v_lshlrev_b32 v113, 8, v110
v_lshl_add_u32 v113, v108, 6, v113
v_lshl_add_u32 v113, v109, 4, v113
v_lshlrev_b32 v114, 7, v110
v_lshl_add_u32 v114, v108, 5, v114
v_lshl_add_u32 v114, v109, 3, v114
s_lshl_b32 s76, s33, 9
v_add_u32 v114, s76, v114
v_bfe_u32 v116, {VL}, 2, 3
v_lshlrev_b32 v116, 5, v116
v_lshl_add_u32 v116, v110, 2, v116
s_lshl_b32 s76, s33, 5
v_lshlrev_b32 v117, 2, {VL}
v_add_u32 v117, s76, v117
s_lshl_b32 s76, s33, 2
v_mov_b32 v123, s76
v_mov_b32 v122, 0""")
    lds_wait(L_CNT_XN, 8)
    gettags()
    k(f"""s_cmp_ge_u32 s33, 2
s_cbranch_scc1 L_nog
s_lshl_b32 s84, s26, 12
s_lshl_b32 s76, s27, 7
s_add_u32 s79, s84, s76
s_cmp_eq_u32 s33, 1
s_cbranch_scc1 L_gh
s_add_u32 s79, s79, {WS_HQ}
s_lshl_b32 s75, s28, 14
s_lshl_b32 s76, s26, 11
s_add_u32 s75, s75, s76
s_mov_b32 s66, 131072
s_mov_b32 s67, 0xff800000
s_movk_i32 s77, {L_Q}
v_mov_b32 v122, {L_F_Q}
s_branch L_g
L_gh:
s_bitcmp0_b32 s65, 1
s_cbranch_scc1 L_nog
s_add_u32 s79, s79, {WS_HH}
s_lshl_b32 s75, s64, 13
s_add_u32 s75, s75, {WS_HP}
s_movk_i32 s66, 0x800
s_mov_b32 s67, 0
s_movk_i32 s77, {L_HN}
v_mov_b32 v122, {L_F_HN}
L_g:
v_lshlrev_b32 v121, 7, v108
v_add3_u32 v121, v121, v111, s77
v_bfe_u32 v118, {VL}, 3, 1
v_lshl_add_u32 v121, v118, 3, v121
s_mov_b32 s72, {SPIN}""")
    k(f"""L_fpoll:
s_load_dwordx16 s[4:19], s[24:25], s79 glc
s_load_dwordx16 s[80:95], s[24:25], s79 offset:64 glc
s_waitcnt lgkmcnt(0)
s_min_u32 s73, s4, s5
s_max_u32 s76, s4, s5""")
    for i in list(range(6, 20)) + list(range(80, 96)):
        k(f"s_min_u32 s73, s73, s{i}\ns_max_u32 s76, s76, s{i}")
    k(f"""s_xor_b32 s70, s73, s76
s_xor_b32 s73, s73, {TB}
s_xor_b32 s76, s76, {TB}
s_or_b32 s73, s73, s76
s_cmp_lt_u32 s73, 16
s_cbranch_scc1 L_fok
s_sleep 2
s_sub_u32 s72, s72, 1
s_cmp_lg_u32 s72, 0
s_cbranch_scc1 L_fpoll
s_mov_b32 s70, 1
L_fok:
s_cmp_lg_u32 s33, 0
s_cbranch_scc1 L_nomode
s_cmp_eq_u32 s70, 0
s_cselect_b32 s70, 1, 0
v_mov_b32 v118, s70
ds_write_b32 {VZ}, v118 offset:{L_MODE}
L_nomode:""")
    stamp("hint")
    k(f"""s_mov_b32 s72, {SPIN}
L_qpoll:
s_mov_b32 s76, s75""")
    for ks in range(4):
        k(f"""buffer_load_dwordx4 v[{64+8*ks}:{64+8*ks+3}], v120, {SWS}, s76 offen sc1
buffer_load_dwordx4 v[{64+8*ks+4}:{64+8*ks+7}], v120, {SWS}, s76 offen offset:1024 sc1
s_add_u32 s76, s76, s66""")
    k("s_waitcnt vmcnt(0)")
    tagacc(range(64, 96), "v96", "v97", "v98")
    k(f"""v_cmp_ne_u32 vcc, 0, v96
s_cbranch_vccz L_qok
s_sub_u32 s72, s72, 1
s_cmp_lg_u32 s72, 0
s_cbranch_scc1 L_qpoll
L_qok:""")
    for i in range(8):
        k(f"v_add_f32 v{64+i}, v{64+i}, v{72+i}\nv_add_f32 v{80+i}, v{80+i}, v{88+i}")
    for i in range(8):
        k(f"v_add_f32 v{64+i}, v{64+i}, v{80+i}")
    for i in range(8):
        k(f"v_max_f32 v{64+i}, s67, v{64+i}")
    for i in range(4):
        k(f"v_cvt_pk_bf16_f32 v{96+i}, v{64+2*i}, v{65+2*i}")
    k(f"""ds_write_b64 v121, v[96:97]
ds_write_b64 v121, v[98:99] offset:512""")
    lds_inc(0, vaddr="v122")
    k("L_nog:")
    lds_wait(L_F_Q, 1)
    k(f"ds_read_b128 v[96:99], v113 offset:{L_Q}\nds_read_b32 v118, {VZ} offset:{L_MODE}\ns_waitcnt vmcnt(0) lgkmcnt(0)\nv_readfirstlane_b32 s67, v118")
    if qrot: k("s_mov_b32 s67, 1")
    stamp("qready")
    def Dreg(t): return 100 if t == 0 else 4 * (t - 1)
    def qk_step(t, i):
        D = Dreg(t); tb = t >> 2; R = 104 + (t & 3)
        qs = [q for q in range(4) if q != tb]
        q = qs[i]; n = (4 * (tb - q)) % 16
        src1 = f"v{D+tb}" if i == 0 else f"v{R}"
        k(f"v_add_f32_dpp v{R}, v{D+q}, {src1} row_ror:{n} row_mask:0xf bank_mask:{1 << tb:#x}")
    for t in range(16 + 5):
        if t < 16:
            mfma(Dreg(t), 4 * t, 96, None)
        for i in range(3):
            tt = t - 3 - i
            if 0 <= tt < 16: qk_step(tt, i)
    k(f"""s_mov_b32 s76, {SCALE:#x}
s_mov_b32 s77, {LOG2E:#x}
v_cvt_pk_bf16_f32 v0, v104, v105
v_cvt_pk_bf16_f32 v1, v106, v107
v_lshlrev_b32 v2, 16, v0
v_and_b32 v3, 0xffff0000, v0
v_lshlrev_b32 v4, 16, v1
v_and_b32 v5, 0xffff0000, v1
v_mul_f32 v2, s76, v2
v_mul_f32 v3, s76, v3
v_mul_f32 v4, s76, v4
v_mul_f32 v5, s76, v5
v_cvt_pk_bf16_f32 v0, v2, v3
v_cvt_pk_bf16_f32 v1, v4, v5
v_lshlrev_b32 v2, 16, v0
v_and_b32 v3, 0xffff0000, v0
v_lshlrev_b32 v4, 16, v1
v_and_b32 v5, 0xffff0000, v1
v_max3_f32 v6, v2, v3, v4
v_max_f32 v6, v6, v5""")
    row_reduce("v_max_f32", "v6", (4, 8))
    xrow_reduce("v_max_f32", "v6", "v7")
    k(f"""s_mov_b64 exec, 0xf
ds_write_b32 v117, v6 offset:{L_STAT}
s_mov_b64 exec, -1""")
    lds_inc(L_CNT_K)
    lds_wait(L_CNT_K, 8)
    k(f"ds_read_b32 v6, v116 offset:{L_STAT}\ns_waitcnt lgkmcnt(0)")
    row_reduce("v_max_f32", "v6", (4, 8))
    xrow_reduce("v_max_f32", "v6", "v7", (16,))
    for i in range(4): k(f"v_sub_f32 v{2+i}, v{2+i}, v6")
    for i in range(4): k(f"v_mul_f32 v{2+i}, s77, v{2+i}")
    for i in range(4): k(f"v_exp_f32 v{2+i}, v{2+i}")
    k(f"""v_cvt_pk_bf16_f32 v0, v2, v3
v_cvt_pk_bf16_f32 v1, v4, v5
ds_write_b64 v114, v[0:1] offset:{L_P}
v_add_f32 v8, v2, v3
v_add_f32 v9, v4, v5
v_add_f32 v8, v8, v9""")
    row_reduce("v_add_f32", "v8", (4, 8))
    xrow_reduce("v_add_f32", "v8", "v7")
    k(f"""v_mov_b32 v11, 1
s_mov_b64 exec, 0xf
ds_write_b32 v117, v8 offset:{L_STAT+16}
s_mov_b64 exec, -1
s_waitcnt lgkmcnt(0)
s_mov_b64 exec, 1
ds_write_b32 v123, v11 offset:{L_F_P}
ds_add_u32 {VZ}, v11 offset:{L_CNT_L}
s_mov_b64 exec, -1""")
    stamp("qkdone")
    k("s_cmp_lg_u32 s33, 6\ns_cbranch_scc1 L_nostat")
    lds_wait(L_CNT_L, 8)
    k(f"""ds_read_b32 v8, v116 offset:{L_STAT+16}
v_mov_b32 v7, {TA}
v_mov_b32 v9, {TB}
s_lshl_b32 s76, s32, 9
s_add_u32 s76, s76, {WS_ST}
s_lshl_b32 s75, s29, 4
s_add_u32 s76, s76, s75
v_lshlrev_b32 v10, 7, {VL}
s_waitcnt lgkmcnt(0)""")
    row_reduce("v_add_f32", "v8", (4, 8))
    xrow_reduce("v_add_f32", "v8", "v11", (16,))
    k(f"""s_mov_b64 exec, 0xf
buffer_store_dwordx4 v[6:9], v10, {SWS}, s76 offen sc1
s_mov_b64 exec, -1""")
    k("L_nostat:")
    k("s_cmp_lg_u32 s33, 7\ns_cbranch_scc1 L_nofin")
    k(f"""v_lshrrev_b32 v108, 3, {VL}
v_lshrrev_b32 v118, 1, v111
v_lshl_add_u32 v110, v108, 11, v118
v_lshl_add_u32 v112, v108, 14, v118
s_lshl_b32 s87, s28, 16
s_lshl_b32 s76, s30, 6
s_add_u32 s87, s87, s76
s_add_u32 s87, s87, {WS_OA}
s_lshl_b32 s84, s28, 11
s_add_u32 s84, s84, s76
s_add_u32 s84, s84, {WS_OB}
s_lshl_b32 s88, s28, 10
s_lshl_b32 s76, s26, 7
s_add_u32 s88, s88, s76
s_lshl_b32 s76, s29, 2
s_add_u32 s88, s88, s76
buffer_load_dword v20, v111, {SX}, s88 offen""")
    k("L_nofin:")
    k("v_and_b32 v123, 12, v123")
    lds_wait(L_F_D, 1, vaddr="v123")
    k(f"""s_lshl_b32 s82, s33, 3
s_add_u32 s82, s82, s26
s_lshl_b32 s89, s82, 13
s_lshl_b32 s82, s82, 9
s_lshl_b32 s83, s29, 7
s_add_u32 s82, s82, s83
s_add_u32 s82, s82, {WS_ST}
s_lshl_b32 s83, s29, 9
s_add_u32 s89, s89, s83
s_add_u32 s89, s89, {WS_OX}
s_add_u32 s90, s89, 4096
s_mov_b32 s72, {SPIN}
L_stpoll:
s_load_dwordx16 s[4:19], s[24:25], s82 glc
s_waitcnt lgkmcnt(0)
s_mov_b32 s73, 0""")
    for p in range(4):
        k(f"""s_xor_b32 s83, s{4+4*p+1}, {TA}
s_or_b32 s73, s73, s83
s_xor_b32 s83, s{4+4*p+3}, {TB}
s_or_b32 s73, s73, s83""")
    k(f"""s_cmp_eq_u32 s73, 0
s_cbranch_scc1 L_stok
s_sleep 12
s_sub_u32 s72, s72, 1
s_cmp_lg_u32 s72, 0
s_cbranch_scc1 L_stpoll
L_stok:
v_mov_b32 v56, s4
v_max_f32 v56, s8, v56
v_max_f32 v56, s12, v56
v_max_f32 v56, s16, v56""")
    for p in range(4): k(f"v_sub_f32 v{52+p}, s{4+4*p}, v56")
    for p in range(4): k(f"v_mul_f32 v{52+p}, s77, v{52+p}")
    for p in range(4): k(f"v_exp_f32 v{52+p}, v{52+p}")
    k(f"""v_mul_f32 v56, s6, v52
v_fmac_f32 v56, s10, v53
v_fmac_f32 v56, s14, v54
v_fmac_f32 v56, s18, v55
v_rcp_f32 v56, v56""")
    for p in range(4): k(f"v_mul_f32 v{52+p}, v{52+p}, v56")
    k(f"""s_lshl_b32 s76, s33, 8
v_lshlrev_b32 v62, 2, {VL}
v_add_u32 v62, s76, v62
v_lshlrev_b32 v61, 3, {VL}
s_lshl_b32 s78, s32, 2
s_add_u32 s78, s78, s29
s_lshl_b32 s78, s78, 11
s_add_u32 s78, s78, {WS_OX}""")
    ldx = lambda m, B: k(f"buffer_load_dwordx2 v[{B+2*m}:{B+1+2*m}], v61, {SWS}, s{89 + m//2} offen offset:{2048*(m%2)} sc1")
    if pre:
        lds_wait(L_CNT_VI, pre)
        for m in range(4): ldx(m, 32)
        if obpre:
            k(f"""s_cmp_lg_u32 s33, 7
s_cbranch_scc1 L_noob
v_and_b32 v70, {SM8}, {VT}
v_and_b32 v71, {SM8}, {VT}""")
            for m in range(4):
                if m == 3: k("s_mov_b32 exec_hi, 0")
                k(f"s_add_u32 s85, s84, {m*8*16384}\nbuffer_load_dwordx2 v[{64+2*m}:{65+2*m}], v112, {SWS}, s85 offen sc1")
            k("s_mov_b64 exec, -1\nL_noob:")
    k("s_cmp_eq_u32 s67, 1")
    stamp("kready")
    k("s_barrier")
    stamp("bar2")
    k(f"""ds_read_b32 v96, v62 offset:{L_OP}
ds_read_b32 v97, v62 offset:{L_OP+2048}
ds_read_b32 v98, v62 offset:{L_OP+4096}
ds_read_b32 v99, v62 offset:{L_OP+6144}
s_waitcnt lgkmcnt(2)
v_add_f32 v96, v96, v97
s_waitcnt lgkmcnt(0)
v_add_f32 v98, v98, v99
v_add_f32 v96, v96, v98""")
    settag(96)
    k(f"""s_cbranch_scc1 L_oxpl
buffer_store_dword v96, v62, {SWS}, s78 offen sc1
s_branch L_oxst
L_oxpl:
buffer_store_dword v96, v62, {SWS}, s78 offen
L_oxst:""")
    stamp("oxst")
    if stamps and "poll1" in stamps:
        k("s_waitcnt vmcnt(0)"); stamp("poll1")
    if not pre:
        for m in range(4): ldx(m, 32)
    def oxcomb(B):
        k(f"""v_mul_f32 v58, v{B}, v52
v_mul_f32 v59, v{B+1}, v52
v_mul_f32 v56, v{B+4}, v54
v_mul_f32 v57, v{B+5}, v54
v_fmac_f32 v58, v{B+2}, v53
v_fmac_f32 v59, v{B+3}, v53
v_fmac_f32 v56, v{B+6}, v55
v_fmac_f32 v57, v{B+7}, v55""")
    if poll4("L_ox", ldx, dbl=dblx, w1=bool(pre)):
        oxcomb(40)
        k("s_branch L_oxj\nL_oxok:")
    stamp("oxok")
    oxcomb(32)
    k(f"""L_oxj:
v_add_f32 v58, v58, v56
v_add_f32 v59, v59, v57
v_cvt_pk_bf16_f32 v58, v58, v59
ds_write_b32 v62, v58 offset:{L_O16}
s_waitcnt lgkmcnt(0)
s_barrier""")
    stamp("bar3")
    k("s_cmp_eq_u32 s33, 7\ns_cbranch_scc1 L_final")
    stamp("kend")
    stamp_flush()
    k("s_endpgm")
    k.flush()
    k("L_final:")
    def gather(vaddr, sbase, step, lab, d0, d1, partial, dbl):
        k("s_waitcnt vmcnt(0)")
        if partial:
            k(f"v_and_b32 v38, {SM8}, {VT}\nv_and_b32 v39, {SM8}, {VT}")
        for m in range(4): k(f"s_add_u32 s{80+m}, {sbase}, {m*step}")
        ld = lambda m, B: k(f"buffer_load_dwordx2 v[{B+2*m}:{B+1+2*m}], {vaddr}, {SWS}, s{80+m} offen sc1")
        if partial and obpre:
            for i in range(8): k(f"v_mov_b32 v{32+i}, v{64+i}")
        else:
            if not partial and oadelay: k(f"s_sleep {oadelay}")
            for m in range(4):
                if partial and m == 3: k("s_mov_b32 exec_hi, 0")
                ld(m, 32)
            if partial: k("s_mov_b64 exec, -1")
        def comb(B):
            k(f"""v_add_f32 v56, v{B}, v{B+2}
v_add_f32 v57, v{B+1}, v{B+3}
v_add_f32 v58, v{B+4}, v{B+6}
v_add_f32 v59, v{B+5}, v{B+7}""")
        if poll4(lab, ld, slp=oasleep, dbl=dbl, partial=partial):
            comb(40)
            k(f"s_branch {lab}j\n{lab}ok:")
        comb(32)
        k(f"""{lab}j:
v_add_f32 {d0}, v56, v58
v_add_f32 {d1}, v57, v59
v_add_f32_dpp {d0}, {d0}, {d0} row_ror:8 row_mask:0xf bank_mask:0xf
v_add_f32_dpp {d1}, {d1}, {d1} row_ror:8 row_mask:0xf bank_mask:0xf""")
        for w in (16, 32):
            k(f"""v_mov_b32 v48, {d0}
v_mov_b32 v49, {d1}
v_permlane{w}_swap_b32 {d0}, v48
v_permlane{w}_swap_b32 {d1}, v49
v_add_f32 {d0}, {d0}, v48
v_add_f32 {d1}, {d1}, v49""")
        k(f"""v_cvt_pk_bf16_f32 v48, {d0}, {d1}
v_lshlrev_b32 {d0}, 16, v48
v_and_b32 {d1}, 0xffff0000, v48""")
    if "noffn" not in abl: gather("v112", "s84", 8 * 16384, "L_ob", "v22", "v23", True, 0)
    k("v_and_b32 v21, 0xffff0000, v20\nv_lshlrev_b32 v20, 16, v20")
    gather("v110", "s87", 16384, "L_oa", "v24", "v25", False, dbla)
    k(f"""v_add_f32 v20, v20, v24
v_add_f32 v21, v21, v25
v_cvt_pk_bf16_f32 v16, v20, v21
v_lshlrev_b32 v20, 16, v16
v_and_b32 v21, 0xffff0000, v16
v_add_f32 v20, v20, v22
v_add_f32 v21, v21, v23
v_cvt_pk_bf16_f32 v20, v20, v21
s_mov_b64 exec, 0xff
buffer_store_dword v20, v111, {SOUT}, s88 offen
s_mov_b64 exec, -1""")
    stamp("kend")
    stamp_flush()
    k(f"""s_cmp_lg_u32 s2, 0
s_cbranch_scc1 L_end
s_mov_b32 s76, {WS_E}
s_mov_b64 exec, 1
buffer_store_dword {VT}, {VZ}, {SWS}, s76 offen""")
    if probe:
        k(f"""s_memrealtime s[98:99]
s_waitcnt lgkmcnt(0)
s_sub_u32 s76, s98, s96
s_mul_i32 s76, s76, {probe}
L_probe:
s_memrealtime s[100:101]
s_waitcnt lgkmcnt(0)
s_sub_u32 s77, s100, s98
s_cmp_lt_u32 s77, s76
s_cbranch_scc1 L_probe""")
    k("s_endpgm")

    k.flush()
    k("L_ln:")
    for i in range(4):
        k(f"v_lshlrev_b32 v{100+2*i}, 16, v{96+i}\nv_and_b32 v{101+2*i}, 0xffff0000, v{96+i}")
    k("""v_add_f32 v96, v100, v101
v_add_f32 v97, v102, v103
v_add_f32 v98, v104, v105
v_add_f32 v99, v106, v107
v_add_f32 v96, v96, v97
v_add_f32 v98, v98, v99
v_add_f32 v96, v96, v98""")
    row_reduce("v_add_f32", "v96")
    xrow_reduce("v_add_f32", "v96", "v97")
    k("v_mul_f32 v96, 0x3b000000, v96")
    k("v_sub_f32 v98, v100, v96\nv_mul_f32 v97, v98, v98")
    for i in range(1, 8):
        k(f"v_sub_f32 v98, v{100+i}, v96\nv_fmac_f32 v97, v98, v98")
    row_reduce("v_add_f32", "v97")
    xrow_reduce("v_add_f32", "v97", "v98")
    k("v_mul_f32 v97, 0x3b000000, v97")
    rnd("v96", "v96"); rnd("v97", "v97")
    k("v_add_f32 v97, 0x3727c5ac, v97")
    rnd("v97", "v97")
    k("v_sqrt_f32 v97, v97")
    rnd("v97", "v97")
    k("v_rcp_f32 v98, v97")
    for i in range(0, 8, 2):
        a, b2 = 100 + i, 101 + i
        k(f"""v_sub_f32 v{a}, v{a}, v96
v_sub_f32 v{b2}, v{b2}, v96
v_cvt_pk_bf16_f32 v99, v{a}, v{b2}
v_lshlrev_b32 v{a}, 16, v99
v_and_b32 v{b2}, 0xffff0000, v99""")
    for i in range(8):
        a = 100 + i
        k(f"""v_mul_f32 v99, v{a}, v98
v_fma_f32 v{a}, -v99, v97, v{a}
v_fma_f32 v{a}, v{a}, v98, v99""")
    for i in range(4):
        k(f"v_cvt_pk_bf16_f32 v{96+i}, v{100+2*i}, v{101+2*i}")
    k(f"""s_lshl_b32 s75, s33, 10
v_add_u32 v122, s75, v120
ds_write_b128 v122, v[96:99] offset:{L_XN}""")
    lds_inc(L_CNT_XN)
    stamp("ln")
    srd(56, 24, None, WS_SIZE)
    srd(40, 8, "s74", 524288)
    k(f"""s_mov_b32 s66, 0
s_cmp_eq_u32 s33, 0
s_cbranch_scc1 L_tq
s_cmp_lt_u32 s33, 3
s_cbranch_scc1 L_f2l
s_cmp_lg_u32 s33, 4
s_cbranch_scc1 L_vload
s_bitcmp0_b32 s65, 0
s_cbranch_scc1 L_vload""")
    k(f"""v_lshrrev_b32 v121, 3, {VL}
v_lshlrev_b32 v123, 7, v121
v_lshlrev_b32 v121, 8, v121
v_lshrrev_b32 v122, 2, v111
v_add_u32 v123, v123, v122
s_lshl_b32 s75, s64, 2
s_add_u32 s75, s75, s29
s_lshl_b32 s75, s75, 11
s_add_u32 s75, s75, {WS_HP}
s_lshl_b32 s76, s26, 12
s_lshl_b32 s77, s51, 9
s_add_u32 s76, s76, s77
s_lshl_b32 s77, s29, 5
s_add_u32 s76, s76, s77
s_add_u32 s76, s76, {WS_HH}
s_branch L_tile
L_tq:
v_lshrrev_b32 v121, 3, {VL}
v_lshlrev_b32 v121, 14, v121
v_lshlrev_b32 v123, 7, {VL}
s_lshl_b32 s75, s29, 17
s_lshl_b32 s76, s50, 11
s_add_u32 s75, s75, s76
s_lshl_b32 s77, s48, 8
s_add_u32 s75, s75, s77
s_lshl_b32 s76, s50, 12
s_lshl_b32 s77, s27, 2
s_add_u32 s76, s76, s77
s_add_u32 s76, s76, {WS_HQ}
L_tile:
v_add_u32 v121, v111, v121""")
    arow_addr("v122", "v118", 10)
    k(f"""s_lshl_b32 s77, s29, 8
v_add_u32 v122, s77, v122""")
    lds_wait(L_CNT_XN, 8)
    k(f"""ds_read_b128 v[96:99], v122 offset:{L_XN}
ds_read_b128 v[100:103], v122 offset:{L_XN+128}""")
    gettags()
    k(f"""s_getreg_b32 s77, hwreg(HW_REG_XCC_ID)
s_and_b32 s77, s77, 15
s_andn2_b32 s79, {TB}, 15
s_or_b32 s77, s77, s79
v_mov_b32 v122, s77""")
    for ub in range(2):
        k(f"s_waitcnt vmcnt({8 - 8*ub})")
        for w in range(4):
            T = 104 + 8 * (w & 1)
            perms(T, 32 * ub, w)
            mfma(64 + 8 * w, 96 + 4 * ub, T, None if ub == 0 else 64 + 8 * w)
            mfma(68 + 8 * w, 96 + 4 * ub, T + 4, None if ub == 0 else 68 + 8 * w)
    for w in range(4):
        pairsum(2 * w, 2 * w + 1, 64 + 8 * w, 68 + 8 * w, SM)
    k(f"""buffer_store_dwordx4 v[0:3], v121, {SWS}, s75 offen{lst}
buffer_store_dwordx4 v[4:7], v121, {SWS}, s75 offen offset:128{lst}
s_mov_b32 exec_hi, 0
buffer_store_dword v122, v123, {SWS}, s76 offen{hst}
s_mov_b64 exec, -1""")
    stamp("tpub")
    k("s_branch L_vload")
    k.flush()
    k("L_f2l:")
    k("s_bitcmp0_b32 s65, 1\ns_cbranch_scc1 L_vload")
    srd(44, 18, None, 1792 * 1024)
    k(f"""s_setprio 0
s_mov_b32 s66, 1
v_lshl_add_u32 v121, v112, 10, v111
s_lshl_b32 s75, s64, 16
s_lshl_b32 s76, s29, 8
s_add_u32 s75, s75, s76
s_sub_u32 s76, s33, 1
s_lshl_b32 s76, s76, 7
s_add_u32 s75, s75, s76
s_add_u32 s76, s75, 4096""")
    for t in range(8):
        k(f"buffer_load_dwordx4 v[{64+4*t}:{64+4*t+3}], v121, {SWA}, s{75 + t//4} offen offset:{(t%4)*1024}{wfl}")
    k("s_branch L_vload")
    k.flush()
    k("L_vload:")
    k(f"""s_setprio 0
s_movk_i32 s77, 0x1000""")
    for t in range(16):
        k(f"s_add_u32 s55, s78, s53\nbuffer_load_dwordx4 v[{4*t}:{4*t+3}], v120, {SKV}, s55 offen{kvflag}\ns_add_u32 s53, s53, s77\ns_and_b32 s53, s53, s54")
    k("s_cmp_lt_u32 s33, 4\ns_cbranch_scc1 L_novi")
    srd(44, 12, None, 4 << 20)
    k(f"""v_bfe_u32 v121, {VL}, 3, 1
v_lshlrev_b32 v121, 6, v121
v_lshrrev_b32 v122, 4, {VL}
v_add_u32 v121, v121, v122
v_and_b32 v122, 7, {VL}
v_lshlrev_b32 v122, 4, v122
v_lshl_add_u32 v121, v121, 10, v122
s_lshl_b32 s75, s30, 17
s_lshl_b32 s76, s49, 7
s_add_u32 s75, s75, s76
s_bfe_u32 s76, s33, 0x10001
s_lshl_b32 s76, s76, 12
s_add_u32 s75, s75, s76
s_and_b32 s76, s33, 1
s_lshl_b32 s76, s76, 15
s_add_u32 s75, s75, s76
s_and_b32 s77, s33, 3
s_lshl_b32 s77, s77, 12
s_add_u32 m0, s77, {L_WT}""")
    if strict:
        lds_inc(L_CNT_VI)
        lds_wait(L_CNT_VI, 4)
    for t in range(4):
        k(f"buffer_load_dwordx4 v121, {SWA}, s75 offen{wfl} lds\ns_add_u32 m0, m0, 0x400\ns_add_u32 s75, s75, 0x2000")
    lds_inc(L_CNT_VI)
    k("L_novi:")
    stamp("vissued")
    k("""s_cmp_eq_u32 s66, 0
s_cbranch_scc1 L_noj
s_waitcnt vmcnt(16)""")
    k("L_f2:")
    arow_addr("v122", "v118", 7)
    k(f"""v_lshrrev_b32 v121, 3, {VL}
v_lshlrev_b32 v121, 11, v121
v_and_b32 v123, 7, {VL}
v_lshl_add_u32 v121, v123, 3, v121
s_lshl_b32 s75, s64, 14
s_lshl_b32 s76, s29, 9
s_add_u32 s75, s75, s76
s_sub_u32 s76, s33, 1
s_lshl_b32 s76, s76, 8
s_add_u32 s75, s75, s76
s_add_u32 s75, s75, {WS_OB}""")
    lds_wait(L_F_HN, 1)
    k(f"ds_read_b128 v[112:115], v122 offset:{L_HN}")
    gettags()
    k("s_setprio 3")
    for w in range(4):
        G = 116 + 2 * (w & 1)
        perms(96, 64, w)
        mfma(104, 112, 96, None)
        mfma(108, 112, 100, None)
        pairsum(G, G + 1, 104, 108)
        k(f"buffer_store_dwordx2 v[{G}:{G+1}], v121, {SWS}, s75 offen offset:{64*w} sc1")
    k("s_setprio 0")
    stamp("tpub")
    k("L_noj:")
    k(f"""v_lshrrev_b32 v108, 4, {VL}
v_and_b32 v110, 3, {VL}
v_bfe_u32 v109, {VL}, 2, 2
v_lshlrev_b32 v122, 7, v110
v_lshl_add_u32 v122, v108, 5, v122
s_lshl_b32 s75, s33, 9
s_add_u32 s75, s75, {L_P}
v_add_u32 v122, s75, v122
v_mov_b32 v123, {L_ZERO}""")
    for dl in range(4):
        k(f"v_cmp_eq_u32 vcc, {dl}, v109\nv_cndmask_b32 v{112+dl}, v123, v122, vcc")
    k(f"""s_lshl_b32 s75, s33, 2
v_mov_b32 v123, s75
s_and_b32 s75, s33, 3
s_lshl_b32 s76, s75, 2
v_mov_b32 v121, s76
s_lshl_b32 s75, s75, 11
v_add_u32 v120, s75, v120
v_lshlrev_b32 v122, 2, {VL}
v_add_u32 v122, s75, v122""")
    lds_wait(L_F_P, 1, vaddr="v123")
    for ub in range(2):
        for dl in range(4):
            r = 64 + 16 * ub + 4 * dl
            k(f"ds_read_b128 v[{r}:{r+3}], v{112+dl} offset:{16*ub}")
    k("s_cmp_ge_u32 s33, 4\ns_cbranch_scc1 L_g3")
    for i in range(8): k(f"v_mov_b32 v{96+i}, 0")
    k("s_branch L_pv\nL_g3:")
    lds_wait(L_F_D, 1, vaddr="v121")
    k(f"""ds_read_b128 v[96:99], v120 offset:{L_DX}
ds_read_b128 v[100:103], v120 offset:{L_DX+1024}
L_pv:
s_waitcnt lgkmcnt(0)
s_cmp_ge_u32 s33, 4""")
    def vwait(n):
        lab = k.label("Lv")
        k(f"s_cbranch_scc1 {lab}\ns_waitcnt vmcnt({n})\n{lab}:\ns_waitcnt vmcnt({n+4})")
    vwait(8)
    for w in range(4):
        T = 104 + 8 * (w & 1)
        perms(T, 0, w)
        for hh in range(2):
            di = 2 * w + hh; x = di >> 2; dl = di & 3
            mfma(96 + 4 * x, 64 + 4 * dl, T + 4 * hh, 96 + 4 * x)
    for p in range(4):
        vwait(6 - 2 * p)
        if p == 3: stamp("varr")
        for w in range(4):
            k(f"v_perm_b32 v{8*w+p}, v{32+4*(2*p+1)+w}, v{32+4*(2*p)+w}, s34")
            k(f"v_perm_b32 v{8*w+4+p}, v{32+4*(2*p+1)+w}, v{32+4*(2*p)+w}, s35")
            if p == 3 and w >= 1:
                di = 2 * (w - 1)
                for d in (di, di + 1):
                    mfma(96 + 4 * (d >> 2), 80 + 4 * (d & 3), 4 * d, 96 + 4 * (d >> 2))
    for d in (6, 7):
        mfma(96 + 4 * (d >> 2), 80 + 4 * (d & 3), 4 * d, 96 + 4 * (d >> 2))
    k("s_cmp_ge_u32 s33, 4\ns_cbranch_scc1 L_g3b")
    k(f"""ds_write_b128 v120, v[96:99] offset:{L_DX}
ds_write_b128 v120, v[100:103] offset:{L_DX+1024}""")
    lds_inc(L_F_D, vaddr="v121")
    stamp("pvdone")
    stamp_flush()
    k("s_endpgm")
    k.flush()
    k("L_g3b:")
    for x in range(2):
        for h in range(4):
            k(f"ds_write_b32 v122, v{96+4*x+h} offset:{L_OP + h*512 + x*256}")
    k("s_waitcnt lgkmcnt(0)")
    stamp("pvdone")
    k("s_barrier")
    gettags()
    arow_addr("v123", "v118", 8)
    k(f"""s_and_b32 s77, s33, 3
s_lshl_b32 s76, s77, 2
v_lshlrev_b32 v121, 4, {VL}
v_add_u32 v121, s76, v121
v_lshrrev_b32 v122, 3, {VL}
v_lshlrev_b32 v122, 16, v122
v_and_b32 v118, 7, {VL}
v_lshl_add_u32 v122, v118, 3, v122
s_lshl_b32 s86, s30, 11
s_lshl_b32 s76, s49, 8
s_add_u32 s86, s86, s76
s_lshl_b32 s76, s77, 6
s_add_u32 s86, s86, s76
s_add_u32 s86, s86, {WS_OA}
s_waitcnt vmcnt(0)""")
    lds_inc(L_CNT_WO)
    lds_wait(L_CNT_WO, 4, slp=0)
    for n in range(16):
        k(f"ds_read_b32 v{n}, v121 offset:{L_WT + 1024*n}")
    for ub in range(2):
        k(f"s_waitcnt lgkmcnt({8 - 8*ub})")
        for p in range(4):
            k(f"v_perm_b32 v{16+8*ub+p}, v{8*ub+2*p+1}, v{8*ub+2*p}, s34")
            k(f"v_perm_b32 v{16+8*ub+4+p}, v{8*ub+2*p+1}, v{8*ub+2*p}, s35")
    stamp("woready")
    k(f"""s_barrier
ds_read_b128 v[96:99], v123 offset:{L_O16}
ds_read_b128 v[100:103], v123 offset:{L_O16+128}
s_waitcnt lgkmcnt(1)""")
    mfma(104, 96, 16, None); mfma(108, 96, 20, None)
    k("s_waitcnt lgkmcnt(0)")
    mfma(104, 100, 24, 104); mfma(108, 100, 28, 108)
    pairsum(112, 113, 104, 108)
    k(f"buffer_store_dwordx2 v[112:113], v122, {SWS}, s86 offen sc1")
    stamp("gend")
    stamp_flush()
    k("L_end:")
    k("s_endpgm")
    k("L_codeend:")

    T = []
    T.append('.section .rodata,"a"'); T.append(".p2align 6")
    T.append(f".amdhsa_kernel {NAME}_kernel")
    T.append("  .amdhsa_next_free_vgpr 128"); T.append("  .amdhsa_next_free_sgpr 102"); T.append("  .amdhsa_accum_offset 128")
    T.append("  .amdhsa_group_segment_fixed_size 0"); T.append("  .amdhsa_kernarg_size 88"); T.append("  .amdhsa_user_sgpr_count 2")
    T.append("  .amdhsa_user_sgpr_kernarg_segment_ptr 1"); T.append("  .amdhsa_system_sgpr_workgroup_id_x 1")
    T.append("  .amdhsa_float_denorm_mode_32 3")
    T.append(".end_amdhsa_kernel")
    open(fname, "w").write("\n".join(H) + "\n" + k.text() + "\n".join(T) + "\n")

SA = {"start": 0, "hint": 1, "qready": 2, "ln": 1, "tpub": 1, "vissued": 2}
SB = {"start": 0, "qkdone": 1, "kready": 2, "varr": 1, "pvdone": 2}
SC = {"start": 0, "bar2": 1, "kend": 2, "varr": 1, "pvdone": 2}
SE = {"start": 0, "bar3": 1, "kend": 2, "varr": 1, "pvdone": 2}
SD = {"start": 0, "kissued": 1, "qready": 2, "vissued": 1, "varr": 2}
SI = {"start": 0, "bar2": 1, "kend": 2, "woready": 1, "gend": 2}
if __name__ == "__main__":
    gen("k20.s")
    gen("k20_sc.s", stamps=SI)
    gen("k20_r0_sc.s", stamps=SI, rot=0)
    gen("k20_w0_sc.s", stamps=SI, rotw=0)
    gen("k20_w2_sc.s", stamps=SI, rotw=2)
    gen("k20_probe.s", probe=10)
```

```python
import sys, argparse
from asmlib import Asm
NAME = "parallel_sum__sliding_block_cached__dense_activation_relu__decode"

WS_QP = 0x000000
WS_OX = 0x080000
WS_OA = 0x100000
WS_OB = 0x180000
WS_HP = 0x1F0000
WS_ST = 0x228000
WS_HQ = 0x230000
WS_HH = 0x238000
WS_E  = 0x240000
WS_SIZE = 0x241000
STAMP_OFF = 256 << 20
L_CNT_XN = 0; L_MODE = 4; L_F_Q = 8; L_F_HN = 12; L_CNT_K = 16; L_CNT_L = 20; L_TAG = 24; L_F_P = 32
L_ZERO = 64; L_F_D = 96; L_CNT_VI = 112; L_CNT_WO = 116; L_ZEND = 128
L_STAT = 128; L_Q = 1024; L_HN = 2048; L_P = 3072; L_XN = 7168; L_OP = 15360; L_DX = L_OP + 8192; L_O16 = L_DX + 8192; L_WT = L_O16 + 2048; L_END = L_WT + 16384

LOG2E = 0x3fb8aa3b
SCALE = 0x3db504f3
SPIN = 1 << 16

def gen(fname, stamps=None, kvflag=" nt", psleep=0, abl=(), kfirst=0, lst=" sc1", tagmask=0xf, rxor=0, qx=4, ox=5, qrot=0, ffnmap="even", fx=0, probe=0, oasleep=0, dblx=0, dbla=4, pre=8, obpre=0, oadelay=0, wfl=None, hst=" sc1", strict=1, rot=1, rotw=2, opt=1):
    k = Asm()
    if wfl is None: wfl = kvflag
    H = []
    H.append(open("cdna_kernels/%s.s.ref" % NAME).read().split("; Override launch")[0].rstrip("\n"))
    H.append(f"; @launch grid=(256,1,1) block=(1024,1,1) lds={L_END}")
    H.append('.amdgcn_target "amdgcn-amd-amdhsa--gfx950"')
    H.append(".text"); H.append(f".globl {NAME}_kernel"); H.append(".p2align 8"); H.append(f".type {NAME}_kernel,@function")
    H.append(f"{NAME}_kernel:")

    VL = "v126"; VZ = "v127"; VT = "v124"
    TA, TB = "s68", "s69"
    SM = "s3"
    def srd(d, lo, off, size):
        if off is None:
            k(f"s_mov_b32 s{d}, s{lo}\ns_mov_b32 s{d+1}, s{lo+1}")
        else:
            k(f"s_add_u32 s{d}, s{lo}, {off}\ns_addc_u32 s{d+1}, s{lo+1}, 0")
        k(f"s_mov_b32 s{d+2}, {size}\ns_mov_b32 s{d+3}, 0x20000")
    SX, SKV, SWA, SWS, SOUT = [f"s[{a}:{a+3}]" for a in (36, 40, 44, 56, 60)]

    def stamp(name):
        if not stamps or name not in stamps: return
        sl = stamps[name]
        k(f"s_memrealtime s[{96+2*sl}:{97+2*sl}]")
    def stamp_flush():
        if not stamps: return
        k(f"""s_waitcnt lgkmcnt(0)
s_mov_b64 exec, 1
s_lshl_b32 s76, s2, 9
s_lshl_b32 s77, s31, 5
s_add_u32 s76, s76, s77
s_add_u32 s76, s76, {STAMP_OFF}
s_add_u32 s76, s24, s76
s_addc_u32 s77, s25, 0
v_mov_b32 v0, s96
v_mov_b32 v1, s97
v_mov_b32 v2, s98
v_mov_b32 v3, s99
v_mov_b32 v4, s100
v_mov_b32 v5, s101
global_store_dwordx4 {VZ}, v[0:3], s[76:77]
global_store_dwordx2 {VZ}, v[4:5], s[76:77] offset:16""")

    def lds_wait(addr, val, vaddr=VZ, vt="v125", slp=1):
        lp = k.label("Lw"); dn = k.label("Ld")
        k(f"s_mov_b32 s72, {SPIN}")
        k(f"{lp}:")
        k(f"""ds_read_b32 {vt}, {vaddr} offset:{addr}
s_waitcnt lgkmcnt(0)
v_readfirstlane_b32 s73, {vt}
s_cmp_ge_u32 s73, {val}
s_cbranch_scc1 {dn}
{"s_sleep 1" if slp else "s_nop 0"}
s_sub_u32 s72, s72, 1
s_cmp_lg_u32 s72, 0
s_cbranch_scc1 {lp}""")
        k(f"{dn}:")
    def lds_inc(addr, vaddr=VZ, vt="v125"):
        k(f"""s_waitcnt lgkmcnt(0)
v_mov_b32 {vt}, 1
s_mov_b64 exec, 1
ds_add_u32 {vaddr}, {vt} offset:{addr}
s_mov_b64 exec, -1""")
    def rnd(dst, src):
        k(f"v_cvt_pk_bf16_f32 {dst}, {src}, {src}\nv_lshlrev_b32 {dst}, 16, {dst}")
    def row_reduce(op, v, steps=(8, 4, 2, 1)):
        for n in steps:
            k(f"{op}_dpp {v}, {v}, {v} row_ror:{n} row_mask:0xf bank_mask:0xf")
    def xrow_reduce(op, v, t, which=(16, 32)):
        for w in which:
            k(f"v_mov_b32 {t}, {v}\nv_permlane{w}_swap_b32 {v}, {t}\n{op} {v}, {v}, {t}")
    def perms(T, W, w):
        for p in range(4):
            k(f"v_perm_b32 v{T+p}, v{W+4*(2*p+1)+w}, v{W+4*(2*p)+w}, s34")
        for p in range(4):
            k(f"v_perm_b32 v{T+4+p}, v{W+4*(2*p+1)+w}, v{W+4*(2*p)+w}, s35")
    def mfma(D, A, B, C):
        c = "0" if C is None else f"v[{C}:{C+3}]"
        k(f"v_mfma_f32_16x16x32_bf16 v[{D}:{D+3}], v[{A}:{A+3}], v[{B}:{B+3}], {c}")
    def gettags():
        k(f"""ds_read_b64 v[124:125], {VZ} offset:{L_TAG}
s_waitcnt lgkmcnt(0)
v_readfirstlane_b32 {TA}, v124
v_readfirstlane_b32 {TB}, v125""")
    SM8 = "s52"
    def settag(r, m=None):
        k(f"v_bfi_b32 v{r}, {m or SM8}, {VT}, v{r}")
    def tagacc(regs, acc, t1, t2):
        regs = list(regs)
        k(f"v_xor_b32 {acc}, {TA}, v{regs[0]}\nv_xor_b32 {t1}, {TA}, v{regs[1]}\nv_or_b32 {acc}, {acc}, {t1}")
        for i in range(2, len(regs), 2):
            k(f"v_xor_b32 {t1}, {TA}, v{regs[i]}\nv_xor_b32 {t2}, {TA}, v{regs[i+1]}\nv_or3_b32 {acc}, {acc}, {t1}, {t2}")
        k(f"v_and_b32 {acc}, {SM}, {acc}")
    def pairsum(G0, G1, D0, D1, m=None):
        k(f"""v_add_f32_dpp v{G0}, v{D0+1}, v{D0} row_shl:8 row_mask:0xf bank_mask:0x3
v_add_f32_dpp v{G1}, v{D1+1}, v{D1} row_shl:8 row_mask:0xf bank_mask:0x3
v_add_f32_dpp v{G0}, v{D0+2}, v{D0+3} row_shr:8 row_mask:0xf bank_mask:0xc
v_add_f32_dpp v{G1}, v{D1+2}, v{D1+3} row_shr:8 row_mask:0xf bank_mask:0xc""")
        settag(G0, m); settag(G1, m)
    def arow_addr(vd, vt, rowshift):
        k(f"""v_bfe_u32 {vd}, {VL}, 1, 3
v_lshlrev_b32 {vd}, {rowshift}, {vd}
v_and_b32 {vt}, 1, {VL}
v_lshl_add_u32 {vd}, {vt}, 4, {vd}
v_lshrrev_b32 {vt}, 4, {VL}
v_lshl_add_u32 {vd}, {vt}, 5, {vd}""")
    def poll4(lab, ld, slp=None, dbl=0, partial=False, w1=False):
        slp = psleep if slp is None else slp
        def check(B, ok):
            for p in range(4):
                k(f"v_bitop3_b32 v{48+p}, v{B+2*p}, v{B+1+2*p}, {VT} bitop3:0x7e")
            for p in range(4):
                k(f"v_cmp_ne_u32_sdwa s[{4+2*p}:{5+2*p}], v{48+p}, {VZ} src0_sel:BYTE_0 src1_sel:DWORD")
            k(f"""s_or_b64 s[12:13], s[4:5], s[6:7]
s_or_b64 s[14:15], s[8:9], s[10:11]
s_or_b64 s[12:13], s[12:13], s[14:15]
s_cbranch_scc0 {ok}""")
        def reissue(B):
            for m in range(4):
                k(f"s_cmp_lg_u64 s[{4+2*m}:{5+2*m}], 0\ns_cselect_b64 exec, -1, 0")
                if partial and m == 3: k("s_mov_b32 exec_hi, 0")
                ld(m, B)
            k("s_mov_b64 exec, -1")
        k(f"s_mov_b32 s72, {SPIN}")
        if not dbl:
            if w1:
                k(f"s_waitcnt vmcnt(1)\ns_branch {lab}c")
            k(f"{lab}poll:\ns_waitcnt vmcnt(0)\n{lab}c:")
            check(32, f"{lab}ok")
            if slp: k(f"s_sleep {slp}")
            reissue(32)
            k(f"""s_sub_u32 s72, s72, 1
s_cmp_lg_u32 s72, 0
s_cbranch_scc1 {lab}poll
{lab}ok:""")
        else:
            k("s_waitcnt vmcnt(0)")
            check(32, f"{lab}ok")
            for i in range(8): k(f"v_mov_b32 v{40+i}, v{32+i}")
            reissue(32)
            k(f"s_sleep {dbl}")
            reissue(40)
            k(f"{lab}poll:\ns_waitcnt vmcnt(4)")
            check(32, f"{lab}ok")
            reissue(32)
            k("s_waitcnt vmcnt(4)")
            check(40, f"{lab}okb")
            reissue(40)
            k(f"""s_sub_u32 s72, s72, 1
s_cmp_lg_u32 s72, 0
s_cbranch_scc1 {lab}poll
{lab}okb:
s_waitcnt vmcnt(0)""" if False else f"""s_sub_u32 s72, s72, 1
s_cmp_lg_u32 s72, 0
s_cbranch_scc1 {lab}poll
{lab}okb:""")
            return True
        return False

    stamp("start")
    if probe: k("s_memrealtime s[96:97]")
    k(f"""s_cmp_ge_u32 s2, 256
s_cbranch_scc1 L_end
s_load_dwordx16 s[4:19], s[0:1], 0
s_load_dwordx4 s[20:23], s[0:1], 64
s_load_dwordx2 s[24:25], s[0:1], 80
s_and_b32 s26, s2, 7
s_lshr_b32 s27, s2, 3
s_xor_b32 s27, s27, {rxor}
s_lshr_b32 s28, s27, 2
s_and_b32 s29, s27, 3
s_lshl_b32 s30, s26, 2
s_add_u32 s30, s30, s29
s_lshl_b32 s32, s28, 3
s_add_u32 s32, s32, s26
s_mov_b32 s34, 0x05040100
s_mov_b32 s35, 0x07060302
s_movk_i32 {SM}, {tagmask}
s_movk_i32 s52, 0xff
v_and_b32 {VL}, 63, v0
v_mov_b32 {VZ}, 0
v_lshrrev_b32 v1, 6, v0
v_lshlrev_b32 v2, 2, v0
v_readfirstlane_b32 s31, v1
v_cmp_gt_u32 vcc, {L_ZEND//4}, v0
s_and_saveexec_b64 s[70:71], vcc
ds_write_b32 v2, {VZ}
s_mov_b64 exec, s[70:71]
s_lshl_b32 s74, s28, 24
s_lshl_b32 s75, s26, 21
s_add_u32 s74, s74, s75
s_add_u32 s74, s74, {6144*256}
s_and_b32 s33, s31, 7
v_lshrrev_b32 v108, 4, {VL}
v_and_b32 v111, 7, {VL}
v_lshlrev_b32 v111, 4, v111
v_bfe_u32 v112, {VL}, 3, 1
v_lshlrev_b32 v112, 3, v112
v_lshl_add_u32 v112, v108, 4, v112
v_lshlrev_b32 v120, 4, {VL}
s_and_b32 s75, s33, 3
s_lshl_b32 s75, s75, 10
s_lshr_b32 s76, s33, 2
s_lshl_b32 s76, s76, 16
s_add_u32 s75, s75, s76
s_lshl_b32 s76, s29, 17
s_add_u32 s78, s75, s76
s_mul_i32 s53, s33, {rotw}
s_add_u32 s53, s53, s27
s_and_b32 s53, s53, {15 if rot else 0}
s_lshl_b32 s53, s53, 12
s_mov_b32 s54, 0xffff
s_mul_i32 s50, s28, {qrot}
s_add_u32 s50, s50, s26
s_and_b32 s50, s50, 7
s_xor_b32 s48, s28, {qx}
s_xor_b32 s49, s28, {ox}
s_nop 0""")
    if ffnmap == "old":
        k("""s_lshr_b32 s64, s28, 1
s_lshl_b32 s64, s64, 3
s_add_u32 s64, s64, s26
s_and_b32 s65, s28, 1
s_add_u32 s65, s65, 1
s_cmp_ge_u32 s64, 28
s_cselect_b32 s65, 0, s65
s_add_u32 s51, s28, 1""")
    else:
        k(f"""s_lshr_b32 s64, s26, 1
s_mul_i32 s64, s64, 7
s_xor_b32 s51, s28, {fx}
s_add_u32 s64, s64, s51
s_cmp_eq_u32 s51, 7
s_cselect_b32 s65, 0, 3
s_and_b32 s51, s26, 1
s_cmp_eq_u32 s51, {0 if ffnmap == "even" else 1}
s_cselect_b32 s65, s65, 0
s_mov_b32 s51, s28""")
    k("s_waitcnt lgkmcnt(0)")
    if "noffn" in abl: k("s_mov_b32 s65, 0")
    k("s_cmp_lt_u32 s31, 8\ns_cbranch_scc1 L_kwave")
    k("s_setprio 3")
    srd(36, 4, None, 8192)
    k(f"""s_lshl_b32 s75, s33, 10
buffer_load_dwordx4 v[96:99], v120, {SX}, s75 offen
s_cmp_eq_u32 s33, 0
s_cbranch_scc1 L_setq
s_cmp_lg_u32 s33, 4
s_cbranch_scc1 L_nq1
s_bitcmp0_b32 s65, 0
s_cbranch_scc1 L_nopf""")
    srd(44, 16, None, 512 * 3584)
    k(f"""s_movk_i32 s77, 3584
s_mov_b32 s79, {57*3584}
s_mul_i32 s75, s29, {128*3584}
s_lshl_b32 s76, s64, 7
s_add_u32 s75, s75, s76
s_branch L_tload
L_setq:""")
    srd(44, 10, None, 4 << 20)
    k(f"""s_mov_b32 s76, {WS_E}
s_load_dword s68, s[24:25], s76
s_movk_i32 s77, 0x2000
s_mov_b32 s79, {57*8192}
s_lshl_b32 s75, s29, 20
s_lshl_b32 s76, s50, 10
s_add_u32 s75, s75, s76
s_lshl_b32 s76, s48, 7
s_add_u32 s75, s75, s76
L_tload:
v_mul_lo_u32 v121, v112, s77
v_add_u32 v121, v121, v111""")
    for ub in range(2):
        for t in range(8):
            r = 32 * ub + 4 * t
            k(f"buffer_load_dwordx4 v[{r}:{r+3}], v121, {SWA}, s75 offen{wfl}")
            k("s_add_u32 s75, s75, s77" if t < 7 else "s_add_u32 s75, s75, s79")
    k(f"""s_barrier
s_cmp_lg_u32 s33, 0
s_cbranch_scc1 L_notag
s_waitcnt lgkmcnt(0)
s_add_u32 {TA}, {TA}, 1
s_mul_i32 {TB}, {TA}, 0x9e3779b1
s_xor_b32 {TB}, {TB}, 0x5bd1e995
v_mov_b32 v124, {TA}
v_mov_b32 v125, {TB}
ds_write_b64 {VZ}, v[124:125] offset:{L_TAG}
L_notag:
s_waitcnt vmcnt(16)
s_branch L_ln""")
    k("L_nq1:")
    k(f"""s_cmp_lt_u32 s33, 6
s_cbranch_scc1 L_nopf
s_getpc_b64 s[80:81]
L_pc:
s_sub_u32 s80, s80, L_pc-{NAME}_kernel
s_subb_u32 s81, s81, 0
s_mov_b32 s82, L_codeend-{NAME}_kernel
s_mov_b32 s83, 0x20000
s_lshl_b32 s75, s29, 1
s_add_u32 s75, s75, s33
s_sub_u32 s75, s75, 6
s_lshl_b32 s75, s75, 11
buffer_load_dwordx4 v[0:3], v120, s[80:83], s75 offen
buffer_load_dwordx4 v[0:3], v120, s[80:83], s75 offen offset:1024
s_barrier
s_waitcnt vmcnt(2)
s_branch L_ln
L_nopf:
s_barrier
s_waitcnt vmcnt(0)
s_branch L_ln""")

    k.flush()
    k("L_kwave:")
    srd(40, 6, "s74", 524288)
    k(f"""v_bfe_u32 v109, {VL}, 2, 2
v_and_b32 v110, 3, {VL}
v_lshlrev_b32 v121, 8, v109
v_lshl_add_u32 v121, v108, 6, v121
v_lshl_add_u32 v121, v110, 4, v121
s_movk_i32 s77, 0x1000""")
    for t in range(16):
        if t == kfirst: k("s_barrier")
        k(f"s_add_u32 s55, s78, s53\nbuffer_load_dwordx4 v[{4*t}:{4*t+3}], v121, {SKV}, s55 offen{kvflag}\ns_add_u32 s53, s53, s77\ns_and_b32 s53, s53, s54")
    stamp("kissued")
    srd(56, 24, None, WS_SIZE)
    srd(36, 4, None, 8192)
    srd(60, 20, None, 8192)
    k(f"""v_lshlrev_b32 v113, 8, v110
v_lshl_add_u32 v113, v108, 6, v113
v_lshl_add_u32 v113, v109, 4, v113
v_lshlrev_b32 v114, 7, v110
v_lshl_add_u32 v114, v108, 5, v114
v_lshl_add_u32 v114, v109, 3, v114
s_lshl_b32 s76, s33, 9
v_add_u32 v114, s76, v114
v_bfe_u32 v116, {VL}, 2, 3
v_lshlrev_b32 v116, 5, v116
v_lshl_add_u32 v116, v110, 2, v116
s_lshl_b32 s76, s33, 5
v_lshlrev_b32 v117, 2, {VL}
v_add_u32 v117, s76, v117
s_lshl_b32 s76, s33, 2
v_mov_b32 v123, s76
v_mov_b32 v122, 0""")
    lds_wait(L_CNT_XN, 8)
    gettags()
    k(f"""s_cmp_ge_u32 s33, 2
s_cbranch_scc1 L_nog
s_lshl_b32 s84, s26, 12
s_lshl_b32 s76, s27, 7
s_add_u32 s79, s84, s76
s_cmp_eq_u32 s33, 1
s_cbranch_scc1 L_gh
s_add_u32 s79, s79, {WS_HQ}
s_lshl_b32 s75, s28, 14
s_lshl_b32 s76, s26, 11
s_add_u32 s75, s75, s76
s_mov_b32 s66, 131072
s_mov_b32 s67, 0xff800000
s_movk_i32 s77, {L_Q}
v_mov_b32 v122, {L_F_Q}
s_branch L_g
L_gh:
s_bitcmp0_b32 s65, 1
s_cbranch_scc1 L_nog
s_add_u32 s79, s79, {WS_HH}
s_lshl_b32 s75, s64, 13
s_add_u32 s75, s75, {WS_HP}
s_movk_i32 s66, 0x800
s_mov_b32 s67, 0
s_movk_i32 s77, {L_HN}
v_mov_b32 v122, {L_F_HN}
L_g:
v_lshlrev_b32 v121, 7, v108
v_add3_u32 v121, v121, v111, s77
v_bfe_u32 v118, {VL}, 3, 1
v_lshl_add_u32 v121, v118, 3, v121
s_mov_b32 s72, {SPIN}""")
    k(f"""L_fpoll:
s_load_dwordx16 s[4:19], s[24:25], s79 glc
s_load_dwordx16 s[80:95], s[24:25], s79 offset:64 glc
s_waitcnt lgkmcnt(0)
s_min_u32 s73, s4, s5
s_max_u32 s76, s4, s5""")
    for i in list(range(6, 20)) + list(range(80, 96)):
        k(f"s_min_u32 s73, s73, s{i}\ns_max_u32 s76, s76, s{i}")
    k(f"""s_xor_b32 s70, s73, s76
s_xor_b32 s73, s73, {TB}
s_xor_b32 s76, s76, {TB}
s_or_b32 s73, s73, s76
s_cmp_lt_u32 s73, 16
s_cbranch_scc1 L_fok
s_sleep 2
s_sub_u32 s72, s72, 1
s_cmp_lg_u32 s72, 0
s_cbranch_scc1 L_fpoll
s_mov_b32 s70, 1
L_fok:
s_cmp_lg_u32 s33, 0
s_cbranch_scc1 L_nomode
s_cmp_eq_u32 s70, 0
s_cselect_b32 s70, 1, 2
v_mov_b32 v118, s70
ds_write_b32 {VZ}, v118 offset:{L_MODE}
L_nomode:""")
    stamp("hint")
    k(f"""s_mov_b32 s72, {SPIN}
L_qpoll:
s_mov_b32 s76, s75""")
    for ks in range(4):
        k(f"""buffer_load_dwordx4 v[{64+8*ks}:{64+8*ks+3}], v120, {SWS}, s76 offen sc1
buffer_load_dwordx4 v[{64+8*ks+4}:{64+8*ks+7}], v120, {SWS}, s76 offen offset:1024 sc1
s_add_u32 s76, s76, s66""")
    k("s_waitcnt vmcnt(0)")
    tagacc(range(64, 96), "v96", "v97", "v98")
    k(f"""v_cmp_ne_u32 vcc, 0, v96
s_cbranch_vccz L_qok
s_sub_u32 s72, s72, 1
s_cmp_lg_u32 s72, 0
s_cbranch_scc1 L_qpoll
L_qok:""")
    for i in range(8):
        k(f"v_add_f32 v{64+i}, v{64+i}, v{72+i}\nv_add_f32 v{80+i}, v{80+i}, v{88+i}")
    for i in range(8):
        k(f"v_add_f32 v{64+i}, v{64+i}, v{80+i}")
    for i in range(8):
        k(f"v_max_f32 v{64+i}, s67, v{64+i}")
    for i in range(4):
        k(f"v_cvt_pk_bf16_f32 v{96+i}, v{64+2*i}, v{65+2*i}")
    k(f"""ds_write_b64 v121, v[96:97]
ds_write_b64 v121, v[98:99] offset:512""")
    lds_inc(0, vaddr="v122")
    k("L_nog:")
    lds_wait(L_F_Q, 1)
    k(f"ds_read_b128 v[96:99], v113 offset:{L_Q}\nds_read_b32 v118, {VZ} offset:{L_MODE}\ns_waitcnt vmcnt(0) lgkmcnt(0)\nv_readfirstlane_b32 s67, v118")
    if qrot: k("s_mov_b32 s67, 1")
    stamp("qready")
    def Dreg(t): return 100 if t == 0 else 4 * (t - 1)
    def qk_step(t, i):
        D = Dreg(t); tb = t >> 2; R = 104 + (t & 3)
        qs = [q for q in range(4) if q != tb]
        q = qs[i]; n = (4 * (tb - q)) % 16
        src1 = f"v{D+tb}" if i == 0 else f"v{R}"
        k(f"v_add_f32_dpp v{R}, v{D+q}, {src1} row_ror:{n} row_mask:0xf bank_mask:{1 << tb:#x}")
    for t in range(16 + 5):
        if t < 16:
            mfma(Dreg(t), 4 * t, 96, None)
        for i in range(3):
            tt = t - 3 - i
            if 0 <= tt < 16: qk_step(tt, i)
    k(f"""s_mov_b32 s76, {SCALE:#x}
s_mov_b32 s77, {LOG2E:#x}
v_cvt_pk_bf16_f32 v0, v104, v105
v_cvt_pk_bf16_f32 v1, v106, v107
v_lshlrev_b32 v2, 16, v0
v_and_b32 v3, 0xffff0000, v0
v_lshlrev_b32 v4, 16, v1
v_and_b32 v5, 0xffff0000, v1
v_mul_f32 v2, s76, v2
v_mul_f32 v3, s76, v3
v_mul_f32 v4, s76, v4
v_mul_f32 v5, s76, v5
v_cvt_pk_bf16_f32 v0, v2, v3
v_cvt_pk_bf16_f32 v1, v4, v5
v_lshlrev_b32 v2, 16, v0
v_and_b32 v3, 0xffff0000, v0
v_lshlrev_b32 v4, 16, v1
v_and_b32 v5, 0xffff0000, v1
v_max3_f32 v6, v2, v3, v4
v_max_f32 v6, v6, v5""")
    row_reduce("v_max_f32", "v6", (4, 8))
    xrow_reduce("v_max_f32", "v6", "v7")
    k(f"""s_mov_b64 exec, 0xf
ds_write_b32 v117, v6 offset:{L_STAT}
s_mov_b64 exec, -1""")
    lds_inc(L_CNT_K)
    lds_wait(L_CNT_K, 8)
    k(f"ds_read_b32 v6, v116 offset:{L_STAT}\ns_waitcnt lgkmcnt(0)")
    row_reduce("v_max_f32", "v6", (4, 8))
    xrow_reduce("v_max_f32", "v6", "v7", (16,))
    for i in range(4): k(f"v_sub_f32 v{2+i}, v{2+i}, v6")
    for i in range(4): k(f"v_mul_f32 v{2+i}, s77, v{2+i}")
    for i in range(4): k(f"v_exp_f32 v{2+i}, v{2+i}")
    k(f"""v_cvt_pk_bf16_f32 v0, v2, v3
v_cvt_pk_bf16_f32 v1, v4, v5
ds_write_b64 v114, v[0:1] offset:{L_P}
v_add_f32 v8, v2, v3
v_add_f32 v9, v4, v5
v_add_f32 v8, v8, v9""")
    row_reduce("v_add_f32", "v8", (4, 8))
    xrow_reduce("v_add_f32", "v8", "v7")
    k(f"""v_mov_b32 v11, 1
s_mov_b64 exec, 0xf
ds_write_b32 v117, v8 offset:{L_STAT+16}
s_mov_b64 exec, -1
s_waitcnt lgkmcnt(0)
s_mov_b64 exec, 1
ds_write_b32 v123, v11 offset:{L_F_P}
ds_add_u32 {VZ}, v11 offset:{L_CNT_L}
s_mov_b64 exec, -1""")
    stamp("qkdone")
    k("s_cmp_lg_u32 s33, 6\ns_cbranch_scc1 L_nostat")
    lds_wait(L_CNT_L, 8)
    k(f"""ds_read_b32 v8, v116 offset:{L_STAT+16}
v_mov_b32 v7, {TA}
v_mov_b32 v9, {TB}
s_lshl_b32 s76, s32, 9
s_add_u32 s76, s76, {WS_ST}
s_lshl_b32 s75, s29, 4
s_add_u32 s76, s76, s75
v_lshlrev_b32 v10, 7, {VL}
s_waitcnt lgkmcnt(0)""")
    row_reduce("v_add_f32", "v8", (4, 8))
    xrow_reduce("v_add_f32", "v8", "v11", (16,))
    k(f"""s_mov_b64 exec, 0xf
buffer_store_dwordx4 v[6:9], v10, {SWS}, s76 offen sc1
s_mov_b64 exec, -1""")
    k("L_nostat:")
    k("s_cmp_lg_u32 s33, 7\ns_cbranch_scc1 L_nofin")
    k(f"""v_lshrrev_b32 v108, 3, {VL}
v_lshrrev_b32 v118, 1, v111
v_lshl_add_u32 v110, v108, 11, v118
v_lshl_add_u32 v112, v108, 14, v118
s_lshl_b32 s87, s28, 16
s_lshl_b32 s76, s30, 6
s_add_u32 s87, s87, s76
s_add_u32 s87, s87, {WS_OA}
s_lshl_b32 s84, s28, 11
s_add_u32 s84, s84, s76
s_add_u32 s84, s84, {WS_OB}
s_lshl_b32 s88, s28, 10
s_lshl_b32 s76, s26, 7
s_add_u32 s88, s88, s76
s_lshl_b32 s76, s29, 2
s_add_u32 s88, s88, s76
buffer_load_dword v20, v111, {SX}, s88 offen""")
    k("L_nofin:")
    k("v_and_b32 v123, 12, v123")
    lds_wait(L_F_D, 1, vaddr="v123")
    k(f"""s_lshl_b32 s82, s33, 3
s_add_u32 s82, s82, s26
s_lshl_b32 s89, s82, 13
s_lshl_b32 s82, s82, 9
s_lshl_b32 s83, s29, 7
s_add_u32 s82, s82, s83
s_add_u32 s82, s82, {WS_ST}
s_lshl_b32 s83, s29, 9
s_add_u32 s89, s89, s83
s_add_u32 s89, s89, {WS_OX}
s_add_u32 s90, s89, 4096
s_mov_b32 s72, {SPIN}
L_stpoll:
s_load_dwordx16 s[4:19], s[24:25], s82 glc
s_waitcnt lgkmcnt(0)
s_mov_b32 s73, 0""")
    for p in range(4):
        k(f"""s_xor_b32 s83, s{4+4*p+1}, {TA}
s_or_b32 s73, s73, s83
s_xor_b32 s83, s{4+4*p+3}, {TB}
s_or_b32 s73, s73, s83""")
    k(f"""s_cmp_eq_u32 s73, 0
s_cbranch_scc1 L_stok
s_sleep 12
s_sub_u32 s72, s72, 1
s_cmp_lg_u32 s72, 0
s_cbranch_scc1 L_stpoll
L_stok:
v_mov_b32 v56, s4
v_max_f32 v56, s8, v56
v_max_f32 v56, s12, v56
v_max_f32 v56, s16, v56""")
    for p in range(4): k(f"v_sub_f32 v{52+p}, s{4+4*p}, v56")
    for p in range(4): k(f"v_mul_f32 v{52+p}, s77, v{52+p}")
    for p in range(4): k(f"v_exp_f32 v{52+p}, v{52+p}")
    k(f"""v_mul_f32 v56, s6, v52
v_fmac_f32 v56, s10, v53
v_fmac_f32 v56, s14, v54
v_fmac_f32 v56, s18, v55
v_rcp_f32 v56, v56""")
    for p in range(4): k(f"v_mul_f32 v{52+p}, v{52+p}, v56")
    k(f"""s_lshl_b32 s76, s33, 8
v_lshlrev_b32 v62, 2, {VL}
v_add_u32 v62, s76, v62
v_lshlrev_b32 v61, 3, {VL}
s_lshl_b32 s78, s32, 2
s_add_u32 s78, s78, s29
s_lshl_b32 s78, s78, 11
s_add_u32 s78, s78, {WS_OX}""")
    ldx = lambda m, B: k(f"buffer_load_dwordx2 v[{B+2*m}:{B+1+2*m}], v61, {SWS}, s{89 + m//2} offen offset:{2048*(m%2)} sc1")
    if pre:
        lds_wait(L_CNT_VI, pre)
        for m in range(4): ldx(m, 32)
        if obpre:
            k(f"""s_cmp_lg_u32 s33, 7
s_cbranch_scc1 L_noob
v_and_b32 v70, {SM8}, {VT}
v_and_b32 v71, {SM8}, {VT}""")
            for m in range(4):
                if m == 3: k("s_mov_b32 exec_hi, 0")
                k(f"s_add_u32 s85, s84, {m*8*16384}\nbuffer_load_dwordx2 v[{64+2*m}:{65+2*m}], v112, {SWS}, s85 offen sc1")
            k("s_mov_b64 exec, -1\nL_noob:")
    k("s_cmp_eq_u32 s67, 1")
    stamp("kready")
    k("s_barrier")
    stamp("bar2")
    k(f"""ds_read_b32 v96, v62 offset:{L_OP}
ds_read_b32 v97, v62 offset:{L_OP+2048}
ds_read_b32 v98, v62 offset:{L_OP+4096}
ds_read_b32 v99, v62 offset:{L_OP+6144}
s_waitcnt lgkmcnt(2)
v_add_f32 v96, v96, v97
s_waitcnt lgkmcnt(0)
v_add_f32 v98, v98, v99
v_add_f32 v96, v96, v98""")
    settag(96)
    k(f"""s_cbranch_scc1 L_oxpl
buffer_store_dword v96, v62, {SWS}, s78 offen sc1
s_branch L_oxst
L_oxpl:
buffer_store_dword v96, v62, {SWS}, s78 offen
L_oxst:""")
    stamp("oxst")
    if stamps and "poll1" in stamps:
        k("s_waitcnt vmcnt(0)"); stamp("poll1")
    if not pre:
        for m in range(4): ldx(m, 32)
    def oxcomb(B):
        k(f"""v_mul_f32 v58, v{B}, v52
v_mul_f32 v59, v{B+1}, v52
v_mul_f32 v56, v{B+4}, v54
v_mul_f32 v57, v{B+5}, v54
v_fmac_f32 v58, v{B+2}, v53
v_fmac_f32 v59, v{B+3}, v53
v_fmac_f32 v56, v{B+6}, v55
v_fmac_f32 v57, v{B+7}, v55""")
    if poll4("L_ox", ldx, dbl=dblx, w1=bool(pre)):
        oxcomb(40)
        k("s_branch L_oxj\nL_oxok:")
    stamp("oxok")
    oxcomb(32)
    k(f"""L_oxj:
v_add_f32 v58, v58, v56
v_add_f32 v59, v59, v57
v_cvt_pk_bf16_f32 v58, v58, v59
ds_write_b32 v62, v58 offset:{L_O16}
s_waitcnt lgkmcnt(0)
s_barrier""")
    stamp("bar3")
    k("s_cmp_eq_u32 s33, 7\ns_cbranch_scc1 L_final")
    stamp("kend")
    stamp_flush()
    k("s_endpgm")
    k.flush()
    k("L_final:")
    def gather(vaddr, sbase, step, lab, d0, d1, partial, dbl):
        k("s_waitcnt vmcnt(0)")
        if partial:
            k(f"v_and_b32 v38, {SM8}, {VT}\nv_and_b32 v39, {SM8}, {VT}")
        for m in range(4): k(f"s_add_u32 s{80+m}, {sbase}, {m*step}")
        ld = lambda m, B: k(f"buffer_load_dwordx2 v[{B+2*m}:{B+1+2*m}], {vaddr}, {SWS}, s{80+m} offen sc1")
        if partial and obpre:
            for i in range(8): k(f"v_mov_b32 v{32+i}, v{64+i}")
        else:
            if not partial and oadelay: k(f"s_sleep {oadelay}")
            for m in range(4):
                if partial and m == 3: k("s_mov_b32 exec_hi, 0")
                ld(m, 32)
            if partial: k("s_mov_b64 exec, -1")
        def comb(B):
            k(f"""v_add_f32 v56, v{B}, v{B+2}
v_add_f32 v57, v{B+1}, v{B+3}
v_add_f32 v58, v{B+4}, v{B+6}
v_add_f32 v59, v{B+5}, v{B+7}""")
        if poll4(lab, ld, slp=oasleep, dbl=dbl, partial=partial):
            comb(40)
            k(f"s_branch {lab}j\n{lab}ok:")
        comb(32)
        k(f"""{lab}j:
v_add_f32 {d0}, v56, v58
v_add_f32 {d1}, v57, v59
v_add_f32_dpp {d0}, {d0}, {d0} row_ror:8 row_mask:0xf bank_mask:0xf
v_add_f32_dpp {d1}, {d1}, {d1} row_ror:8 row_mask:0xf bank_mask:0xf""")
        for w in (16, 32):
            k(f"""v_mov_b32 v48, {d0}
v_mov_b32 v49, {d1}
v_permlane{w}_swap_b32 {d0}, v48
v_permlane{w}_swap_b32 {d1}, v49
v_add_f32 {d0}, {d0}, v48
v_add_f32 {d1}, {d1}, v49""")
        k(f"""v_cvt_pk_bf16_f32 v48, {d0}, {d1}
v_lshlrev_b32 {d0}, 16, v48
v_and_b32 {d1}, 0xffff0000, v48""")
    if "noffn" not in abl: gather("v112", "s84", 8 * 16384, "L_ob", "v22", "v23", True, 0)
    k("v_and_b32 v21, 0xffff0000, v20\nv_lshlrev_b32 v20, 16, v20")
    gather("v110", "s87", 16384, "L_oa", "v24", "v25", False, dbla)
    k(f"""v_add_f32 v20, v20, v24
v_add_f32 v21, v21, v25
v_cvt_pk_bf16_f32 v16, v20, v21
v_lshlrev_b32 v20, 16, v16
v_and_b32 v21, 0xffff0000, v16
v_add_f32 v20, v20, v22
v_add_f32 v21, v21, v23
v_cvt_pk_bf16_f32 v20, v20, v21
s_mov_b64 exec, 0xff
buffer_store_dword v20, v111, {SOUT}, s88 offen
s_mov_b64 exec, -1""")
    stamp("kend")
    stamp_flush()
    k(f"""s_cmp_lg_u32 s2, 0
s_cbranch_scc1 L_end
s_mov_b32 s76, {WS_E}
s_mov_b64 exec, 1
buffer_store_dword {VT}, {VZ}, {SWS}, s76 offen""")
    if probe:
        k(f"""s_memrealtime s[98:99]
s_waitcnt lgkmcnt(0)
s_sub_u32 s76, s98, s96
s_mul_i32 s76, s76, {probe}
L_probe:
s_memrealtime s[100:101]
s_waitcnt lgkmcnt(0)
s_sub_u32 s77, s100, s98
s_cmp_lt_u32 s77, s76
s_cbranch_scc1 L_probe""")
    k("s_endpgm")

    k.flush()
    k("L_ln:")
    for i in range(4):
        k(f"v_lshlrev_b32 v{100+2*i}, 16, v{96+i}\nv_and_b32 v{101+2*i}, 0xffff0000, v{96+i}")
    k("""v_add_f32 v96, v100, v101
v_add_f32 v97, v102, v103
v_add_f32 v98, v104, v105
v_add_f32 v99, v106, v107
v_add_f32 v96, v96, v97
v_add_f32 v98, v98, v99
v_add_f32 v96, v96, v98""")
    row_reduce("v_add_f32", "v96")
    xrow_reduce("v_add_f32", "v96", "v97")
    k("v_mul_f32 v96, 0x3b000000, v96")
    k("v_sub_f32 v98, v100, v96\nv_mul_f32 v97, v98, v98")
    for i in range(1, 8):
        k(f"v_sub_f32 v98, v{100+i}, v96\nv_fmac_f32 v97, v98, v98")
    row_reduce("v_add_f32", "v97")
    xrow_reduce("v_add_f32", "v97", "v98")
    k("v_mul_f32 v97, 0x3b000000, v97")
    rnd("v96", "v96"); rnd("v97", "v97")
    k("v_add_f32 v97, 0x3727c5ac, v97")
    rnd("v97", "v97")
    k("v_sqrt_f32 v97, v97")
    rnd("v97", "v97")
    k("v_rcp_f32 v98, v97")
    for i in range(0, 8, 2):
        a, b2 = 100 + i, 101 + i
        k(f"""v_sub_f32 v{a}, v{a}, v96
v_sub_f32 v{b2}, v{b2}, v96
v_cvt_pk_bf16_f32 v99, v{a}, v{b2}
v_lshlrev_b32 v{a}, 16, v99
v_and_b32 v{b2}, 0xffff0000, v99""")
    for i in range(8):
        a = 100 + i
        k(f"""v_mul_f32 v99, v{a}, v98
v_fma_f32 v{a}, -v99, v97, v{a}
v_fma_f32 v{a}, v{a}, v98, v99""")
    for i in range(4):
        k(f"v_cvt_pk_bf16_f32 v{96+i}, v{100+2*i}, v{101+2*i}")
    k(f"""s_lshl_b32 s75, s33, 10
v_add_u32 v122, s75, v120
ds_write_b128 v122, v[96:99] offset:{L_XN}""")
    lds_inc(L_CNT_XN)
    stamp("ln")
    srd(56, 24, None, WS_SIZE)
    srd(40, 8, "s74", 524288)
    k("v_mov_b32 v119, 0")
    k(f"""s_mov_b32 s66, 0
s_cmp_eq_u32 s33, 0
s_cbranch_scc1 L_tq
s_cmp_lt_u32 s33, 3
s_cbranch_scc1 L_f2l
s_cmp_lg_u32 s33, 4
s_cbranch_scc1 L_vload
s_bitcmp0_b32 s65, 0
s_cbranch_scc1 L_vload""")
    k(f"""v_lshrrev_b32 v121, 3, {VL}
v_lshlrev_b32 v123, 7, v121
v_lshlrev_b32 v121, 8, v121
v_lshrrev_b32 v122, 2, v111
v_add_u32 v123, v123, v122
s_lshl_b32 s75, s64, 2
s_add_u32 s75, s75, s29
s_lshl_b32 s75, s75, 11
s_add_u32 s75, s75, {WS_HP}
s_lshl_b32 s76, s26, 12
s_lshl_b32 s77, s51, 9
s_add_u32 s76, s76, s77
s_lshl_b32 s77, s29, 5
s_add_u32 s76, s76, s77
s_add_u32 s76, s76, {WS_HH}
s_branch L_tile
L_tq:
v_lshrrev_b32 v121, 3, {VL}
v_lshlrev_b32 v121, 14, v121
v_lshlrev_b32 v123, 7, {VL}
s_lshl_b32 s75, s29, 17
s_lshl_b32 s76, s50, 11
s_add_u32 s75, s75, s76
s_lshl_b32 s77, s48, 8
s_add_u32 s75, s75, s77
s_lshl_b32 s76, s50, 12
s_lshl_b32 s77, s27, 2
s_add_u32 s76, s76, s77
s_add_u32 s76, s76, {WS_HQ}
L_tile:
v_add_u32 v121, v111, v121""")
    arow_addr("v122", "v118", 10)
    k(f"""s_lshl_b32 s77, s29, 8
v_add_u32 v122, s77, v122""")
    lds_wait(L_CNT_XN, 8)
    k(f"""ds_read_b128 v[96:99], v122 offset:{L_XN}
ds_read_b128 v[100:103], v122 offset:{L_XN+128}""")
    gettags()
    k(f"""s_getreg_b32 s77, hwreg(HW_REG_XCC_ID)
s_and_b32 s77, s77, 15
s_andn2_b32 s79, {TB}, 15
s_or_b32 s77, s77, s79
v_mov_b32 v122, s77""")
    for ub in range(2):
        k(f"s_waitcnt vmcnt({8 - 8*ub})")
        for w in range(4):
            T = 104 + 8 * (w & 1)
            perms(T, 32 * ub, w)
            mfma(64 + 8 * w, 96 + 4 * ub, T, None if ub == 0 else 64 + 8 * w)
            mfma(68 + 8 * w, 96 + 4 * ub, T + 4, None if ub == 0 else 68 + 8 * w)
    for w in range(4):
        pairsum(96 + 2 * w, 97 + 2 * w, 64 + 8 * w, 68 + 8 * w, SM)
    k(f"""v_mov_b32 v119, v121
s_mov_b32 s94, s75
s_mov_b32 s66, {3 if opt else 0}
buffer_store_dwordx4 v[96:99], v121, {SWS}, s75 offen{"" if opt else " sc1"}
buffer_store_dwordx4 v[100:103], v121, {SWS}, s75 offen offset:128{"" if opt else " sc1"}
s_mov_b32 exec_hi, 0
buffer_store_dword v122, v123, {SWS}, s76 offen{hst}
s_mov_b64 exec, -1""")
    stamp("tpub")
    k("s_branch L_vload")
    k.flush()
    k("L_f2l:")
    k("s_bitcmp0_b32 s65, 1\ns_cbranch_scc1 L_vload")
    srd(44, 18, None, 1792 * 1024)
    k(f"""s_setprio 0
s_mov_b32 s66, 1
v_lshl_add_u32 v121, v112, 10, v111
s_lshl_b32 s75, s64, 16
s_lshl_b32 s76, s29, 8
s_add_u32 s75, s75, s76
s_sub_u32 s76, s33, 1
s_lshl_b32 s76, s76, 7
s_add_u32 s75, s75, s76
s_add_u32 s76, s75, 4096""")
    for t in range(8):
        k(f"buffer_load_dwordx4 v[{64+4*t}:{64+4*t+3}], v121, {SWA}, s{75 + t//4} offen offset:{(t%4)*1024}{wfl}")
    k("s_branch L_vload")
    k.flush()
    k("L_vload:")
    k(f"""s_setprio 0
s_movk_i32 s77, 0x1000""")
    for t in range(16):
        k(f"s_add_u32 s55, s78, s53\nbuffer_load_dwordx4 v[{4*t}:{4*t+3}], v120, {SKV}, s55 offen{kvflag}\ns_add_u32 s53, s53, s77\ns_and_b32 s53, s53, s54")
    k("s_cmp_lt_u32 s33, 4\ns_cbranch_scc1 L_novi")
    lds_inc(L_CNT_VI)
    k("L_novi:")
    stamp("vissued")
    k("""s_cmp_eq_u32 s66, 0
s_cbranch_scc1 L_noj
s_cmp_lg_u32 s66, 3
s_cbranch_scc1 L_f2w""")
    lds_wait(L_MODE, 1)
    k(f"""s_cmp_eq_u32 s73, 1
s_cbranch_scc1 L_noj
buffer_store_dwordx4 v[96:99], v119, {SWS}, s94 offen sc1
buffer_store_dwordx4 v[100:103], v119, {SWS}, s94 offen offset:128 sc1
s_branch L_noj
L_f2w:
s_waitcnt vmcnt(16)""")
    k("L_f2:")
    arow_addr("v122", "v118", 7)
    k(f"""v_lshrrev_b32 v121, 3, {VL}
v_lshlrev_b32 v121, 11, v121
v_and_b32 v123, 7, {VL}
v_lshl_add_u32 v121, v123, 3, v121
s_lshl_b32 s75, s64, 14
s_lshl_b32 s76, s29, 9
s_add_u32 s75, s75, s76
s_sub_u32 s76, s33, 1
s_lshl_b32 s76, s76, 8
s_add_u32 s75, s75, s76
s_add_u32 s75, s75, {WS_OB}""")
    lds_wait(L_F_HN, 1)
    k(f"ds_read_b128 v[112:115], v122 offset:{L_HN}")
    gettags()
    k("s_setprio 3")
    for w in range(4):
        G = 116 + 2 * (w & 1)
        perms(96, 64, w)
        mfma(104, 112, 96, None)
        mfma(108, 112, 100, None)
        pairsum(G, G + 1, 104, 108)
        k(f"buffer_store_dwordx2 v[{G}:{G+1}], v121, {SWS}, s75 offen offset:{64*w} sc1")
    k("s_setprio 0")
    stamp("tpub")
    k("L_noj:")
    k(f"""v_lshrrev_b32 v108, 4, {VL}
v_and_b32 v110, 3, {VL}
v_bfe_u32 v109, {VL}, 2, 2
v_lshlrev_b32 v122, 7, v110
v_lshl_add_u32 v122, v108, 5, v122
s_lshl_b32 s75, s33, 9
s_add_u32 s75, s75, {L_P}
v_add_u32 v122, s75, v122
v_mov_b32 v123, {L_ZERO}""")
    for dl in range(4):
        k(f"v_cmp_eq_u32 vcc, {dl}, v109\nv_cndmask_b32 v{112+dl}, v123, v122, vcc")
    k(f"""s_lshl_b32 s75, s33, 2
v_mov_b32 v123, s75
s_and_b32 s75, s33, 3
s_lshl_b32 s76, s75, 2
v_mov_b32 v121, s76
s_lshl_b32 s75, s75, 11
v_add_u32 v120, s75, v120
v_lshlrev_b32 v122, 2, {VL}
v_add_u32 v122, s75, v122""")
    lds_wait(L_F_P, 1, vaddr="v123")
    for ub in range(2):
        for dl in range(4):
            r = 64 + 16 * ub + 4 * dl
            k(f"ds_read_b128 v[{r}:{r+3}], v{112+dl} offset:{16*ub}")
    k("s_cmp_ge_u32 s33, 4\ns_cbranch_scc1 L_g3")
    for i in range(8): k(f"v_mov_b32 v{96+i}, 0")
    k("s_branch L_pv\nL_g3:")
    lds_wait(L_F_D, 1, vaddr="v121")
    k(f"""ds_read_b128 v[96:99], v120 offset:{L_DX}
ds_read_b128 v[100:103], v120 offset:{L_DX+1024}""")
    srd(44, 12, None, 4 << 20)
    k(f"""v_bfe_u32 v116, {VL}, 3, 1
v_lshlrev_b32 v116, 6, v116
v_lshrrev_b32 v117, 4, {VL}
v_add_u32 v116, v116, v117
v_and_b32 v117, 7, {VL}
v_lshlrev_b32 v117, 4, v117
v_lshl_add_u32 v116, v116, 10, v117
s_lshl_b32 s75, s30, 17
s_lshl_b32 s76, s49, 7
s_add_u32 s75, s75, s76
s_bfe_u32 s76, s33, 0x10001
s_lshl_b32 s76, s76, 12
s_add_u32 s75, s75, s76
s_and_b32 s76, s33, 1
s_lshl_b32 s76, s76, 15
s_add_u32 s75, s75, s76
s_and_b32 s77, s33, 3
s_lshl_b32 s77, s77, 12
s_add_u32 m0, s77, {L_WT}""")
    lds_wait(L_CNT_VI, 4)
    for t in range(4):
        k(f"buffer_load_dwordx4 v116, {SWA}, s75 offen{wfl} lds\ns_add_u32 m0, m0, 0x400\ns_add_u32 s75, s75, 0x2000")
    lds_inc(L_CNT_VI)
    k(f"""L_pv:
s_waitcnt lgkmcnt(0)
s_cmp_ge_u32 s33, 4""")
    stamp("fdok")
    def vwait(n):
        lab = k.label("Lv")
        k(f"s_cbranch_scc1 {lab}\ns_waitcnt vmcnt({n})\n{lab}:\ns_waitcnt vmcnt({n+4})")
    vwait(8)
    for w in range(4):
        T = 104 + 8 * (w & 1)
        perms(T, 0, w)
        for hh in range(2):
            di = 2 * w + hh; x = di >> 2; dl = di & 3
            mfma(96 + 4 * x, 64 + 4 * dl, T + 4 * hh, 96 + 4 * x)
    for p in range(4):
        vwait(6 - 2 * p)
        if p == 3: stamp("varr")
        for w in range(4):
            k(f"v_perm_b32 v{8*w+p}, v{32+4*(2*p+1)+w}, v{32+4*(2*p)+w}, s34")
            k(f"v_perm_b32 v{8*w+4+p}, v{32+4*(2*p+1)+w}, v{32+4*(2*p)+w}, s35")
            if p == 3 and w >= 1:
                di = 2 * (w - 1)
                for d in (di, di + 1):
                    mfma(96 + 4 * (d >> 2), 80 + 4 * (d & 3), 4 * d, 96 + 4 * (d >> 2))
    for d in (6, 7):
        mfma(96 + 4 * (d >> 2), 80 + 4 * (d & 3), 4 * d, 96 + 4 * (d >> 2))
    k("s_cmp_ge_u32 s33, 4\ns_cbranch_scc1 L_g3b")
    k(f"""ds_write_b128 v120, v[96:99] offset:{L_DX}
ds_write_b128 v120, v[100:103] offset:{L_DX+1024}""")
    lds_inc(L_F_D, vaddr="v121")
    stamp("pvdone")
    stamp_flush()
    k("s_endpgm")
    k.flush()
    k("L_g3b:")
    for x in range(2):
        for h in range(4):
            k(f"ds_write_b32 v122, v{96+4*x+h} offset:{L_OP + h*512 + x*256}")
    k("s_waitcnt lgkmcnt(0)")
    stamp("pvdone")
    k("s_barrier")
    gettags()
    arow_addr("v123", "v118", 8)
    k(f"""s_and_b32 s77, s33, 3
s_lshl_b32 s76, s77, 2
v_lshlrev_b32 v121, 4, {VL}
v_add_u32 v121, s76, v121
v_lshrrev_b32 v122, 3, {VL}
v_lshlrev_b32 v122, 16, v122
v_and_b32 v118, 7, {VL}
v_lshl_add_u32 v122, v118, 3, v122
s_lshl_b32 s86, s30, 11
s_lshl_b32 s76, s49, 8
s_add_u32 s86, s86, s76
s_lshl_b32 s76, s77, 6
s_add_u32 s86, s86, s76
s_add_u32 s86, s86, {WS_OA}
s_waitcnt vmcnt(0)""")
    lds_inc(L_CNT_WO)
    lds_wait(L_CNT_WO, 4, slp=0)
    for n in range(16):
        k(f"ds_read_b32 v{n}, v121 offset:{L_WT + 1024*n}")
    for ub in range(2):
        k(f"s_waitcnt lgkmcnt({8 - 8*ub})")
        for p in range(4):
            k(f"v_perm_b32 v{16+8*ub+p}, v{8*ub+2*p+1}, v{8*ub+2*p}, s34")
            k(f"v_perm_b32 v{16+8*ub+4+p}, v{8*ub+2*p+1}, v{8*ub+2*p}, s35")
    stamp("woready")
    k(f"""s_barrier
ds_read_b128 v[96:99], v123 offset:{L_O16}
ds_read_b128 v[100:103], v123 offset:{L_O16+128}
s_waitcnt lgkmcnt(1)""")
    mfma(104, 96, 16, None); mfma(108, 96, 20, None)
    k("s_waitcnt lgkmcnt(0)")
    mfma(104, 100, 24, 104); mfma(108, 100, 28, 108)
    pairsum(112, 113, 104, 108)
    k(f"buffer_store_dwordx2 v[112:113], v122, {SWS}, s86 offen sc1")
    stamp("gend")
    stamp_flush()
    k("L_end:")
    k("s_endpgm")
    k("L_codeend:")

    T = []
    T.append('.section .rodata,"a"'); T.append(".p2align 6")
    T.append(f".amdhsa_kernel {NAME}_kernel")
    T.append("  .amdhsa_next_free_vgpr 128"); T.append("  .amdhsa_next_free_sgpr 102"); T.append("  .amdhsa_accum_offset 128")
    T.append("  .amdhsa_group_segment_fixed_size 0"); T.append("  .amdhsa_kernarg_size 88"); T.append("  .amdhsa_user_sgpr_count 2")
    T.append("  .amdhsa_user_sgpr_kernarg_segment_ptr 1"); T.append("  .amdhsa_system_sgpr_workgroup_id_x 1")
    T.append("  .amdhsa_float_denorm_mode_32 3")
    T.append(".end_amdhsa_kernel")
    open(fname, "w").write("\n".join(H) + "\n" + k.text() + "\n".join(T) + "\n")

SA = {"start": 0, "hint": 1, "qready": 2, "ln": 1, "tpub": 1, "vissued": 2}
SB = {"start": 0, "qkdone": 1, "kready": 2, "varr": 1, "pvdone": 2}
SC = {"start": 0, "bar2": 1, "kend": 2, "varr": 1, "pvdone": 2}
SE = {"start": 0, "bar3": 1, "kend": 2, "varr": 1, "pvdone": 2}
SD = {"start": 0, "kissued": 1, "qready": 2, "vissued": 1, "varr": 2}
SI = {"start": 0, "bar2": 1, "kend": 2, "woready": 1, "gend": 2}
if __name__ == "__main__":
    gen("k23.s")
    gen("k23_sc.s", stamps=SI)
    gen("k23_p4_sc.s", stamps=SI, pre=4)
    gen("k23_even_sc.s", stamps=SI, ffnmap="even", qx=4, ox=5)
    gen("k23_probe.s", probe=10)
```

```python
import sys, argparse
from asmlib import Asm
NAME = "parallel_sum__sliding_block_cached__dense_activation_relu__decode"

WS_QP = 0x000000
WS_OX = 0x080000
WS_OA = 0x100000
WS_OB = 0x180000
WS_HP = 0x1F0000
WS_ST = 0x228000
WS_HQ = 0x230000
WS_HH = 0x238000
WS_E  = 0x240000
WS_SIZE = 0x241000
STAMP_OFF = 256 << 20
L_CNT_XN = 0; L_MODE = 4; L_F_Q = 8; L_F_HN = 12; L_CNT_K = 16; L_CNT_L = 20; L_TAG = 24; L_F_P = 32
L_ZERO = 64; L_F_D = 96; L_CNT_VI = 112; L_CNT_WO = 116; L_ZEND = 128
L_STAT = 128; L_Q = 1024; L_HN = 2048; L_P = 3072; L_XN = 7168; L_OP = 15360; L_DX = L_OP + 8192; L_O16 = L_DX + 8192; L_WT = L_O16 + 2048; L_END = L_WT + 16384

DOC = """; ---------------------------------------------------------------------------------------------
; word that the previous launch left in d_ws (used only to tell this launch's hand-offs from older ones).
; ---------------------------------------------------------------------------------------------"""
LOG2E = 0x3fb8aa3b
SCALE = 0x3db504f3
SPIN = 1 << 16

def gen(fname, stamps=None, kvflag=" nt", psleep=0, abl=(), kfirst=0, lst=" sc1", tagmask=0xf, rxor=0, qx=4, ox=5, qrot=0, ffnmap="even", fx=0, probe=0, oasleep=0, dblx=0, dbla=4, pre=8, obpre=0, oadelay=0, wfl=None, hst=" sc1", strict=1, rot=1, rotw=2, opt=1):
    k = Asm()
    if wfl is None: wfl = kvflag
    H = []
    H.append(open("cdna_kernels/%s.s.ref" % NAME).read().split("; Override launch")[0].rstrip("\n"))
    H.append(f"; @launch grid=(256,1,1) block=(1024,1,1) lds={L_END}")
    H.append(DOC)
    H.append('.amdgcn_target "amdgcn-amd-amdhsa--gfx950"')
    H.append(".text"); H.append(f".globl {NAME}_kernel"); H.append(".p2align 8"); H.append(f".type {NAME}_kernel,@function")
    H.append(f"{NAME}_kernel:")

    VL = "v126"; VZ = "v127"; VT = "v124"
    TA, TB = "s68", "s69"
    SM = "s3"
    def srd(d, lo, off, size):
        if off is None:
            k(f"s_mov_b32 s{d}, s{lo}\ns_mov_b32 s{d+1}, s{lo+1}")
        else:
            k(f"s_add_u32 s{d}, s{lo}, {off}\ns_addc_u32 s{d+1}, s{lo+1}, 0")
        k(f"s_mov_b32 s{d+2}, {size}\ns_mov_b32 s{d+3}, 0x20000")
    SX, SKV, SWA, SWS, SOUT = [f"s[{a}:{a+3}]" for a in (36, 40, 44, 56, 60)]

    def stamp(name):
        if not stamps or name not in stamps: return
        sl = stamps[name]
        k(f"s_memrealtime s[{96+2*sl}:{97+2*sl}]")
    def stamp_flush():
        if not stamps: return
        k(f"""s_waitcnt lgkmcnt(0)
s_mov_b64 exec, 1
s_lshl_b32 s76, s2, 9
s_lshl_b32 s77, s31, 5
s_add_u32 s76, s76, s77
s_add_u32 s76, s76, {STAMP_OFF}
s_add_u32 s76, s24, s76
s_addc_u32 s77, s25, 0
v_mov_b32 v0, s96
v_mov_b32 v1, s97
v_mov_b32 v2, s98
v_mov_b32 v3, s99
v_mov_b32 v4, s100
v_mov_b32 v5, s101
global_store_dwordx4 {VZ}, v[0:3], s[76:77]
global_store_dwordx2 {VZ}, v[4:5], s[76:77] offset:16""")

    def lds_wait(addr, val, vaddr=VZ, vt="v125", slp=1):
        lp = k.label("Lw"); dn = k.label("Ld")
        k(f"s_mov_b32 s72, {SPIN}")
        k(f"{lp}:")
        k(f"""ds_read_b32 {vt}, {vaddr} offset:{addr}
s_waitcnt lgkmcnt(0)
v_readfirstlane_b32 s73, {vt}
s_cmp_ge_u32 s73, {val}
s_cbranch_scc1 {dn}
{"s_sleep 1" if slp else "s_nop 0"}
s_sub_u32 s72, s72, 1
s_cmp_lg_u32 s72, 0
s_cbranch_scc1 {lp}""")
        k(f"{dn}:")
    def lds_inc(addr, vaddr=VZ, vt="v125"):
        k(f"""s_waitcnt lgkmcnt(0)
v_mov_b32 {vt}, 1
s_mov_b64 exec, 1
ds_add_u32 {vaddr}, {vt} offset:{addr}
s_mov_b64 exec, -1""")
    def rnd(dst, src):
        k(f"v_cvt_pk_bf16_f32 {dst}, {src}, {src}\nv_lshlrev_b32 {dst}, 16, {dst}")
    def row_reduce(op, v, steps=(8, 4, 2, 1)):
        for n in steps:
            k(f"{op}_dpp {v}, {v}, {v} row_ror:{n} row_mask:0xf bank_mask:0xf")
    def xrow_reduce(op, v, t, which=(16, 32)):
        for w in which:
            k(f"v_mov_b32 {t}, {v}\nv_permlane{w}_swap_b32 {v}, {t}\n{op} {v}, {v}, {t}")
    def perms(T, W, w):
        for p in range(4):
            k(f"v_perm_b32 v{T+p}, v{W+4*(2*p+1)+w}, v{W+4*(2*p)+w}, s34")
        for p in range(4):
            k(f"v_perm_b32 v{T+4+p}, v{W+4*(2*p+1)+w}, v{W+4*(2*p)+w}, s35")
    def mfma(D, A, B, C):
        c = "0" if C is None else f"v[{C}:{C+3}]"
        k(f"v_mfma_f32_16x16x32_bf16 v[{D}:{D+3}], v[{A}:{A+3}], v[{B}:{B+3}], {c}")
    def gettags():
        k(f"""ds_read_b64 v[124:125], {VZ} offset:{L_TAG}
s_waitcnt lgkmcnt(0)
v_readfirstlane_b32 {TA}, v124
v_readfirstlane_b32 {TB}, v125""")
    SM8 = "s52"
    def settag(r, m=None):
        k(f"v_bfi_b32 v{r}, {m or SM8}, {VT}, v{r}")
    def tagacc(regs, acc, t1, t2):
        regs = list(regs)
        k(f"v_xor_b32 {acc}, {TA}, v{regs[0]}\nv_xor_b32 {t1}, {TA}, v{regs[1]}\nv_or_b32 {acc}, {acc}, {t1}")
        for i in range(2, len(regs), 2):
            k(f"v_xor_b32 {t1}, {TA}, v{regs[i]}\nv_xor_b32 {t2}, {TA}, v{regs[i+1]}\nv_or3_b32 {acc}, {acc}, {t1}, {t2}")
        k(f"v_and_b32 {acc}, {SM}, {acc}")
    def pairsum(G0, G1, D0, D1, m=None):
        k(f"""v_add_f32_dpp v{G0}, v{D0+1}, v{D0} row_shl:8 row_mask:0xf bank_mask:0x3
v_add_f32_dpp v{G1}, v{D1+1}, v{D1} row_shl:8 row_mask:0xf bank_mask:0x3
v_add_f32_dpp v{G0}, v{D0+2}, v{D0+3} row_shr:8 row_mask:0xf bank_mask:0xc
v_add_f32_dpp v{G1}, v{D1+2}, v{D1+3} row_shr:8 row_mask:0xf bank_mask:0xc""")
        settag(G0, m); settag(G1, m)
    def arow_addr(vd, vt, rowshift):
        k(f"""v_bfe_u32 {vd}, {VL}, 1, 3
v_lshlrev_b32 {vd}, {rowshift}, {vd}
v_and_b32 {vt}, 1, {VL}
v_lshl_add_u32 {vd}, {vt}, 4, {vd}
v_lshrrev_b32 {vt}, 4, {VL}
v_lshl_add_u32 {vd}, {vt}, 5, {vd}""")
    def poll4(lab, ld, slp=None, dbl=0, partial=False, w1=False):
        slp = psleep if slp is None else slp
        def check(B, ok):
            for p in range(4):
                k(f"v_bitop3_b32 v{48+p}, v{B+2*p}, v{B+1+2*p}, {VT} bitop3:0x7e")
            for p in range(4):
                k(f"v_cmp_ne_u32_sdwa s[{4+2*p}:{5+2*p}], v{48+p}, {VZ} src0_sel:BYTE_0 src1_sel:DWORD")
            k(f"""s_or_b64 s[12:13], s[4:5], s[6:7]
s_or_b64 s[14:15], s[8:9], s[10:11]
s_or_b64 s[12:13], s[12:13], s[14:15]
s_cbranch_scc0 {ok}""")
        def reissue(B):
            for m in range(4):
                k(f"s_cmp_lg_u64 s[{4+2*m}:{5+2*m}], 0\ns_cselect_b64 exec, -1, 0")
                if partial and m == 3: k("s_mov_b32 exec_hi, 0")
                ld(m, B)
            k("s_mov_b64 exec, -1")
        k(f"s_mov_b32 s72, {SPIN}")
        if not dbl:
            if w1:
                k(f"s_waitcnt vmcnt(1)\ns_branch {lab}c")
            k(f"{lab}poll:\ns_waitcnt vmcnt(0)\n{lab}c:")
            check(32, f"{lab}ok")
            if slp: k(f"s_sleep {slp}")
            reissue(32)
            k(f"""s_sub_u32 s72, s72, 1
s_cmp_lg_u32 s72, 0
s_cbranch_scc1 {lab}poll
{lab}ok:""")
        else:
            k("s_waitcnt vmcnt(0)")
            check(32, f"{lab}ok")
            for i in range(8): k(f"v_mov_b32 v{40+i}, v{32+i}")
            reissue(32)
            k(f"s_sleep {dbl}")
            reissue(40)
            k(f"{lab}poll:\ns_waitcnt vmcnt(4)")
            check(32, f"{lab}ok")
            reissue(32)
            k("s_waitcnt vmcnt(4)")
            check(40, f"{lab}okb")
            reissue(40)
            k(f"""s_sub_u32 s72, s72, 1
s_cmp_lg_u32 s72, 0
s_cbranch_scc1 {lab}poll
{lab}okb:
s_waitcnt vmcnt(0)""" if False else f"""s_sub_u32 s72, s72, 1
s_cmp_lg_u32 s72, 0
s_cbranch_scc1 {lab}poll
{lab}okb:""")
            return True
        return False

    stamp("start")
    if probe: k("s_memrealtime s[96:97]")
    k(f"""s_cmp_ge_u32 s2, 256
s_cbranch_scc1 L_end
s_load_dwordx16 s[4:19], s[0:1], 0
s_load_dwordx4 s[20:23], s[0:1], 64
s_load_dwordx2 s[24:25], s[0:1], 80
s_and_b32 s26, s2, 7
s_lshr_b32 s27, s2, 3
s_xor_b32 s27, s27, {rxor}
s_lshr_b32 s28, s27, 2
s_and_b32 s29, s27, 3
s_lshl_b32 s30, s26, 2
s_add_u32 s30, s30, s29
s_lshl_b32 s32, s28, 3
s_add_u32 s32, s32, s26
s_mov_b32 s34, 0x05040100
s_mov_b32 s35, 0x07060302
s_movk_i32 {SM}, {tagmask}
s_movk_i32 s52, 0xff
v_and_b32 {VL}, 63, v0
v_mov_b32 {VZ}, 0
v_lshrrev_b32 v1, 6, v0
v_lshlrev_b32 v2, 2, v0
v_readfirstlane_b32 s31, v1
v_cmp_gt_u32 vcc, {L_ZEND//4}, v0
s_and_saveexec_b64 s[70:71], vcc
ds_write_b32 v2, {VZ}
s_mov_b64 exec, s[70:71]
s_lshl_b32 s74, s28, 24
s_lshl_b32 s75, s26, 21
s_add_u32 s74, s74, s75
s_add_u32 s74, s74, {6144*256}
s_and_b32 s33, s31, 7
v_lshrrev_b32 v108, 4, {VL}
v_and_b32 v111, 7, {VL}
v_lshlrev_b32 v111, 4, v111
v_bfe_u32 v112, {VL}, 3, 1
v_lshlrev_b32 v112, 3, v112
v_lshl_add_u32 v112, v108, 4, v112
v_lshlrev_b32 v120, 4, {VL}
s_and_b32 s75, s33, 3
s_lshl_b32 s75, s75, 10
s_lshr_b32 s76, s33, 2
s_lshl_b32 s76, s76, 16
s_add_u32 s75, s75, s76
s_lshl_b32 s76, s29, 17
s_add_u32 s78, s75, s76
s_mul_i32 s53, s33, {rotw}
s_add_u32 s53, s53, s27
s_and_b32 s53, s53, {15 if rot else 0}
s_lshl_b32 s53, s53, 12
s_mov_b32 s54, 0xffff
s_mul_i32 s50, s28, {qrot}
s_add_u32 s50, s50, s26
s_and_b32 s50, s50, 7
s_xor_b32 s48, s28, {qx}
s_xor_b32 s49, s28, {ox}
s_nop 0""")
    if ffnmap == "old":
        k("""s_lshr_b32 s64, s28, 1
s_lshl_b32 s64, s64, 3
s_add_u32 s64, s64, s26
s_and_b32 s65, s28, 1
s_add_u32 s65, s65, 1
s_cmp_ge_u32 s64, 28
s_cselect_b32 s65, 0, s65
s_add_u32 s51, s28, 1""")
    else:
        k(f"""s_lshr_b32 s64, s26, 1
s_mul_i32 s64, s64, 7
s_xor_b32 s51, s28, {fx}
s_add_u32 s64, s64, s51
s_cmp_eq_u32 s51, 7
s_cselect_b32 s65, 0, 3
s_and_b32 s51, s26, 1
s_cmp_eq_u32 s51, {0 if ffnmap == "even" else 1}
s_cselect_b32 s65, s65, 0
s_mov_b32 s51, s28""")
    k("s_waitcnt lgkmcnt(0)")
    if "noffn" in abl: k("s_mov_b32 s65, 0")
    stamp("pro")
    k("s_cmp_lt_u32 s31, 8\ns_cbranch_scc1 L_kwave")
    k("s_setprio 3")
    srd(36, 4, None, 8192)
    k(f"""s_lshl_b32 s75, s33, 10
buffer_load_dwordx4 v[96:99], v120, {SX}, s75 offen
s_cmp_eq_u32 s33, 0
s_cbranch_scc1 L_setq
s_cmp_lg_u32 s33, 4
s_cbranch_scc1 L_nq1
s_bitcmp0_b32 s65, 0
s_cbranch_scc1 L_nopf""")
    srd(44, 16, None, 512 * 3584)
    k(f"""s_movk_i32 s77, 3584
s_mov_b32 s79, {57*3584}
s_mul_i32 s75, s29, {128*3584}
s_lshl_b32 s76, s64, 7
s_add_u32 s75, s75, s76
s_branch L_tload
L_setq:""")
    srd(44, 10, None, 4 << 20)
    k(f"""s_mov_b32 s76, {WS_E}
s_load_dword s68, s[24:25], s76
s_movk_i32 s77, 0x2000
s_mov_b32 s79, {57*8192}
s_lshl_b32 s75, s29, 20
s_lshl_b32 s76, s50, 10
s_add_u32 s75, s75, s76
s_lshl_b32 s76, s48, 7
s_add_u32 s75, s75, s76
L_tload:
v_mul_lo_u32 v121, v112, s77
v_add_u32 v121, v121, v111""")
    for ub in range(2):
        for t in range(8):
            r = 32 * ub + 4 * t
            k(f"buffer_load_dwordx4 v[{r}:{r+3}], v121, {SWA}, s75 offen{wfl}")
            k("s_add_u32 s75, s75, s77" if t < 7 else "s_add_u32 s75, s75, s79")
    k(f"""s_barrier
s_cmp_lg_u32 s33, 0
s_cbranch_scc1 L_notag
s_waitcnt lgkmcnt(0)
s_add_u32 {TA}, {TA}, 1
s_mul_i32 {TB}, {TA}, 0x9e3779b1
s_xor_b32 {TB}, {TB}, 0x5bd1e995
v_mov_b32 v124, {TA}
v_mov_b32 v125, {TB}
ds_write_b64 {VZ}, v[124:125] offset:{L_TAG}
L_notag:
s_waitcnt vmcnt(16)
s_branch L_ln""")
    k("L_nq1:")
    k(f"""s_cmp_lt_u32 s33, 6
s_cbranch_scc1 L_nopf
s_getpc_b64 s[80:81]
L_pc:
s_sub_u32 s80, s80, L_pc-{NAME}_kernel
s_subb_u32 s81, s81, 0
s_mov_b32 s82, L_codeend-{NAME}_kernel
s_mov_b32 s83, 0x20000
s_lshl_b32 s75, s29, 1
s_add_u32 s75, s75, s33
s_sub_u32 s75, s75, 6
s_lshl_b32 s75, s75, 11
buffer_load_dwordx4 v[0:3], v120, s[80:83], s75 offen
buffer_load_dwordx4 v[0:3], v120, s[80:83], s75 offen offset:1024
s_barrier
s_waitcnt vmcnt(2)
s_branch L_ln
L_nopf:
s_barrier
s_waitcnt vmcnt(0)
s_branch L_ln""")

    k.flush()
    k("L_kwave:")
    srd(40, 6, "s74", 524288)
    k(f"""v_bfe_u32 v109, {VL}, 2, 2
v_and_b32 v110, 3, {VL}
v_lshlrev_b32 v121, 8, v109
v_lshl_add_u32 v121, v108, 6, v121
v_lshl_add_u32 v121, v110, 4, v121
s_movk_i32 s77, 0x1000""")
    for t in range(16):
        if t == kfirst:
            k("s_barrier"); stamp("bar1")
        k(f"s_add_u32 s55, s78, s53\nbuffer_load_dwordx4 v[{4*t}:{4*t+3}], v121, {SKV}, s55 offen{kvflag}\ns_add_u32 s53, s53, s77\ns_and_b32 s53, s53, s54")
    stamp("kissued")
    srd(56, 24, None, WS_SIZE)
    srd(36, 4, None, 8192)
    srd(60, 20, None, 8192)
    k(f"""v_lshlrev_b32 v113, 8, v110
v_lshl_add_u32 v113, v108, 6, v113
v_lshl_add_u32 v113, v109, 4, v113
v_lshlrev_b32 v114, 7, v110
v_lshl_add_u32 v114, v108, 5, v114
v_lshl_add_u32 v114, v109, 3, v114
s_lshl_b32 s76, s33, 9
v_add_u32 v114, s76, v114
v_bfe_u32 v116, {VL}, 2, 3
v_lshlrev_b32 v116, 5, v116
v_lshl_add_u32 v116, v110, 2, v116
s_lshl_b32 s76, s33, 5
v_lshlrev_b32 v117, 2, {VL}
v_add_u32 v117, s76, v117
s_lshl_b32 s76, s33, 2
v_mov_b32 v123, s76
v_mov_b32 v122, 0""")
    lds_wait(L_CNT_XN, 8)
    gettags()
    k(f"""s_cmp_ge_u32 s33, 2
s_cbranch_scc1 L_nog
s_lshl_b32 s84, s26, 12
s_lshl_b32 s76, s27, 7
s_add_u32 s79, s84, s76
s_cmp_eq_u32 s33, 1
s_cbranch_scc1 L_gh
s_add_u32 s79, s79, {WS_HQ}
s_lshl_b32 s75, s28, 14
s_lshl_b32 s76, s26, 11
s_add_u32 s75, s75, s76
s_mov_b32 s66, 131072
s_mov_b32 s67, 0xff800000
s_movk_i32 s77, {L_Q}
v_mov_b32 v122, {L_F_Q}
s_branch L_g
L_gh:
s_bitcmp0_b32 s65, 1
s_cbranch_scc1 L_nog
s_add_u32 s79, s79, {WS_HH}
s_lshl_b32 s75, s64, 13
s_add_u32 s75, s75, {WS_HP}
s_movk_i32 s66, 0x800
s_mov_b32 s67, 0
s_movk_i32 s77, {L_HN}
v_mov_b32 v122, {L_F_HN}
L_g:
v_lshlrev_b32 v121, 7, v108
v_add3_u32 v121, v121, v111, s77
v_bfe_u32 v118, {VL}, 3, 1
v_lshl_add_u32 v121, v118, 3, v121
s_mov_b32 s72, {SPIN}""")
    k(f"""L_fpoll:
s_load_dwordx16 s[4:19], s[24:25], s79 glc
s_load_dwordx16 s[80:95], s[24:25], s79 offset:64 glc
s_waitcnt lgkmcnt(0)
s_min_u32 s73, s4, s5
s_max_u32 s76, s4, s5""")
    for i in list(range(6, 20)) + list(range(80, 96)):
        k(f"s_min_u32 s73, s73, s{i}\ns_max_u32 s76, s76, s{i}")
    k(f"""s_xor_b32 s70, s73, s76
s_xor_b32 s73, s73, {TB}
s_xor_b32 s76, s76, {TB}
s_or_b32 s73, s73, s76
s_cmp_lt_u32 s73, 16
s_cbranch_scc1 L_fok
s_sleep 2
s_sub_u32 s72, s72, 1
s_cmp_lg_u32 s72, 0
s_cbranch_scc1 L_fpoll
s_mov_b32 s70, 1
L_fok:
s_cmp_lg_u32 s33, 0
s_cbranch_scc1 L_nomode
s_cmp_eq_u32 s70, 0
s_cselect_b32 s70, 1, 2
v_mov_b32 v118, s70
ds_write_b32 {VZ}, v118 offset:{L_MODE}
L_nomode:""")
    stamp("hint")
    k(f"""s_mov_b32 s72, {SPIN}
L_qpoll:
s_mov_b32 s76, s75""")
    for ks in range(4):
        k(f"""buffer_load_dwordx4 v[{64+8*ks}:{64+8*ks+3}], v120, {SWS}, s76 offen sc1
buffer_load_dwordx4 v[{64+8*ks+4}:{64+8*ks+7}], v120, {SWS}, s76 offen offset:1024 sc1
s_add_u32 s76, s76, s66""")
    k("s_waitcnt vmcnt(0)")
    tagacc(range(64, 96), "v96", "v97", "v98")
    k(f"""v_cmp_ne_u32 vcc, 0, v96
s_cbranch_vccz L_qok
s_sub_u32 s72, s72, 1
s_cmp_lg_u32 s72, 0
s_cbranch_scc1 L_qpoll
L_qok:""")
    for i in range(32):
        k(f"v_and_b32 v{64+i}, {~tagmask & 0xffffffff:#x}, v{64+i}")
    for i in range(8):
        k(f"v_add_f32 v{64+i}, v{64+i}, v{72+i}\nv_add_f32 v{80+i}, v{80+i}, v{88+i}")
    for i in range(8):
        k(f"v_add_f32 v{64+i}, v{64+i}, v{80+i}")
    for i in range(8):
        k(f"v_max_f32 v{64+i}, s67, v{64+i}")
    for i in range(4):
        k(f"v_cvt_pk_bf16_f32 v{96+i}, v{64+2*i}, v{65+2*i}")
    k(f"""ds_write_b64 v121, v[96:97]
ds_write_b64 v121, v[98:99] offset:512""")
    lds_inc(0, vaddr="v122")
    k("L_nog:")
    lds_wait(L_F_Q, 1)
    k(f"ds_read_b128 v[96:99], v113 offset:{L_Q}\nds_read_b32 v118, {VZ} offset:{L_MODE}\ns_waitcnt vmcnt(0) lgkmcnt(0)\nv_readfirstlane_b32 s67, v118")
    if qrot: k("s_mov_b32 s67, 1")
    stamp("qready")
    def Dreg(t): return 100 if t == 0 else 4 * (t - 1)
    def qk_step(t, i):
        D = Dreg(t); tb = t >> 2; R = 104 + (t & 3)
        qs = [q for q in range(4) if q != tb]
        q = qs[i]; n = (4 * (tb - q)) % 16
        src1 = f"v{D+tb}" if i == 0 else f"v{R}"
        k(f"v_add_f32_dpp v{R}, v{D+q}, {src1} row_ror:{n} row_mask:0xf bank_mask:{1 << tb:#x}")
    for t in range(16 + 5):
        if t < 16:
            mfma(Dreg(t), 4 * t, 96, None)
        for i in range(3):
            tt = t - 3 - i
            if 0 <= tt < 16: qk_step(tt, i)
    k(f"""s_mov_b32 s76, {SCALE:#x}
s_mov_b32 s77, {LOG2E:#x}
v_cvt_pk_bf16_f32 v0, v104, v105
v_cvt_pk_bf16_f32 v1, v106, v107
v_lshlrev_b32 v2, 16, v0
v_and_b32 v3, 0xffff0000, v0
v_lshlrev_b32 v4, 16, v1
v_and_b32 v5, 0xffff0000, v1
v_mul_f32 v2, s76, v2
v_mul_f32 v3, s76, v3
v_mul_f32 v4, s76, v4
v_mul_f32 v5, s76, v5
v_cvt_pk_bf16_f32 v0, v2, v3
v_cvt_pk_bf16_f32 v1, v4, v5
v_lshlrev_b32 v2, 16, v0
v_and_b32 v3, 0xffff0000, v0
v_lshlrev_b32 v4, 16, v1
v_and_b32 v5, 0xffff0000, v1
v_max3_f32 v6, v2, v3, v4
v_max_f32 v6, v6, v5""")
    row_reduce("v_max_f32", "v6", (4, 8))
    xrow_reduce("v_max_f32", "v6", "v7")
    k(f"""s_mov_b64 exec, 0xf
ds_write_b32 v117, v6 offset:{L_STAT}
s_mov_b64 exec, -1""")
    lds_inc(L_CNT_K)
    lds_wait(L_CNT_K, 8)
    k(f"ds_read_b32 v6, v116 offset:{L_STAT}\ns_waitcnt lgkmcnt(0)")
    row_reduce("v_max_f32", "v6", (4, 8))
    xrow_reduce("v_max_f32", "v6", "v7", (16,))
    for i in range(4): k(f"v_sub_f32 v{2+i}, v{2+i}, v6")
    for i in range(4): k(f"v_mul_f32 v{2+i}, s77, v{2+i}")
    for i in range(4): k(f"v_exp_f32 v{2+i}, v{2+i}")
    k(f"""v_cvt_pk_bf16_f32 v0, v2, v3
v_cvt_pk_bf16_f32 v1, v4, v5
ds_write_b64 v114, v[0:1] offset:{L_P}
v_add_f32 v8, v2, v3
v_add_f32 v9, v4, v5
v_add_f32 v8, v8, v9""")
    row_reduce("v_add_f32", "v8", (4, 8))
    xrow_reduce("v_add_f32", "v8", "v7")
    k(f"""v_mov_b32 v11, 1
s_mov_b64 exec, 0xf
ds_write_b32 v117, v8 offset:{L_STAT+16}
s_mov_b64 exec, -1
s_waitcnt lgkmcnt(0)
s_mov_b64 exec, 1
ds_write_b32 v123, v11 offset:{L_F_P}
ds_add_u32 {VZ}, v11 offset:{L_CNT_L}
s_mov_b64 exec, -1""")
    stamp("qkdone")
    k("s_cmp_lg_u32 s33, 6\ns_cbranch_scc1 L_nostat")
    lds_wait(L_CNT_L, 8)
    k(f"""ds_read_b32 v8, v116 offset:{L_STAT+16}
v_mov_b32 v7, {TA}
v_mov_b32 v9, {TB}
s_lshl_b32 s76, s32, 9
s_add_u32 s76, s76, {WS_ST}
s_lshl_b32 s75, s29, 4
s_add_u32 s76, s76, s75
v_lshlrev_b32 v10, 7, {VL}
s_waitcnt lgkmcnt(0)""")
    row_reduce("v_add_f32", "v8", (4, 8))
    xrow_reduce("v_add_f32", "v8", "v11", (16,))
    k(f"""s_mov_b64 exec, 0xf
buffer_store_dwordx4 v[6:9], v10, {SWS}, s76 offen sc1
s_mov_b64 exec, -1""")
    k("L_nostat:")
    k("s_cmp_lg_u32 s33, 7\ns_cbranch_scc1 L_nofin")
    k(f"""v_lshrrev_b32 v108, 3, {VL}
v_lshrrev_b32 v118, 1, v111
v_lshl_add_u32 v110, v108, 11, v118
v_lshl_add_u32 v112, v108, 14, v118
s_lshl_b32 s87, s28, 16
s_lshl_b32 s76, s30, 6
s_add_u32 s87, s87, s76
s_add_u32 s87, s87, {WS_OA}
s_lshl_b32 s84, s28, 11
s_add_u32 s84, s84, s76
s_add_u32 s84, s84, {WS_OB}
s_lshl_b32 s88, s28, 10
s_lshl_b32 s76, s26, 7
s_add_u32 s88, s88, s76
s_lshl_b32 s76, s29, 2
s_add_u32 s88, s88, s76
buffer_load_dword v20, v111, {SX}, s88 offen""")
    k("L_nofin:")
    k("v_and_b32 v123, 12, v123")
    lds_wait(L_F_D, 1, vaddr="v123")
    k(f"""s_lshl_b32 s82, s33, 3
s_add_u32 s82, s82, s26
s_lshl_b32 s89, s82, 13
s_lshl_b32 s82, s82, 9
s_lshl_b32 s83, s29, 7
s_add_u32 s82, s82, s83
s_add_u32 s82, s82, {WS_ST}
s_lshl_b32 s83, s29, 9
s_add_u32 s89, s89, s83
s_add_u32 s89, s89, {WS_OX}
s_add_u32 s90, s89, 4096
s_mov_b32 s72, {SPIN}
L_stpoll:
s_load_dwordx16 s[4:19], s[24:25], s82 glc
s_waitcnt lgkmcnt(0)
s_mov_b32 s73, 0""")
    for p in range(4):
        k(f"""s_xor_b32 s83, s{4+4*p+1}, {TA}
s_or_b32 s73, s73, s83
s_xor_b32 s83, s{4+4*p+3}, {TB}
s_or_b32 s73, s73, s83""")
    k(f"""s_cmp_eq_u32 s73, 0
s_cbranch_scc1 L_stok
s_sleep 12
s_sub_u32 s72, s72, 1
s_cmp_lg_u32 s72, 0
s_cbranch_scc1 L_stpoll
L_stok:
v_mov_b32 v56, s4
v_max_f32 v56, s8, v56
v_max_f32 v56, s12, v56
v_max_f32 v56, s16, v56""")
    for p in range(4): k(f"v_sub_f32 v{52+p}, s{4+4*p}, v56")
    for p in range(4): k(f"v_mul_f32 v{52+p}, s77, v{52+p}")
    for p in range(4): k(f"v_exp_f32 v{52+p}, v{52+p}")
    k(f"""v_mul_f32 v56, s6, v52
v_fmac_f32 v56, s10, v53
v_fmac_f32 v56, s14, v54
v_fmac_f32 v56, s18, v55
v_rcp_f32 v56, v56""")
    for p in range(4): k(f"v_mul_f32 v{52+p}, v{52+p}, v56")
    k(f"""s_lshl_b32 s76, s33, 8
v_lshlrev_b32 v62, 2, {VL}
v_add_u32 v62, s76, v62
v_lshlrev_b32 v61, 3, {VL}
s_mov_b32 s55, 0xffffff00
s_lshl_b32 s78, s32, 2
s_add_u32 s78, s78, s29
s_lshl_b32 s78, s78, 11
s_add_u32 s78, s78, {WS_OX}""")
    ldx = lambda m, B: k(f"buffer_load_dwordx2 v[{B+2*m}:{B+1+2*m}], v61, {SWS}, s{89 + m//2} offen offset:{2048*(m%2)} sc1")
    if pre:
        lds_wait(L_CNT_VI, pre)
        for m in range(4): ldx(m, 32)
        if obpre:
            k(f"""s_cmp_lg_u32 s33, 7
s_cbranch_scc1 L_noob
v_and_b32 v70, {SM8}, {VT}
v_and_b32 v71, {SM8}, {VT}""")
            for m in range(4):
                if m == 3: k("s_mov_b32 exec_hi, 0")
                k(f"s_add_u32 s85, s84, {m*8*16384}\nbuffer_load_dwordx2 v[{64+2*m}:{65+2*m}], v112, {SWS}, s85 offen sc1")
            k("s_mov_b64 exec, -1\nL_noob:")
    k("s_cmp_eq_u32 s67, 1")
    stamp("kready")
    k("s_barrier")
    stamp("bar2")
    k(f"""ds_read_b32 v96, v62 offset:{L_OP}
ds_read_b32 v97, v62 offset:{L_OP+2048}
ds_read_b32 v98, v62 offset:{L_OP+4096}
ds_read_b32 v99, v62 offset:{L_OP+6144}
s_waitcnt lgkmcnt(2)
v_add_f32 v96, v96, v97
s_waitcnt lgkmcnt(0)
v_add_f32 v98, v98, v99
v_add_f32 v96, v96, v98""")
    settag(96)
    k(f"""s_cbranch_scc1 L_oxpl
buffer_store_dword v96, v62, {SWS}, s78 offen sc1
s_branch L_oxst
L_oxpl:
buffer_store_dword v96, v62, {SWS}, s78 offen
L_oxst:""")
    stamp("oxst")
    if stamps and "poll1" in stamps:
        k("s_waitcnt vmcnt(0)"); stamp("poll1")
    if not pre:
        for m in range(4): ldx(m, 32)
    def oxcomb(B):
        for i in range(8): k(f"v_and_b32 v{B+i}, s55, v{B+i}")
        k(f"""v_mul_f32 v58, v{B}, v52
v_mul_f32 v59, v{B+1}, v52
v_mul_f32 v56, v{B+4}, v54
v_mul_f32 v57, v{B+5}, v54
v_fmac_f32 v58, v{B+2}, v53
v_fmac_f32 v59, v{B+3}, v53
v_fmac_f32 v56, v{B+6}, v55
v_fmac_f32 v57, v{B+7}, v55""")
    if poll4("L_ox", ldx, dbl=dblx, w1=bool(pre)):
        oxcomb(40)
        k("s_branch L_oxj\nL_oxok:")
    stamp("oxok")
    oxcomb(32)
    k(f"""L_oxj:
v_add_f32 v58, v58, v56
v_add_f32 v59, v59, v57
v_cvt_pk_bf16_f32 v58, v58, v59
ds_write_b32 v62, v58 offset:{L_O16}
s_waitcnt lgkmcnt(0)
s_barrier""")
    stamp("bar3")
    k("s_cmp_eq_u32 s33, 7\ns_cbranch_scc1 L_final")
    stamp("kend")
    stamp_flush()
    k("s_endpgm")
    k.flush()
    k("L_final:")
    def gather(vaddr, sbase, step, lab, d0, d1, partial, dbl):
        k("s_waitcnt vmcnt(0)")
        if partial:
            k(f"v_and_b32 v38, {SM8}, {VT}\nv_and_b32 v39, {SM8}, {VT}")
        for m in range(4): k(f"s_add_u32 s{80+m}, {sbase}, {m*step}")
        ld = lambda m, B: k(f"buffer_load_dwordx2 v[{B+2*m}:{B+1+2*m}], {vaddr}, {SWS}, s{80+m} offen sc1")
        if partial and obpre:
            for i in range(8): k(f"v_mov_b32 v{32+i}, v{64+i}")
        else:
            if not partial and oadelay: k(f"s_sleep {oadelay}")
            for m in range(4):
                if partial and m == 3: k("s_mov_b32 exec_hi, 0")
                ld(m, 32)
            if partial: k("s_mov_b64 exec, -1")
        def comb(B):
            for i in range(8): k(f"v_and_b32 v{B+i}, s55, v{B+i}")
            k(f"""v_add_f32 v56, v{B}, v{B+2}
v_add_f32 v57, v{B+1}, v{B+3}
v_add_f32 v58, v{B+4}, v{B+6}
v_add_f32 v59, v{B+5}, v{B+7}""")
        if poll4(lab, ld, slp=oasleep, dbl=dbl, partial=partial):
            comb(40)
            k(f"s_branch {lab}j\n{lab}ok:")
        comb(32)
        k(f"""{lab}j:
v_add_f32 {d0}, v56, v58
v_add_f32 {d1}, v57, v59
v_add_f32_dpp {d0}, {d0}, {d0} row_ror:8 row_mask:0xf bank_mask:0xf
v_add_f32_dpp {d1}, {d1}, {d1} row_ror:8 row_mask:0xf bank_mask:0xf""")
        for w in (16, 32):
            k(f"""v_mov_b32 v48, {d0}
v_mov_b32 v49, {d1}
v_permlane{w}_swap_b32 {d0}, v48
v_permlane{w}_swap_b32 {d1}, v49
v_add_f32 {d0}, {d0}, v48
v_add_f32 {d1}, {d1}, v49""")
        k(f"""v_cvt_pk_bf16_f32 v48, {d0}, {d1}
v_lshlrev_b32 {d0}, 16, v48
v_and_b32 {d1}, 0xffff0000, v48""")
    if "noffn" not in abl: gather("v112", "s84", 8 * 16384, "L_ob", "v22", "v23", True, 0)
    k("v_and_b32 v21, 0xffff0000, v20\nv_lshlrev_b32 v20, 16, v20")
    gather("v110", "s87", 16384, "L_oa", "v24", "v25", False, dbla)
    k(f"""v_add_f32 v20, v20, v24
v_add_f32 v21, v21, v25
v_cvt_pk_bf16_f32 v16, v20, v21
v_lshlrev_b32 v20, 16, v16
v_and_b32 v21, 0xffff0000, v16
v_add_f32 v20, v20, v22
v_add_f32 v21, v21, v23
v_cvt_pk_bf16_f32 v20, v20, v21
s_mov_b64 exec, 0xff
buffer_store_dword v20, v111, {SOUT}, s88 offen
s_mov_b64 exec, -1""")
    stamp("kend")
    stamp_flush()
    k(f"""s_cmp_lg_u32 s2, 0
s_cbranch_scc1 L_end
s_mov_b32 s76, {WS_E}
s_mov_b64 exec, 1
buffer_store_dword {VT}, {VZ}, {SWS}, s76 offen""")
    if probe:
        k(f"""s_memrealtime s[98:99]
s_waitcnt lgkmcnt(0)
s_sub_u32 s76, s98, s96
s_mul_i32 s76, s76, {probe}
L_probe:
s_memrealtime s[100:101]
s_waitcnt lgkmcnt(0)
s_sub_u32 s77, s100, s98
s_cmp_lt_u32 s77, s76
s_cbranch_scc1 L_probe""")
    k("s_endpgm")

    k.flush()
    k("L_ln:")
    stamp("xarr")
    for i in range(4):
        k(f"v_lshlrev_b32 v{100+2*i}, 16, v{96+i}\nv_and_b32 v{101+2*i}, 0xffff0000, v{96+i}")
    k("""v_add_f32 v96, v100, v101
v_add_f32 v97, v102, v103
v_add_f32 v98, v104, v105
v_add_f32 v99, v106, v107
v_add_f32 v96, v96, v97
v_add_f32 v98, v98, v99
v_add_f32 v96, v96, v98""")
    row_reduce("v_add_f32", "v96")
    xrow_reduce("v_add_f32", "v96", "v97")
    k("v_mul_f32 v96, 0x3b000000, v96")
    k("v_sub_f32 v98, v100, v96\nv_mul_f32 v97, v98, v98")
    for i in range(1, 8):
        k(f"v_sub_f32 v98, v{100+i}, v96\nv_fmac_f32 v97, v98, v98")
    row_reduce("v_add_f32", "v97")
    xrow_reduce("v_add_f32", "v97", "v98")
    k("v_mul_f32 v97, 0x3b000000, v97")
    rnd("v96", "v96"); rnd("v97", "v97")
    k("v_add_f32 v97, 0x3727c5ac, v97")
    rnd("v97", "v97")
    k("v_sqrt_f32 v97, v97")
    rnd("v97", "v97")
    k("v_rcp_f32 v98, v97")
    for i in range(0, 8, 2):
        a, b2 = 100 + i, 101 + i
        k(f"""v_sub_f32 v{a}, v{a}, v96
v_sub_f32 v{b2}, v{b2}, v96
v_cvt_pk_bf16_f32 v99, v{a}, v{b2}
v_lshlrev_b32 v{a}, 16, v99
v_and_b32 v{b2}, 0xffff0000, v99""")
    for i in range(8):
        a = 100 + i
        k(f"""v_mul_f32 v99, v{a}, v98
v_fma_f32 v{a}, -v99, v97, v{a}
v_fma_f32 v{a}, v{a}, v98, v99""")
    for i in range(4):
        k(f"v_cvt_pk_bf16_f32 v{96+i}, v{100+2*i}, v{101+2*i}")
    k(f"""s_lshl_b32 s75, s33, 10
v_add_u32 v122, s75, v120
ds_write_b128 v122, v[96:99] offset:{L_XN}""")
    lds_inc(L_CNT_XN)
    stamp("ln")
    srd(56, 24, None, WS_SIZE)
    srd(40, 8, "s74", 524288)
    k("v_mov_b32 v119, 0")
    k(f"""s_mov_b32 s66, 0
s_cmp_eq_u32 s33, 0
s_cbranch_scc1 L_tq
s_cmp_lt_u32 s33, 3
s_cbranch_scc1 L_f2l
s_cmp_lg_u32 s33, 4
s_cbranch_scc1 L_vload
s_bitcmp0_b32 s65, 0
s_cbranch_scc1 L_vload""")
    k(f"""v_lshrrev_b32 v121, 3, {VL}
v_lshlrev_b32 v123, 7, v121
v_lshlrev_b32 v121, 8, v121
v_lshrrev_b32 v122, 2, v111
v_add_u32 v123, v123, v122
s_lshl_b32 s75, s64, 2
s_add_u32 s75, s75, s29
s_lshl_b32 s75, s75, 11
s_add_u32 s75, s75, {WS_HP}
s_lshl_b32 s76, s26, 12
s_lshl_b32 s77, s51, 9
s_add_u32 s76, s76, s77
s_lshl_b32 s77, s29, 5
s_add_u32 s76, s76, s77
s_add_u32 s76, s76, {WS_HH}
s_branch L_tile
L_tq:
v_lshrrev_b32 v121, 3, {VL}
v_lshlrev_b32 v121, 14, v121
v_lshlrev_b32 v123, 7, {VL}
s_lshl_b32 s75, s29, 17
s_lshl_b32 s76, s50, 11
s_add_u32 s75, s75, s76
s_lshl_b32 s77, s48, 8
s_add_u32 s75, s75, s77
s_lshl_b32 s76, s50, 12
s_lshl_b32 s77, s27, 2
s_add_u32 s76, s76, s77
s_add_u32 s76, s76, {WS_HQ}
L_tile:
v_add_u32 v121, v111, v121""")
    arow_addr("v122", "v118", 10)
    k(f"""s_lshl_b32 s77, s29, 8
v_add_u32 v122, s77, v122""")
    lds_wait(L_CNT_XN, 8)
    k(f"""ds_read_b128 v[96:99], v122 offset:{L_XN}
ds_read_b128 v[100:103], v122 offset:{L_XN+128}""")
    gettags()
    k(f"""s_getreg_b32 s77, hwreg(HW_REG_XCC_ID)
s_and_b32 s77, s77, 15
s_andn2_b32 s79, {TB}, 15
s_or_b32 s77, s77, s79
v_mov_b32 v122, s77""")
    for ub in range(2):
        k(f"s_waitcnt vmcnt({8 - 8*ub})")
        for w in range(4):
            T = 104 + 8 * (w & 1)
            perms(T, 32 * ub, w)
            mfma(64 + 8 * w, 96 + 4 * ub, T, None if ub == 0 else 64 + 8 * w)
            mfma(68 + 8 * w, 96 + 4 * ub, T + 4, None if ub == 0 else 68 + 8 * w)
    for w in range(4):
        pairsum(96 + 2 * w, 97 + 2 * w, 64 + 8 * w, 68 + 8 * w, SM)
    k(f"""v_mov_b32 v119, v121
s_mov_b32 s94, s75
s_mov_b32 s66, {3 if opt else 0}
buffer_store_dwordx4 v[96:99], v121, {SWS}, s75 offen{"" if opt else " sc1"}
buffer_store_dwordx4 v[100:103], v121, {SWS}, s75 offen offset:128{"" if opt else " sc1"}
s_mov_b32 exec_hi, 0
buffer_store_dword v122, v123, {SWS}, s76 offen{hst}
s_mov_b64 exec, -1""")
    stamp("tpub")
    k("s_branch L_vload")
    k.flush()
    k("L_f2l:")
    k("s_bitcmp0_b32 s65, 1\ns_cbranch_scc1 L_vload")
    srd(44, 18, None, 1792 * 1024)
    k(f"""s_setprio 0
s_mov_b32 s66, 1
v_lshl_add_u32 v121, v112, 10, v111
s_lshl_b32 s75, s64, 16
s_lshl_b32 s76, s29, 8
s_add_u32 s75, s75, s76
s_sub_u32 s76, s33, 1
s_lshl_b32 s76, s76, 7
s_add_u32 s75, s75, s76
s_add_u32 s76, s75, 4096""")
    for t in range(8):
        k(f"buffer_load_dwordx4 v[{64+4*t}:{64+4*t+3}], v121, {SWA}, s{75 + t//4} offen offset:{(t%4)*1024}{wfl}")
    k("s_branch L_vload")
    k.flush()
    k("L_vload:")
    k(f"""s_setprio 0
s_movk_i32 s77, 0x1000""")
    for t in range(16):
        k(f"s_add_u32 s55, s78, s53\nbuffer_load_dwordx4 v[{4*t}:{4*t+3}], v120, {SKV}, s55 offen{kvflag}\ns_add_u32 s53, s53, s77\ns_and_b32 s53, s53, s54")
    k("s_cmp_lt_u32 s33, 4\ns_cbranch_scc1 L_novi")
    lds_inc(L_CNT_VI)
    k("L_novi:")
    stamp("vissued")
    k("""s_cmp_eq_u32 s66, 0
s_cbranch_scc1 L_noj
s_cmp_lg_u32 s66, 3
s_cbranch_scc1 L_f2w""")
    lds_wait(L_MODE, 1)
    k(f"""s_cmp_eq_u32 s73, 1
s_cbranch_scc1 L_noj
buffer_store_dwordx4 v[96:99], v119, {SWS}, s94 offen sc1
buffer_store_dwordx4 v[100:103], v119, {SWS}, s94 offen offset:128 sc1
s_branch L_noj
L_f2w:
s_waitcnt vmcnt(16)""")
    k("L_f2:")
    arow_addr("v122", "v118", 7)
    k(f"""v_lshrrev_b32 v121, 3, {VL}
v_lshlrev_b32 v121, 11, v121
v_and_b32 v123, 7, {VL}
v_lshl_add_u32 v121, v123, 3, v121
s_lshl_b32 s75, s64, 14
s_lshl_b32 s76, s29, 9
s_add_u32 s75, s75, s76
s_sub_u32 s76, s33, 1
s_lshl_b32 s76, s76, 8
s_add_u32 s75, s75, s76
s_add_u32 s75, s75, {WS_OB}""")
    lds_wait(L_F_HN, 1)
    k(f"ds_read_b128 v[112:115], v122 offset:{L_HN}")
    gettags()
    k("s_setprio 3")
    for w in range(4):
        G = 116 + 2 * (w & 1)
        perms(96, 64, w)
        mfma(104, 112, 96, None)
        mfma(108, 112, 100, None)
        pairsum(G, G + 1, 104, 108)
        k(f"buffer_store_dwordx2 v[{G}:{G+1}], v121, {SWS}, s75 offen offset:{64*w} sc1")
    k("s_setprio 0")
    stamp("tpub")
    k("L_noj:")
    k(f"""v_lshrrev_b32 v108, 4, {VL}
v_and_b32 v110, 3, {VL}
v_bfe_u32 v109, {VL}, 2, 2
v_lshlrev_b32 v122, 7, v110
v_lshl_add_u32 v122, v108, 5, v122
s_lshl_b32 s75, s33, 9
s_add_u32 s75, s75, {L_P}
v_add_u32 v122, s75, v122
v_mov_b32 v123, {L_ZERO}""")
    for dl in range(4):
        k(f"v_cmp_eq_u32 vcc, {dl}, v109\nv_cndmask_b32 v{112+dl}, v123, v122, vcc")
    k(f"""s_lshl_b32 s75, s33, 2
v_mov_b32 v123, s75
s_and_b32 s75, s33, 3
s_lshl_b32 s76, s75, 2
v_mov_b32 v121, s76
s_lshl_b32 s75, s75, 11
v_add_u32 v120, s75, v120
v_lshlrev_b32 v122, 2, {VL}
v_add_u32 v122, s75, v122""")
    lds_wait(L_F_P, 1, vaddr="v123")
    for ub in range(2):
        for dl in range(4):
            r = 64 + 16 * ub + 4 * dl
            k(f"ds_read_b128 v[{r}:{r+3}], v{112+dl} offset:{16*ub}")
    k("s_cmp_ge_u32 s33, 4\ns_cbranch_scc1 L_g3")
    for i in range(8): k(f"v_mov_b32 v{96+i}, 0")
    k("s_branch L_pv\nL_g3:")
    lds_wait(L_F_D, 1, vaddr="v121")
    k(f"""ds_read_b128 v[96:99], v120 offset:{L_DX}
ds_read_b128 v[100:103], v120 offset:{L_DX+1024}""")
    srd(44, 12, None, 4 << 20)
    k(f"""v_bfe_u32 v116, {VL}, 3, 1
v_lshlrev_b32 v116, 6, v116
v_lshrrev_b32 v117, 4, {VL}
v_add_u32 v116, v116, v117
v_and_b32 v117, 7, {VL}
v_lshlrev_b32 v117, 4, v117
v_lshl_add_u32 v116, v116, 10, v117
s_lshl_b32 s75, s30, 17
s_lshl_b32 s76, s49, 7
s_add_u32 s75, s75, s76
s_bfe_u32 s76, s33, 0x10001
s_lshl_b32 s76, s76, 12
s_add_u32 s75, s75, s76
s_and_b32 s76, s33, 1
s_lshl_b32 s76, s76, 15
s_add_u32 s75, s75, s76
s_and_b32 s77, s33, 3
s_lshl_b32 s77, s77, 12
s_add_u32 m0, s77, {L_WT}""")
    lds_wait(L_CNT_VI, 4)
    for t in range(4):
        k(f"buffer_load_dwordx4 v116, {SWA}, s75 offen{wfl} lds\ns_add_u32 m0, m0, 0x400\ns_add_u32 s75, s75, 0x2000")
    lds_inc(L_CNT_VI)
    k(f"""L_pv:
s_waitcnt lgkmcnt(0)
s_cmp_ge_u32 s33, 4""")
    stamp("fdok")
    def vwait(n):
        lab = k.label("Lv")
        k(f"s_cbranch_scc1 {lab}\ns_waitcnt vmcnt({n})\n{lab}:\ns_waitcnt vmcnt({n+4})")
    vwait(8)
    for w in range(4):
        T = 104 + 8 * (w & 1)
        perms(T, 0, w)
        for hh in range(2):
            di = 2 * w + hh; x = di >> 2; dl = di & 3
            mfma(96 + 4 * x, 64 + 4 * dl, T + 4 * hh, 96 + 4 * x)
    gettags()
    arow_addr("v116", "v118", 8)
    k(f"""s_and_b32 s77, s33, 3
s_lshl_b32 s76, s77, 2
v_lshlrev_b32 v117, 4, {VL}
v_add_u32 v117, s76, v117
v_lshrrev_b32 v119, 3, {VL}
v_lshlrev_b32 v119, 16, v119
v_and_b32 v118, 7, {VL}
v_lshl_add_u32 v119, v118, 3, v119
s_lshl_b32 s86, s30, 11
s_lshl_b32 s76, s49, 8
s_add_u32 s86, s86, s76
s_lshl_b32 s76, s77, 6
s_add_u32 s86, s86, s76
s_add_u32 s86, s86, {WS_OA}
s_cmp_ge_u32 s33, 4""")
    for p in range(4):
        vwait(6 - 2 * p)
        if p == 3: stamp("varr")
        for w in range(4):
            k(f"v_perm_b32 v{8*w+p}, v{32+4*(2*p+1)+w}, v{32+4*(2*p)+w}, s34")
            k(f"v_perm_b32 v{8*w+4+p}, v{32+4*(2*p+1)+w}, v{32+4*(2*p)+w}, s35")
            if p == 3 and w >= 1:
                di = 2 * (w - 1)
                for d in (di, di + 1):
                    mfma(96 + 4 * (d >> 2), 80 + 4 * (d & 3), 4 * d, 96 + 4 * (d >> 2))
    for d in (6, 7):
        mfma(96 + 4 * (d >> 2), 80 + 4 * (d & 3), 4 * d, 96 + 4 * (d >> 2))
    k("s_cmp_ge_u32 s33, 4\ns_cbranch_scc1 L_g3b")
    k(f"""ds_write_b128 v120, v[96:99] offset:{L_DX}
ds_write_b128 v120, v[100:103] offset:{L_DX+1024}""")
    lds_inc(L_F_D, vaddr="v121")
    stamp("pvdone")
    stamp_flush()
    k("s_endpgm")
    k.flush()
    k("L_g3b:")
    for x in range(2):
        for h in range(4):
            k(f"ds_write_b32 v122, v{96+4*x+h} offset:{L_OP + h*512 + x*256}")
    k("s_waitcnt lgkmcnt(0)")
    stamp("pvdone")
    k("s_barrier")
    k("s_waitcnt vmcnt(0)")
    lds_inc(L_CNT_WO)
    lds_wait(L_CNT_WO, 4, slp=0)
    for n in range(16):
        k(f"ds_read_b32 v{n}, v117 offset:{L_WT + 1024*n}")
    for ub in range(2):
        k(f"s_waitcnt lgkmcnt({8 - 8*ub})")
        for p in range(4):
            k(f"v_perm_b32 v{16+8*ub+p}, v{8*ub+2*p+1}, v{8*ub+2*p}, s34")
            k(f"v_perm_b32 v{16+8*ub+4+p}, v{8*ub+2*p+1}, v{8*ub+2*p}, s35")
    stamp("woready")
    k(f"""s_barrier
ds_read_b128 v[96:99], v116 offset:{L_O16}
ds_read_b128 v[100:103], v116 offset:{L_O16+128}
s_waitcnt lgkmcnt(1)""")
    mfma(104, 96, 16, None); mfma(108, 96, 20, None)
    k("s_waitcnt lgkmcnt(0)")
    mfma(104, 100, 24, 104); mfma(108, 100, 28, 108)
    pairsum(112, 113, 104, 108)
    k(f"buffer_store_dwordx2 v[112:113], v119, {SWS}, s86 offen sc1")
    stamp("gend")
    stamp_flush()
    k("L_end:")
    k("s_endpgm")
    k("L_codeend:")

    T = []
    T.append('.section .rodata,"a"'); T.append(".p2align 6")
    T.append(f".amdhsa_kernel {NAME}_kernel")
    T.append("  .amdhsa_next_free_vgpr 128"); T.append("  .amdhsa_next_free_sgpr 102"); T.append("  .amdhsa_accum_offset 128")
    T.append("  .amdhsa_group_segment_fixed_size 0"); T.append("  .amdhsa_kernarg_size 88"); T.append("  .amdhsa_user_sgpr_count 2")
    T.append("  .amdhsa_user_sgpr_kernarg_segment_ptr 1"); T.append("  .amdhsa_system_sgpr_workgroup_id_x 1")
    T.append("  .amdhsa_float_denorm_mode_32 3")
    T.append(".end_amdhsa_kernel")
    open(fname, "w").write("\n".join(H) + "\n" + k.text() + "\n".join(T) + "\n")

SA = {"start": 0, "hint": 1, "qready": 2, "ln": 1, "tpub": 1, "vissued": 2}
SB = {"start": 0, "qkdone": 1, "kready": 2, "varr": 1, "pvdone": 2}
SC = {"start": 0, "bar2": 1, "kend": 2, "varr": 1, "pvdone": 2}
SE = {"start": 0, "bar3": 1, "kend": 2, "varr": 1, "pvdone": 2}
SD = {"start": 0, "kissued": 1, "qready": 2, "vissued": 1, "varr": 2}
SI = {"start": 0, "bar2": 1, "kend": 2, "woready": 1, "gend": 2}
if __name__ == "__main__":
    gen("k25.s")
    gen("k25_sc.s", stamps=SI)
    gen("k25_probe.s", probe=10)
```

```python
import sys, argparse
from asmlib import Asm
NAME = "parallel_sum__sliding_block_cached__dense_activation_relu__decode"

WS_QP = 0x000000
WS_OX = 0x080000
WS_OA = 0x100000
WS_OB = 0x180000
WS_HP = 0x1F0000
WS_ST = 0x228000
WS_HQ = 0x230000
WS_HH = 0x238000
WS_E  = 0x240000
WS_SIZE = 0x241000
STAMP_OFF = 256 << 20
L_CNT_XN = 0; L_MODE = 4; L_F_Q = 8; L_F_HN = 12; L_CNT_K = 16; L_CNT_L = 20; L_TAG = 24; L_F_P = 32
L_ZERO = 64; L_F_D = 96; L_CNT_VI = 112; L_CNT_WO = 116; L_ZEND = 128
L_STAT = 128; L_Q = 1024; L_HN = 2048; L_P = 3072; L_XN = 7168; L_OP = 15360; L_DX = L_OP + 8192; L_O16 = L_DX + 8192; L_WT = L_O16 + 2048; L_END = L_WT + 16384

DOC = """; ---------------------------------------------------------------------------------------------
; word that the previous launch left in d_ws (used only to tell this launch's hand-offs from older ones).
; ---------------------------------------------------------------------------------------------"""
LOG2E = 0x3fb8aa3b
SCALE = 0x3db504f3
SPIN = 1 << 16

def gen(fname, stamps=None, kvflag=" nt", psleep=0, abl=(), kfirst=0, lst=" sc1", tagmask=0xf, rxor=0, qx=4, ox=5, qrot=0, ffnmap="even", fx=0, probe=0, oasleep=0, dblx=0, dbla=4, pre=8, obpre=0, oadelay=0, wfl=None, hst=" sc1", strict=1, rot=1, rotw=2, opt=1, hrep=4, hsleep=4, direct=2):
    k = Asm()
    if wfl is None: wfl = kvflag
    H = []
    H.append(open("cdna_kernels/%s.s.ref" % NAME).read().split("; Override launch")[0].rstrip("\n"))
    H.append(f"; @launch grid=(256,1,1) block=(1024,1,1) lds={L_END}")
    H.append(DOC)
    H.append('.amdgcn_target "amdgcn-amd-amdhsa--gfx950"')
    H.append(".text"); H.append(f".globl {NAME}_kernel"); H.append(".p2align 8"); H.append(f".type {NAME}_kernel,@function")
    H.append(f"{NAME}_kernel:")

    VL = "v126"; VZ = "v127"; VT = "v124"
    TA, TB = "s68", "s69"
    SM = "s3"
    def srd(d, lo, off, size):
        if off is None:
            k(f"s_mov_b32 s{d}, s{lo}\ns_mov_b32 s{d+1}, s{lo+1}")
        else:
            k(f"s_add_u32 s{d}, s{lo}, {off}\ns_addc_u32 s{d+1}, s{lo+1}, 0")
        k(f"s_mov_b32 s{d+2}, {size}\ns_mov_b32 s{d+3}, 0x20000")
    SX, SKV, SWA, SWS, SOUT = [f"s[{a}:{a+3}]" for a in (36, 40, 44, 56, 60)]

    def stamp(name):
        if not stamps or name not in stamps: return
        sl = stamps[name]
        k(f"s_memrealtime s[{96+2*sl}:{97+2*sl}]")
    def stamp_flush():
        if not stamps: return
        k(f"""s_waitcnt lgkmcnt(0)
s_mov_b64 exec, 1
s_lshl_b32 s76, s2, 9
s_lshl_b32 s77, s31, 5
s_add_u32 s76, s76, s77
s_add_u32 s76, s76, {STAMP_OFF}
s_add_u32 s76, s24, s76
s_addc_u32 s77, s25, 0
v_mov_b32 v0, s96
v_mov_b32 v1, s97
v_mov_b32 v2, s98
v_mov_b32 v3, s99
v_mov_b32 v4, s100
v_mov_b32 v5, s101
global_store_dwordx4 {VZ}, v[0:3], s[76:77]
global_store_dwordx2 {VZ}, v[4:5], s[76:77] offset:16""")

    def lds_wait(addr, val, vaddr=VZ, vt="v125", slp=1):
        lp = k.label("Lw"); dn = k.label("Ld")
        k(f"s_mov_b32 s72, {SPIN}")
        k(f"{lp}:")
        k(f"""ds_read_b32 {vt}, {vaddr} offset:{addr}
s_waitcnt lgkmcnt(0)
v_readfirstlane_b32 s73, {vt}
s_cmp_ge_u32 s73, {val}
s_cbranch_scc1 {dn}
{"s_sleep 1" if slp else "s_nop 0"}
s_sub_u32 s72, s72, 1
s_cmp_lg_u32 s72, 0
s_cbranch_scc1 {lp}""")
        k(f"{dn}:")
    def lds_inc(addr, vaddr=VZ, vt="v125"):
        k(f"""s_waitcnt lgkmcnt(0)
v_mov_b32 {vt}, 1
s_mov_b64 exec, 1
ds_add_u32 {vaddr}, {vt} offset:{addr}
s_mov_b64 exec, -1""")
    def rnd(dst, src):
        k(f"v_cvt_pk_bf16_f32 {dst}, {src}, {src}\nv_lshlrev_b32 {dst}, 16, {dst}")
    def row_reduce(op, v, steps=(8, 4, 2, 1)):
        for n in steps:
            k(f"{op}_dpp {v}, {v}, {v} row_ror:{n} row_mask:0xf bank_mask:0xf")
    def xrow_reduce(op, v, t, which=(16, 32)):
        for w in which:
            k(f"v_mov_b32 {t}, {v}\nv_permlane{w}_swap_b32 {v}, {t}\n{op} {v}, {v}, {t}")
    def perms(T, W, w):
        for p in range(4):
            k(f"v_perm_b32 v{T+p}, v{W+4*(2*p+1)+w}, v{W+4*(2*p)+w}, s34")
        for p in range(4):
            k(f"v_perm_b32 v{T+4+p}, v{W+4*(2*p+1)+w}, v{W+4*(2*p)+w}, s35")
    def mfma(D, A, B, C):
        c = "0" if C is None else f"v[{C}:{C+3}]"
        k(f"v_mfma_f32_16x16x32_bf16 v[{D}:{D+3}], v[{A}:{A+3}], v[{B}:{B+3}], {c}")
    def gettags():
        k(f"""ds_read_b64 v[124:125], {VZ} offset:{L_TAG}
s_waitcnt lgkmcnt(0)
v_readfirstlane_b32 {TA}, v124
v_readfirstlane_b32 {TB}, v125""")
    SM8 = "s52"
    def settag(r, m=None):
        k(f"v_bfi_b32 v{r}, {m or SM8}, {VT}, v{r}")
    def tagacc(regs, acc, t1, t2):
        regs = list(regs)
        k(f"v_xor_b32 {acc}, {TA}, v{regs[0]}\nv_xor_b32 {t1}, {TA}, v{regs[1]}\nv_or_b32 {acc}, {acc}, {t1}")
        for i in range(2, len(regs), 2):
            k(f"v_xor_b32 {t1}, {TA}, v{regs[i]}\nv_xor_b32 {t2}, {TA}, v{regs[i+1]}\nv_or3_b32 {acc}, {acc}, {t1}, {t2}")
        k(f"v_and_b32 {acc}, {SM}, {acc}")
    def pairsum(G0, G1, D0, D1, m=None):
        k(f"""v_add_f32_dpp v{G0}, v{D0+1}, v{D0} row_shl:8 row_mask:0xf bank_mask:0x3
v_add_f32_dpp v{G1}, v{D1+1}, v{D1} row_shl:8 row_mask:0xf bank_mask:0x3
v_add_f32_dpp v{G0}, v{D0+2}, v{D0+3} row_shr:8 row_mask:0xf bank_mask:0xc
v_add_f32_dpp v{G1}, v{D1+2}, v{D1+3} row_shr:8 row_mask:0xf bank_mask:0xc""")
        settag(G0, m); settag(G1, m)
    def arow_addr(vd, vt, rowshift):
        k(f"""v_bfe_u32 {vd}, {VL}, 1, 3
v_lshlrev_b32 {vd}, {rowshift}, {vd}
v_and_b32 {vt}, 1, {VL}
v_lshl_add_u32 {vd}, {vt}, 4, {vd}
v_lshrrev_b32 {vt}, 4, {VL}
v_lshl_add_u32 {vd}, {vt}, 5, {vd}""")
    def poll4(lab, ld, slp=None, dbl=0, partial=False, w1=False):
        slp = psleep if slp is None else slp
        def check(B, ok):
            for p in range(4):
                k(f"v_bitop3_b32 v{48+p}, v{B+2*p}, v{B+1+2*p}, {VT} bitop3:0x7e")
            for p in range(4):
                k(f"v_cmp_ne_u32_sdwa s[{4+2*p}:{5+2*p}], v{48+p}, {VZ} src0_sel:BYTE_0 src1_sel:DWORD")
            k(f"""s_or_b64 s[12:13], s[4:5], s[6:7]
s_or_b64 s[14:15], s[8:9], s[10:11]
s_or_b64 s[12:13], s[12:13], s[14:15]
s_cbranch_scc0 {ok}""")
        def reissue(B):
            for m in range(4):
                k(f"s_cmp_lg_u64 s[{4+2*m}:{5+2*m}], 0\ns_cselect_b64 exec, -1, 0")
                if partial and m == 3: k("s_mov_b32 exec_hi, 0")
                ld(m, B)
            k("s_mov_b64 exec, -1")
        k(f"s_mov_b32 s72, {SPIN}")
        if not dbl:
            if w1:
                k(f"s_waitcnt vmcnt(1)\ns_branch {lab}c")
            k(f"{lab}poll:\ns_waitcnt vmcnt(0)\n{lab}c:")
            check(32, f"{lab}ok")
            if slp: k(f"s_sleep {slp}")
            reissue(32)
            k(f"""s_sub_u32 s72, s72, 1
s_cmp_lg_u32 s72, 0
s_cbranch_scc1 {lab}poll
{lab}ok:""")
        else:
            k("s_waitcnt vmcnt(0)")
            check(32, f"{lab}ok")
            for i in range(8): k(f"v_mov_b32 v{40+i}, v{32+i}")
            reissue(32)
            k(f"s_sleep {dbl}")
            reissue(40)
            k(f"{lab}poll:\ns_waitcnt vmcnt(4)")
            check(32, f"{lab}ok")
            reissue(32)
            k("s_waitcnt vmcnt(4)")
            check(40, f"{lab}okb")
            reissue(40)
            k(f"""s_sub_u32 s72, s72, 1
s_cmp_lg_u32 s72, 0
s_cbranch_scc1 {lab}poll
{lab}okb:
s_waitcnt vmcnt(0)""" if False else f"""s_sub_u32 s72, s72, 1
s_cmp_lg_u32 s72, 0
s_cbranch_scc1 {lab}poll
{lab}okb:""")
            return True
        return False

    stamp("start")
    if probe: k("s_memrealtime s[96:97]")
    k(f"""s_cmp_ge_u32 s2, 256
s_cbranch_scc1 L_end
s_load_dwordx16 s[4:19], s[0:1], 0
s_load_dwordx4 s[20:23], s[0:1], 64
s_load_dwordx2 s[24:25], s[0:1], 80
s_and_b32 s26, s2, 7
s_lshr_b32 s27, s2, 3
s_xor_b32 s27, s27, {rxor}
s_lshr_b32 s28, s27, 2
s_and_b32 s29, s27, 3
s_lshl_b32 s30, s26, 2
s_add_u32 s30, s30, s29
s_lshl_b32 s32, s28, 3
s_add_u32 s32, s32, s26
s_mov_b32 s34, 0x05040100
s_mov_b32 s35, 0x07060302
s_movk_i32 {SM}, {tagmask}
s_movk_i32 s52, 0xff
v_and_b32 {VL}, 63, v0
v_mov_b32 {VZ}, 0
v_lshrrev_b32 v1, 6, v0
v_lshlrev_b32 v2, 2, v0
v_readfirstlane_b32 s31, v1
v_cmp_gt_u32 vcc, {L_ZEND//4}, v0
s_and_saveexec_b64 s[70:71], vcc
ds_write_b32 v2, {VZ}
s_mov_b64 exec, s[70:71]
s_lshl_b32 s74, s28, 24
s_lshl_b32 s75, s26, 21
s_add_u32 s74, s74, s75
s_add_u32 s74, s74, {6144*256}
s_and_b32 s33, s31, 7
v_lshrrev_b32 v108, 4, {VL}
v_and_b32 v111, 7, {VL}
v_lshlrev_b32 v111, 4, v111
v_bfe_u32 v112, {VL}, 3, 1
v_lshlrev_b32 v112, 3, v112
v_lshl_add_u32 v112, v108, 4, v112
v_lshlrev_b32 v120, 4, {VL}
s_and_b32 s75, s33, 3
s_lshl_b32 s75, s75, 10
s_lshr_b32 s76, s33, 2
s_lshl_b32 s76, s76, 16
s_add_u32 s75, s75, s76
s_lshl_b32 s76, s29, 17
s_add_u32 s78, s75, s76
s_mul_i32 s53, s33, {rotw}
s_add_u32 s53, s53, s27
s_and_b32 s53, s53, {15 if rot else 0}
s_lshl_b32 s53, s53, 12
s_mov_b32 s54, 0xffff
s_mul_i32 s50, s28, {qrot}
s_add_u32 s50, s50, s26
s_and_b32 s50, s50, 7
s_xor_b32 s48, s28, {qx}
s_xor_b32 s49, s28, {ox}
s_nop 0""")
    if ffnmap == "old":
        k("""s_lshr_b32 s64, s28, 1
s_lshl_b32 s64, s64, 3
s_add_u32 s64, s64, s26
s_and_b32 s65, s28, 1
s_add_u32 s65, s65, 1
s_cmp_ge_u32 s64, 28
s_cselect_b32 s65, 0, s65
s_add_u32 s51, s28, 1""")
    else:
        k(f"""s_lshr_b32 s64, s26, 1
s_mul_i32 s64, s64, 7
s_xor_b32 s51, s28, {fx}
s_add_u32 s64, s64, s51
s_cmp_eq_u32 s51, 7
s_cselect_b32 s65, 0, 3
s_and_b32 s51, s26, 1
s_cmp_eq_u32 s51, {0 if ffnmap == "even" else 1}
s_cselect_b32 s65, s65, 0
s_mov_b32 s51, s28""")
    k("s_waitcnt lgkmcnt(0)")
    if "noffn" in abl: k("s_mov_b32 s65, 0")
    stamp("pro")
    k("s_cmp_lt_u32 s31, 8\ns_cbranch_scc1 L_kwave")
    k("s_setprio 3")
    srd(36, 4, None, 8192)
    k(f"""s_lshl_b32 s75, s33, 10
buffer_load_dwordx4 v[96:99], v120, {SX}, s75 offen
s_cmp_eq_u32 s33, 0
s_cbranch_scc1 L_setq
s_cmp_lg_u32 s33, 4
s_cbranch_scc1 L_nq1
s_bitcmp0_b32 s65, 0
s_cbranch_scc1 L_nopf""")
    srd(44, 16, None, 512 * 3584)
    k(f"""s_movk_i32 s77, 3584
s_mov_b32 s79, {57*3584}
s_mul_i32 s75, s29, {128*3584}
s_lshl_b32 s76, s64, 7
s_add_u32 s75, s75, s76
s_branch L_tload
L_setq:""")
    srd(44, 10, None, 4 << 20)
    k(f"""s_mov_b32 s76, {WS_E}
s_load_dword s68, s[24:25], s76
s_movk_i32 s77, 0x2000
s_mov_b32 s79, {57*8192}
s_lshl_b32 s75, s29, 20
s_lshl_b32 s76, s50, 10
s_add_u32 s75, s75, s76
s_lshl_b32 s76, s48, 7
s_add_u32 s75, s75, s76
L_tload:
v_mul_lo_u32 v121, v112, s77
v_add_u32 v121, v121, v111""")
    for ub in range(2):
        for t in range(8):
            r = 32 * ub + 4 * t
            if "notile" not in abl: k(f"buffer_load_dwordx4 v[{r}:{r+3}], v121, {SWA}, s75 offen{wfl}")
            k("s_add_u32 s75, s75, s77" if t < 7 else "s_add_u32 s75, s75, s79")
    k(f"""s_barrier
s_cmp_lg_u32 s33, 0
s_cbranch_scc1 L_notag
s_waitcnt lgkmcnt(0)
s_add_u32 {TA}, {TA}, 1
s_mul_i32 {TB}, {TA}, 0x9e3779b1
s_xor_b32 {TB}, {TB}, 0x5bd1e995
v_mov_b32 v124, {TA}
v_mov_b32 v125, {TB}
ds_write_b64 {VZ}, v[124:125] offset:{L_TAG}
L_notag:
s_waitcnt vmcnt({0 if "notile" in abl else 16})
s_branch L_ln""")
    k("L_nq1:")
    k(f"""s_cmp_lt_u32 s33, 6
s_cbranch_scc1 L_nopf
s_getpc_b64 s[80:81]
L_pc:
s_sub_u32 s80, s80, L_pc-{NAME}_kernel
s_subb_u32 s81, s81, 0
s_mov_b32 s82, L_codeend-{NAME}_kernel
s_mov_b32 s83, 0x20000
s_lshl_b32 s75, s29, 1
s_add_u32 s75, s75, s33
s_sub_u32 s75, s75, 6
s_lshl_b32 s75, s75, 11
buffer_load_dwordx4 v[0:3], v120, s[80:83], s75 offen
buffer_load_dwordx4 v[0:3], v120, s[80:83], s75 offen offset:1024
s_barrier
s_waitcnt vmcnt(2)
s_branch L_ln
L_nopf:
s_barrier
s_waitcnt vmcnt(0)
s_branch L_ln""")

    k.flush()
    k("L_kwave:")
    srd(40, 6, "s74", 524288)
    k(f"""v_bfe_u32 v109, {VL}, 2, 2
v_and_b32 v110, 3, {VL}
v_lshlrev_b32 v121, 8, v109
v_lshl_add_u32 v121, v108, 6, v121
v_lshl_add_u32 v121, v110, 4, v121
s_movk_i32 s77, 0x1000""")
    for t in range(16):
        if t == kfirst:
            k("s_barrier"); stamp("bar1")
        k(f"s_add_u32 s55, s78, s53\nbuffer_load_dwordx4 v[{4*t}:{4*t+3}], v121, {SKV}, s55 offen{kvflag}\ns_add_u32 s53, s53, s77\ns_and_b32 s53, s53, s54")
    stamp("kissued")
    srd(56, 24, None, WS_SIZE)
    srd(36, 4, None, 8192)
    srd(60, 20, None, 8192)
    k(f"""v_lshlrev_b32 v113, 8, v110
v_lshl_add_u32 v113, v108, 6, v113
v_lshl_add_u32 v113, v109, 4, v113
v_lshlrev_b32 v114, 7, v110
v_lshl_add_u32 v114, v108, 5, v114
v_lshl_add_u32 v114, v109, 3, v114
s_lshl_b32 s76, s33, 9
v_add_u32 v114, s76, v114
v_bfe_u32 v116, {VL}, 2, 3
v_lshlrev_b32 v116, 5, v116
v_lshl_add_u32 v116, v110, 2, v116
s_lshl_b32 s76, s33, 5
v_lshlrev_b32 v117, 2, {VL}
v_add_u32 v117, s76, v117
s_lshl_b32 s76, s33, 2
v_mov_b32 v123, s76
v_mov_b32 v122, 0""")
    lds_wait(L_CNT_XN, 8)
    gettags()
    k(f"""s_cmp_ge_u32 s33, {3 if direct else 2}
s_cbranch_scc1 L_nog
s_lshl_b32 s84, s26, 12
s_cmp_eq_u32 s33, 1
s_cbranch_scc1 L_gh
s_and_b32 s76, s27, {hrep-1}
s_lshl_b32 s76, s76, 7
s_add_u32 s79, s84, s76
s_add_u32 s79, s79, {WS_HQ}
s_lshl_b32 s75, s28, 14
s_lshl_b32 s76, s26, 11
s_add_u32 s75, s75, s76
s_mov_b32 s66, 131072
s_mov_b32 s67, 0xff800000
s_movk_i32 s77, {L_Q}
v_mov_b32 v122, {L_F_Q}
s_branch L_g
L_gh:
s_bitcmp0_b32 s65, 1
s_cbranch_scc1 L_nog
s_lshl_b32 s76, s28, 9
s_add_u32 s79, s84, s76
s_add_u32 s79, s79, {WS_HH}
s_lshl_b32 s75, s64, 13
s_add_u32 s75, s75, {WS_HP}
s_movk_i32 s66, 0x800
s_mov_b32 s67, 0
s_movk_i32 s77, {L_HN}
v_mov_b32 v122, {L_F_HN}
L_g:
v_lshlrev_b32 v121, 7, v108
v_add3_u32 v121, v121, v111, s77
v_bfe_u32 v118, {VL}, 3, 1
v_lshl_add_u32 v121, v118, 3, v121
s_mov_b32 s72, {SPIN}""")
    if "noq" in abl:
        k(f"v_mov_b32 v118, 1\nds_write_b32 {VZ}, v118 offset:{L_MODE}\ns_branch L_gskip")
    if direct:
        if direct > 1: k("s_waitcnt vmcnt(0)")
        k("s_cmp_lg_u32 s33, 2\ns_cbranch_scc1 L_nomode")
    k(f"""s_add_u32 s79, s84, {WS_HQ}
v_and_b32 v118, 31, {VL}
v_lshlrev_b32 v118, 7, v118
L_fpoll:
buffer_load_dword v64, v118, {SWS}, s79 offen sc1
s_waitcnt vmcnt(0)
v_xor_b32 v65, {TB}, v64
v_cmp_lt_u32 vcc, 15, v65
v_readfirstlane_b32 s76, v64
s_mov_b32 s70, 2
s_cbranch_vccz L_fok
s_sub_u32 s72, s72, 1
s_cmp_lg_u32 s72, 0
s_cbranch_scc1 L_fpoll
s_branch L_fw
L_fok:
v_cmp_ne_u32 vcc, s76, v64
s_cmp_eq_u64 vcc, 0
s_cselect_b32 s70, 1, 2
L_fw:
v_mov_b32 v118, s70
ds_write_b32 {VZ}, v118 offset:{L_MODE}
s_branch L_nog
L_nomode:""")
    stamp("hint")
    if "nogather" in abl: k("s_branch L_gskip")
    k(f"""s_mov_b32 s72, {SPIN}
L_qpoll:
s_mov_b32 s76, s75""")
    for ks in range(4):
        k(f"""buffer_load_dwordx4 v[{64+8*ks}:{64+8*ks+3}], v120, {SWS}, s76 offen sc1
buffer_load_dwordx4 v[{64+8*ks+4}:{64+8*ks+7}], v120, {SWS}, s76 offen offset:1024 sc1
s_add_u32 s76, s76, s66""")
    k("s_waitcnt vmcnt(0)")
    tagacc(range(64, 96), "v96", "v97", "v98")
    k(f"""v_cmp_ne_u32 vcc, 0, v96
s_cbranch_vccz L_qok
s_sub_u32 s72, s72, 1
s_cmp_lg_u32 s72, 0
s_cbranch_scc1 L_qpoll
L_qok:""")
    for i in range(32):
        k(f"v_and_b32 v{64+i}, {~tagmask & 0xffffffff:#x}, v{64+i}")
    for i in range(8):
        k(f"v_add_f32 v{64+i}, v{64+i}, v{72+i}\nv_add_f32 v{80+i}, v{80+i}, v{88+i}")
    for i in range(8):
        k(f"v_add_f32 v{64+i}, v{64+i}, v{80+i}")
    for i in range(8):
        k(f"v_max_f32 v{64+i}, s67, v{64+i}")
    for i in range(4):
        k(f"v_cvt_pk_bf16_f32 v{96+i}, v{64+2*i}, v{65+2*i}")
    k(f"""ds_write_b64 v121, v[96:97]
ds_write_b64 v121, v[98:99] offset:512""")
    k("L_gskip:")
    lds_inc(0, vaddr="v122")
    k("L_nog:")
    lds_wait(L_F_Q, 1)
    k(f"ds_read_b128 v[96:99], v113 offset:{L_Q}\ns_waitcnt vmcnt(0) lgkmcnt(0)")
    if qrot: k("s_mov_b32 s67, 1")
    stamp("qready")
    def Dreg(t): return 100 if t == 0 else 4 * (t - 1)
    def qk_step(t, i):
        D = Dreg(t); tb = t >> 2; R = 104 + (t & 3)
        qs = [q for q in range(4) if q != tb]
        q = qs[i]; n = (4 * (tb - q)) % 16
        src1 = f"v{D+tb}" if i == 0 else f"v{R}"
        k(f"v_add_f32_dpp v{R}, v{D+q}, {src1} row_ror:{n} row_mask:0xf bank_mask:{1 << tb:#x}")
    for t in range(16 + 5):
        if t < 16:
            mfma(Dreg(t), 4 * t, 96, None)
        for i in range(3):
            tt = t - 3 - i
            if 0 <= tt < 16: qk_step(tt, i)
    k(f"""s_mov_b32 s76, {SCALE:#x}
s_mov_b32 s77, {LOG2E:#x}
v_cvt_pk_bf16_f32 v0, v104, v105
v_cvt_pk_bf16_f32 v1, v106, v107
v_lshlrev_b32 v2, 16, v0
v_and_b32 v3, 0xffff0000, v0
v_lshlrev_b32 v4, 16, v1
v_and_b32 v5, 0xffff0000, v1
v_mul_f32 v2, s76, v2
v_mul_f32 v3, s76, v3
v_mul_f32 v4, s76, v4
v_mul_f32 v5, s76, v5
v_cvt_pk_bf16_f32 v0, v2, v3
v_cvt_pk_bf16_f32 v1, v4, v5
v_lshlrev_b32 v2, 16, v0
v_and_b32 v3, 0xffff0000, v0
v_lshlrev_b32 v4, 16, v1
v_and_b32 v5, 0xffff0000, v1
v_max3_f32 v6, v2, v3, v4
v_max_f32 v6, v6, v5""")
    row_reduce("v_max_f32", "v6", (4, 8))
    xrow_reduce("v_max_f32", "v6", "v7")
    k(f"""s_mov_b64 exec, 0xf
ds_write_b32 v117, v6 offset:{L_STAT}
s_mov_b64 exec, -1""")
    lds_inc(L_CNT_K)
    lds_wait(L_CNT_K, 8)
    k(f"ds_read_b32 v6, v116 offset:{L_STAT}\nds_read_b32 v118, {VZ} offset:{L_MODE}\ns_waitcnt lgkmcnt(0)\nv_readfirstlane_b32 s67, v118")
    row_reduce("v_max_f32", "v6", (4, 8))
    xrow_reduce("v_max_f32", "v6", "v7", (16,))
    for i in range(4): k(f"v_sub_f32 v{2+i}, v{2+i}, v6")
    for i in range(4): k(f"v_mul_f32 v{2+i}, s77, v{2+i}")
    for i in range(4): k(f"v_exp_f32 v{2+i}, v{2+i}")
    k(f"""v_cvt_pk_bf16_f32 v0, v2, v3
v_cvt_pk_bf16_f32 v1, v4, v5
ds_write_b64 v114, v[0:1] offset:{L_P}
v_add_f32 v8, v2, v3
v_add_f32 v9, v4, v5
v_add_f32 v8, v8, v9""")
    row_reduce("v_add_f32", "v8", (4, 8))
    xrow_reduce("v_add_f32", "v8", "v7")
    k(f"""v_mov_b32 v11, 1
s_mov_b64 exec, 0xf
ds_write_b32 v117, v8 offset:{L_STAT+16}
s_mov_b64 exec, -1
s_waitcnt lgkmcnt(0)
s_mov_b64 exec, 1
ds_write_b32 v123, v11 offset:{L_F_P}
ds_add_u32 {VZ}, v11 offset:{L_CNT_L}
s_mov_b64 exec, -1""")
    stamp("qkdone")
    if "notail" in abl:
        stamp_flush(); k("s_endpgm"); k.flush()
    k("s_cmp_lg_u32 s33, 6\ns_cbranch_scc1 L_nostat")
    lds_wait(L_CNT_L, 8)
    k(f"""ds_read_b32 v8, v116 offset:{L_STAT+16}
v_mov_b32 v7, {TA}
v_mov_b32 v9, {TB}
s_lshl_b32 s76, s32, 9
s_add_u32 s76, s76, {WS_ST}
s_lshl_b32 s75, s29, 4
s_add_u32 s76, s76, s75
v_lshlrev_b32 v10, 7, {VL}
s_waitcnt lgkmcnt(0)""")
    row_reduce("v_add_f32", "v8", (4, 8))
    xrow_reduce("v_add_f32", "v8", "v11", (16,))
    k(f"""s_mov_b64 exec, 0xf
buffer_store_dwordx4 v[6:9], v10, {SWS}, s76 offen sc1
s_mov_b64 exec, -1""")
    k("L_nostat:")
    k("s_cmp_lg_u32 s33, 7\ns_cbranch_scc1 L_nofin")
    k(f"""v_lshrrev_b32 v108, 3, {VL}
v_lshrrev_b32 v118, 1, v111
v_lshl_add_u32 v110, v108, 11, v118
v_lshl_add_u32 v112, v108, 14, v111
s_lshl_b32 s87, s28, 16
s_lshl_b32 s76, s30, 6
s_add_u32 s87, s87, s76
s_add_u32 s87, s87, {WS_OA}
s_lshl_b32 s84, s28, 11
s_lshl_b32 s76, s26, 8
s_add_u32 s84, s84, s76
s_lshr_b32 s76, s29, 1
s_lshl_b32 s76, s76, 7
s_add_u32 s84, s84, s76
s_and_b32 s76, s29, 1
s_lshl_b32 s76, s76, 3
s_add_u32 s84, s84, s76
s_add_u32 s84, s84, {WS_OB}
s_lshl_b32 s88, s28, 10
s_lshl_b32 s76, s26, 7
s_add_u32 s88, s88, s76
s_lshl_b32 s76, s29, 2
s_add_u32 s88, s88, s76
buffer_load_dword v20, v111, {SX}, s88 offen""")
    k("L_nofin:")
    k("v_and_b32 v123, 12, v123")
    lds_wait(L_F_D, 1, vaddr="v123")
    k(f"""s_lshl_b32 s82, s33, 3
s_add_u32 s82, s82, s26
s_lshl_b32 s89, s82, 13
s_lshl_b32 s82, s82, 9
s_lshl_b32 s83, s29, 7
s_add_u32 s82, s82, s83
s_add_u32 s82, s82, {WS_ST}
s_lshl_b32 s83, s29, 9
s_add_u32 s89, s89, s83
s_add_u32 s89, s89, {WS_OX}
s_add_u32 s90, s89, 4096
s_mov_b32 s72, {SPIN}
L_stpoll:
s_load_dwordx16 s[4:19], s[24:25], s82 glc
s_waitcnt lgkmcnt(0)
s_mov_b32 s73, 0""")
    for p in range(4):
        k(f"""s_xor_b32 s83, s{4+4*p+1}, {TA}
s_or_b32 s73, s73, s83
s_xor_b32 s83, s{4+4*p+3}, {TB}
s_or_b32 s73, s73, s83""")
    k(f"""s_cmp_eq_u32 s73, 0
s_cbranch_scc1 L_stok
s_sleep 12
s_sub_u32 s72, s72, 1
s_cmp_lg_u32 s72, 0
s_cbranch_scc1 L_stpoll
L_stok:
v_mov_b32 v56, s4
v_max_f32 v56, s8, v56
v_max_f32 v56, s12, v56
v_max_f32 v56, s16, v56""")
    for p in range(4): k(f"v_sub_f32 v{52+p}, s{4+4*p}, v56")
    for p in range(4): k(f"v_mul_f32 v{52+p}, s77, v{52+p}")
    for p in range(4): k(f"v_exp_f32 v{52+p}, v{52+p}")
    k(f"""v_mul_f32 v56, s6, v52
v_fmac_f32 v56, s10, v53
v_fmac_f32 v56, s14, v54
v_fmac_f32 v56, s18, v55
v_rcp_f32 v56, v56""")
    for p in range(4): k(f"v_mul_f32 v{52+p}, v{52+p}, v56")
    k(f"""s_lshl_b32 s76, s33, 8
v_lshlrev_b32 v62, 2, {VL}
v_add_u32 v62, s76, v62
v_lshlrev_b32 v61, 3, {VL}
s_mov_b32 s55, 0xffffff00
s_lshl_b32 s78, s32, 2
s_add_u32 s78, s78, s29
s_lshl_b32 s78, s78, 11
s_add_u32 s78, s78, {WS_OX}""")
    ldx = lambda m, B: k(f"buffer_load_dwordx2 v[{B+2*m}:{B+1+2*m}], v61, {SWS}, s{89 + m//2} offen offset:{2048*(m%2)} sc1")
    if pre:
        lds_wait(L_CNT_VI, pre)
        for m in range(4): ldx(m, 32)
        if obpre:
            k(f"""s_cmp_lg_u32 s33, 7
s_cbranch_scc1 L_noob
v_and_b32 v70, {SM8}, {VT}
v_and_b32 v71, {SM8}, {VT}""")
            for m in range(4):
                if m == 3: k("s_mov_b32 exec_hi, 0")
                k(f"s_add_u32 s85, s84, {m*8*16384}\nbuffer_load_dwordx2 v[{64+2*m}:{65+2*m}], v112, {SWS}, s85 offen sc1")
            k("s_mov_b64 exec, -1\nL_noob:")
    k("s_cmp_eq_u32 s67, 1")
    stamp("kready")
    k("s_barrier")
    stamp("bar2")
    k(f"""ds_read_b32 v96, v62 offset:{L_OP}
ds_read_b32 v97, v62 offset:{L_OP+2048}
ds_read_b32 v98, v62 offset:{L_OP+4096}
ds_read_b32 v99, v62 offset:{L_OP+6144}
s_waitcnt lgkmcnt(2)
v_add_f32 v96, v96, v97
s_waitcnt lgkmcnt(0)
v_add_f32 v98, v98, v99
v_add_f32 v96, v96, v98""")
    settag(96)
    k(f"""s_cbranch_scc1 L_oxpl
buffer_store_dword v96, v62, {SWS}, s78 offen sc1
s_branch L_oxst
L_oxpl:
buffer_store_dword v96, v62, {SWS}, s78 offen
L_oxst:""")
    stamp("oxst")
    if stamps and "poll1" in stamps:
        k("s_waitcnt vmcnt(0)"); stamp("poll1")
    if not pre:
        for m in range(4): ldx(m, 32)
    def oxcomb(B):
        for i in range(8): k(f"v_and_b32 v{B+i}, s55, v{B+i}")
        k(f"""v_mul_f32 v58, v{B}, v52
v_mul_f32 v59, v{B+1}, v52
v_mul_f32 v56, v{B+4}, v54
v_mul_f32 v57, v{B+5}, v54
v_fmac_f32 v58, v{B+2}, v53
v_fmac_f32 v59, v{B+3}, v53
v_fmac_f32 v56, v{B+6}, v55
v_fmac_f32 v57, v{B+7}, v55""")
    if poll4("L_ox", ldx, dbl=dblx, w1=bool(pre)):
        oxcomb(40)
        k("s_branch L_oxj\nL_oxok:")
    stamp("oxok")
    oxcomb(32)
    k(f"""L_oxj:
v_add_f32 v58, v58, v56
v_add_f32 v59, v59, v57
v_cvt_pk_bf16_f32 v58, v58, v59
ds_write_b32 v62, v58 offset:{L_O16}
s_waitcnt lgkmcnt(0)
s_barrier""")
    stamp("bar3")
    k("s_cmp_eq_u32 s33, 7\ns_cbranch_scc1 L_final")
    stamp("kend")
    stamp_flush()
    k("s_endpgm")
    k.flush()
    k("L_final:")
    def gather(vaddr, sbase, step, lab, d0, d1, partial, dbl):
        k("s_waitcnt vmcnt(0)")
        if partial:
            k(f"v_and_b32 v38, {SM8}, {VT}\nv_and_b32 v39, {SM8}, {VT}")
        for m in range(4): k(f"s_add_u32 s{80+m}, {sbase}, {m*step}")
        ld = lambda m, B: k(f"buffer_load_dwordx2 v[{B+2*m}:{B+1+2*m}], {vaddr}, {SWS}, s{80+m} offen sc1")
        if partial and obpre:
            for i in range(8): k(f"v_mov_b32 v{32+i}, v{64+i}")
        else:
            if not partial and oadelay: k(f"s_sleep {oadelay}")
            for m in range(4):
                if partial and m == 3: k("s_mov_b32 exec_hi, 0")
                ld(m, 32)
            if partial: k("s_mov_b64 exec, -1")
        def comb(B):
            for i in range(8): k(f"v_and_b32 v{B+i}, s55, v{B+i}")
            k(f"""v_add_f32 v56, v{B}, v{B+2}
v_add_f32 v57, v{B+1}, v{B+3}
v_add_f32 v58, v{B+4}, v{B+6}
v_add_f32 v59, v{B+5}, v{B+7}""")
        if poll4(lab, ld, slp=oasleep, dbl=dbl, partial=partial):
            comb(40)
            k(f"s_branch {lab}j\n{lab}ok:")
        comb(32)
        k(f"""{lab}j:
v_add_f32 {d0}, v56, v58
v_add_f32 {d1}, v57, v59
v_add_f32_dpp {d0}, {d0}, {d0} row_ror:8 row_mask:0xf bank_mask:0xf
v_add_f32_dpp {d1}, {d1}, {d1} row_ror:8 row_mask:0xf bank_mask:0xf""")
        for w in (16, 32):
            k(f"""v_mov_b32 v48, {d0}
v_mov_b32 v49, {d1}
v_permlane{w}_swap_b32 {d0}, v48
v_permlane{w}_swap_b32 {d1}, v49
v_add_f32 {d0}, {d0}, v48
v_add_f32 {d1}, {d1}, v49""")
        k(f"""v_cvt_pk_bf16_f32 v48, {d0}, {d1}
v_lshlrev_b32 {d0}, 16, v48
v_and_b32 {d1}, 0xffff0000, v48""")
    if "noffn" not in abl: gather("v112", "s84", 8 * 16384, "L_ob", "v22", "v23", True, 0)
    k("v_and_b32 v21, 0xffff0000, v20\nv_lshlrev_b32 v20, 16, v20")
    gather("v110", "s87", 16384, "L_oa", "v24", "v25", False, dbla)
    k(f"""v_add_f32 v20, v20, v24
v_add_f32 v21, v21, v25
v_cvt_pk_bf16_f32 v16, v20, v21
v_lshlrev_b32 v20, 16, v16
v_and_b32 v21, 0xffff0000, v16
v_add_f32 v20, v20, v22
v_add_f32 v21, v21, v23
v_cvt_pk_bf16_f32 v20, v20, v21
s_mov_b64 exec, 0xff
buffer_store_dword v20, v111, {SOUT}, s88 offen
s_mov_b64 exec, -1""")
    stamp("kend")
    stamp_flush()
    k(f"""s_cmp_lg_u32 s2, 0
s_cbranch_scc1 L_end
s_mov_b32 s76, {WS_E}
s_mov_b64 exec, 1
buffer_store_dword {VT}, {VZ}, {SWS}, s76 offen""")
    if probe:
        k(f"""s_memrealtime s[98:99]
s_waitcnt lgkmcnt(0)
s_sub_u32 s76, s98, s96
s_mul_i32 s76, s76, {probe}
L_probe:
s_memrealtime s[100:101]
s_waitcnt lgkmcnt(0)
s_sub_u32 s77, s100, s98
s_cmp_lt_u32 s77, s76
s_cbranch_scc1 L_probe""")
    k("s_endpgm")

    k.flush()
    k("L_ln:")
    stamp("xarr")
    for i in range(4):
        k(f"v_lshlrev_b32 v{100+2*i}, 16, v{96+i}\nv_and_b32 v{101+2*i}, 0xffff0000, v{96+i}")
    k("""v_add_f32 v96, v100, v101
v_add_f32 v97, v102, v103
v_add_f32 v98, v104, v105
v_add_f32 v99, v106, v107
v_add_f32 v96, v96, v97
v_add_f32 v98, v98, v99
v_add_f32 v96, v96, v98""")
    row_reduce("v_add_f32", "v96")
    xrow_reduce("v_add_f32", "v96", "v97")
    k("v_mul_f32 v96, 0x3b000000, v96")
    k("v_sub_f32 v98, v100, v96\nv_mul_f32 v97, v98, v98")
    for i in range(1, 8):
        k(f"v_sub_f32 v98, v{100+i}, v96\nv_fmac_f32 v97, v98, v98")
    row_reduce("v_add_f32", "v97")
    xrow_reduce("v_add_f32", "v97", "v98")
    k("v_mul_f32 v97, 0x3b000000, v97")
    rnd("v96", "v96"); rnd("v97", "v97")
    k("v_add_f32 v97, 0x3727c5ac, v97")
    rnd("v97", "v97")
    k("v_sqrt_f32 v97, v97")
    rnd("v97", "v97")
    k("v_rcp_f32 v98, v97")
    for i in range(0, 8, 2):
        a, b2 = 100 + i, 101 + i
        k(f"""v_sub_f32 v{a}, v{a}, v96
v_sub_f32 v{b2}, v{b2}, v96
v_cvt_pk_bf16_f32 v99, v{a}, v{b2}
v_lshlrev_b32 v{a}, 16, v99
v_and_b32 v{b2}, 0xffff0000, v99""")
    for i in range(8):
        a = 100 + i
        k(f"""v_mul_f32 v99, v{a}, v98
v_fma_f32 v{a}, -v99, v97, v{a}
v_fma_f32 v{a}, v{a}, v98, v99""")
    for i in range(4):
        k(f"v_cvt_pk_bf16_f32 v{96+i}, v{100+2*i}, v{101+2*i}")
    k(f"""s_lshl_b32 s75, s33, 10
v_add_u32 v122, s75, v120
ds_write_b128 v122, v[96:99] offset:{L_XN}""")
    lds_inc(L_CNT_XN)
    stamp("ln")
    srd(56, 24, None, WS_SIZE)
    srd(40, 8, "s74", 524288)
    k("v_mov_b32 v119, 0")
    k(f"""s_mov_b32 s66, 0
s_cmp_eq_u32 s33, 0
s_cbranch_scc1 L_tq
s_cmp_lt_u32 s33, 3
s_cbranch_scc1 L_f2l
s_cmp_lg_u32 s33, 4
s_cbranch_scc1 L_vload
s_bitcmp0_b32 s65, 0
s_cbranch_scc1 L_vload""")
    k(f"""v_lshrrev_b32 v121, 3, {VL}
v_lshlrev_b32 v123, 7, v121
v_lshlrev_b32 v121, 8, v121
v_lshrrev_b32 v122, 2, v111
v_add_u32 v123, v123, v122
s_lshl_b32 s75, s64, 2
s_add_u32 s75, s75, s29
s_lshl_b32 s75, s75, 11
s_add_u32 s75, s75, {WS_HP}
s_lshl_b32 s76, s26, 12
s_lshl_b32 s77, s51, 9
s_add_u32 s76, s76, s77
s_lshl_b32 s77, s29, 5
s_add_u32 s76, s76, s77
s_add_u32 s76, s76, {WS_HH}
s_movk_i32 s70, {0 if direct else 0xff}
s_branch L_tile
L_tq:
v_lshrrev_b32 v121, 3, {VL}
v_lshlrev_b32 v121, 14, v121
v_lshlrev_b32 v123, 7, {VL}
s_lshl_b32 s75, s29, 17
s_lshl_b32 s76, s50, 11
s_add_u32 s75, s75, s76
s_lshl_b32 s77, s48, 8
s_add_u32 s75, s75, s77
s_lshl_b32 s76, s50, 12
s_lshl_b32 s77, s27, 7
s_add_u32 s76, s76, s77
s_add_u32 s76, s76, {WS_HQ}
s_mov_b32 s70, 1
L_tile:
s_mov_b32 s71, 0
v_add_u32 v121, v111, v121""")
    arow_addr("v122", "v118", 10)
    k(f"""s_lshl_b32 s77, s29, 8
v_add_u32 v122, s77, v122""")
    lds_wait(L_CNT_XN, 8)
    k(f"""ds_read_b128 v[96:99], v122 offset:{L_XN}
ds_read_b128 v[100:103], v122 offset:{L_XN+128}""")
    gettags()
    k(f"""s_getreg_b32 s77, hwreg(HW_REG_XCC_ID)
s_and_b32 s77, s77, 15
s_andn2_b32 s79, {TB}, 15
s_or_b32 s77, s77, s79
v_mov_b32 v122, s77""")
    for ub in range(2):
        k(f"s_waitcnt vmcnt({8 - 8*ub})")
        for w in range(4):
            T = 104 + 8 * (w & 1)
            perms(T, 32 * ub, w)
            mfma(64 + 8 * w, 96 + 4 * ub, T, None if ub == 0 else 64 + 8 * w)
            mfma(68 + 8 * w, 96 + 4 * ub, T + 4, None if ub == 0 else 68 + 8 * w)
    for w in range(4):
        pairsum(96 + 2 * w, 97 + 2 * w, 64 + 8 * w, 68 + 8 * w, SM)
    k(f"""v_mov_b32 v119, v121
s_mov_b32 s94, s75
s_mov_b32 s66, {3 if opt else 0}
buffer_store_dwordx4 v[96:99], v121, {SWS}, s75 offen{"" if opt else " sc1"}
buffer_store_dwordx4 v[100:103], v121, {SWS}, s75 offen offset:128{"" if opt else " sc1"}
s_mov_b64 exec, s[70:71]
{"s_nop 0" if "nohint" in abl else f"buffer_store_dword v122, v123, {SWS}, s76 offen{hst}"}
s_mov_b64 exec, -1""")
    stamp("tpub")
    k("s_branch L_vload")
    k.flush()
    k("L_f2l:")
    k("s_bitcmp0_b32 s65, 1\ns_cbranch_scc1 L_vload")
    srd(44, 18, None, 1792 * 1024)
    k(f"""s_setprio 0
s_mov_b32 s66, 1
v_lshl_add_u32 v121, v112, 10, v111
s_lshl_b32 s75, s64, 16
s_lshl_b32 s76, s29, 8
s_add_u32 s75, s75, s76
s_sub_u32 s76, s33, 1
s_lshl_b32 s76, s76, 7
s_add_u32 s75, s75, s76
s_add_u32 s76, s75, 4096""")
    for t in range(8):
        k(f"buffer_load_dwordx4 v[{64+4*t}:{64+4*t+3}], v121, {SWA}, s{75 + t//4} offen offset:{(t%4)*1024}{wfl}")
    k("s_branch L_vload")
    k.flush()
    k("L_vload:")
    k(f"""s_setprio 0
s_movk_i32 s77, 0x1000""")
    for t in range(16):
        k(f"s_add_u32 s55, s78, s53\nbuffer_load_dwordx4 v[{4*t}:{4*t+3}], v120, {SKV}, s55 offen{kvflag}\ns_add_u32 s53, s53, s77\ns_and_b32 s53, s53, s54")
    k("s_cmp_lt_u32 s33, 4\ns_cbranch_scc1 L_novi")
    lds_inc(L_CNT_VI)
    k("L_novi:")
    stamp("vissued")
    k("""s_cmp_eq_u32 s66, 0
s_cbranch_scc1 L_noj
s_cmp_lg_u32 s66, 3
s_cbranch_scc1 L_f2w""")
    lds_wait(L_MODE, 1)
    k(f"""s_cmp_eq_u32 s73, 1
s_cbranch_scc1 L_noj
buffer_store_dwordx4 v[96:99], v119, {SWS}, s94 offen sc1
buffer_store_dwordx4 v[100:103], v119, {SWS}, s94 offen offset:128 sc1
s_branch L_noj
L_f2w:
s_waitcnt vmcnt(16)""")
    k("L_f2:")
    arow_addr("v122", "v118", 7)
    k(f"""v_lshrrev_b32 v121, 3, {VL}
v_lshlrev_b32 v121, 11, v121
v_and_b32 v123, 7, {VL}
v_lshl_add_u32 v121, v123, 4, v121
s_lshl_b32 s75, s64, 14
s_lshl_b32 s76, s29, 9
s_add_u32 s75, s75, s76
s_sub_u32 s76, s33, 1
s_lshl_b32 s76, s76, 8
s_add_u32 s75, s75, s76
s_add_u32 s75, s75, {WS_OB}""")
    lds_wait(L_F_HN, 1)
    k(f"ds_read_b128 v[112:115], v122 offset:{L_HN}")
    gettags()
    k("s_setprio 3")
    for w in range(4):
        G = 116 + 2 * (w & 1)
        perms(96, 64, w)
        mfma(104, 112, 96, None)
        mfma(108, 112, 100, None)
        pairsum(G, G + 1, 104, 108)
        if w & 1: k(f"buffer_store_dwordx4 v[116:119], v121, {SWS}, s75 offen offset:{128*(w>>1)} sc1")
    k("s_setprio 0")
    stamp("tpub")
    k("L_noj:")
    k(f"""v_lshrrev_b32 v108, 4, {VL}
v_and_b32 v110, 3, {VL}
v_bfe_u32 v109, {VL}, 2, 2
v_lshlrev_b32 v122, 7, v110
v_lshl_add_u32 v122, v108, 5, v122
s_lshl_b32 s75, s33, 9
s_add_u32 s75, s75, {L_P}
v_add_u32 v122, s75, v122
v_mov_b32 v123, {L_ZERO}""")
    for dl in range(4):
        k(f"v_cmp_eq_u32 vcc, {dl}, v109\nv_cndmask_b32 v{112+dl}, v123, v122, vcc")
    k(f"""s_lshl_b32 s75, s33, 2
v_mov_b32 v123, s75
s_and_b32 s75, s33, 3
s_lshl_b32 s76, s75, 2
v_mov_b32 v121, s76
s_lshl_b32 s75, s75, 11
v_add_u32 v120, s75, v120
v_lshlrev_b32 v122, 2, {VL}
v_add_u32 v122, s75, v122""")
    lds_wait(L_F_P, 1, vaddr="v123")
    for ub in range(2):
        for dl in range(4):
            r = 64 + 16 * ub + 4 * dl
            k(f"ds_read_b128 v[{r}:{r+3}], v{112+dl} offset:{16*ub}")
    k("s_cmp_ge_u32 s33, 4\ns_cbranch_scc1 L_g3")
    for i in range(8): k(f"v_mov_b32 v{96+i}, 0")
    k("s_branch L_pv\nL_g3:")
    lds_wait(L_F_D, 1, vaddr="v121")
    k(f"""ds_read_b128 v[96:99], v120 offset:{L_DX}
ds_read_b128 v[100:103], v120 offset:{L_DX+1024}""")
    srd(44, 12, None, 4 << 20)
    k(f"""v_bfe_u32 v116, {VL}, 3, 1
v_lshlrev_b32 v116, 6, v116
v_lshrrev_b32 v117, 4, {VL}
v_add_u32 v116, v116, v117
v_and_b32 v117, 7, {VL}
v_lshlrev_b32 v117, 4, v117
v_lshl_add_u32 v116, v116, 10, v117
s_lshl_b32 s75, s30, 17
s_lshl_b32 s76, s49, 7
s_add_u32 s75, s75, s76
s_bfe_u32 s76, s33, 0x10001
s_lshl_b32 s76, s76, 12
s_add_u32 s75, s75, s76
s_and_b32 s76, s33, 1
s_lshl_b32 s76, s76, 15
s_add_u32 s75, s75, s76
s_and_b32 s77, s33, 3
s_lshl_b32 s77, s77, 12
s_add_u32 m0, s77, {L_WT}""")
    lds_wait(L_CNT_VI, 4)
    for t in range(4):
        k(f"buffer_load_dwordx4 v116, {SWA}, {'s75' if 'nowo' not in abl else '0'} offen{wfl} lds\ns_add_u32 m0, m0, 0x400\ns_add_u32 s75, s75, 0x2000")
    lds_inc(L_CNT_VI)
    k(f"""L_pv:
s_waitcnt lgkmcnt(0)
s_cmp_ge_u32 s33, 4""")
    stamp("fdok")
    def vwait(n):
        lab = k.label("Lv")
        k(f"s_cbranch_scc1 {lab}\ns_waitcnt vmcnt({n})\n{lab}:\ns_waitcnt vmcnt({n+4})")
    vwait(8)
    for w in range(4):
        T = 104 + 8 * (w & 1)
        perms(T, 0, w)
        for hh in range(2):
            di = 2 * w + hh; x = di >> 2; dl = di & 3
            mfma(96 + 4 * x, 64 + 4 * dl, T + 4 * hh, 96 + 4 * x)
    gettags()
    arow_addr("v116", "v118", 8)
    k(f"""s_and_b32 s77, s33, 3
s_lshl_b32 s76, s77, 2
v_lshlrev_b32 v117, 4, {VL}
v_add_u32 v117, s76, v117
v_lshrrev_b32 v119, 3, {VL}
v_lshlrev_b32 v119, 16, v119
v_and_b32 v118, 7, {VL}
v_lshl_add_u32 v119, v118, 3, v119
s_lshl_b32 s86, s30, 11
s_lshl_b32 s76, s49, 8
s_add_u32 s86, s86, s76
s_lshl_b32 s76, s77, 6
s_add_u32 s86, s86, s76
s_add_u32 s86, s86, {WS_OA}
s_cmp_ge_u32 s33, 4""")
    for p in range(4):
        vwait(6 - 2 * p)
        if p == 3: stamp("varr")
        for w in range(4):
            k(f"v_perm_b32 v{8*w+p}, v{32+4*(2*p+1)+w}, v{32+4*(2*p)+w}, s34")
            k(f"v_perm_b32 v{8*w+4+p}, v{32+4*(2*p+1)+w}, v{32+4*(2*p)+w}, s35")
            if p == 3 and w >= 1:
                di = 2 * (w - 1)
                for d in (di, di + 1):
                    mfma(96 + 4 * (d >> 2), 80 + 4 * (d & 3), 4 * d, 96 + 4 * (d >> 2))
    for d in (6, 7):
        mfma(96 + 4 * (d >> 2), 80 + 4 * (d & 3), 4 * d, 96 + 4 * (d >> 2))
    k("s_cmp_ge_u32 s33, 4\ns_cbranch_scc1 L_g3b")
    k(f"""ds_write_b128 v120, v[96:99] offset:{L_DX}
ds_write_b128 v120, v[100:103] offset:{L_DX+1024}""")
    lds_inc(L_F_D, vaddr="v121")
    stamp("pvdone")
    stamp_flush()
    k("s_endpgm")
    k.flush()
    k("L_g3b:")
    for x in range(2):
        for h in range(4):
            k(f"ds_write_b32 v122, v{96+4*x+h} offset:{L_OP + h*512 + x*256}")
    k("s_waitcnt lgkmcnt(0)")
    stamp("pvdone")
    if "notail" in abl:
        stamp_flush(); k("s_endpgm"); k.flush()
    k("s_barrier")
    k("s_waitcnt vmcnt(0)")
    lds_inc(L_CNT_WO)
    lds_wait(L_CNT_WO, 4, slp=0)
    for n in range(16):
        k(f"ds_read_b32 v{n}, v117 offset:{L_WT + 1024*n}")
    for ub in range(2):
        k(f"s_waitcnt lgkmcnt({8 - 8*ub})")
        for p in range(4):
            k(f"v_perm_b32 v{16+8*ub+p}, v{8*ub+2*p+1}, v{8*ub+2*p}, s34")
            k(f"v_perm_b32 v{16+8*ub+4+p}, v{8*ub+2*p+1}, v{8*ub+2*p}, s35")
    stamp("woready")
    k(f"""s_barrier
ds_read_b128 v[96:99], v116 offset:{L_O16}
ds_read_b128 v[100:103], v116 offset:{L_O16+128}
s_waitcnt lgkmcnt(1)""")
    mfma(104, 96, 16, None); mfma(108, 96, 20, None)
    k("s_waitcnt lgkmcnt(0)")
    mfma(104, 100, 24, 104); mfma(108, 100, 28, 108)
    pairsum(112, 113, 104, 108)
    k(f"buffer_store_dwordx2 v[112:113], v119, {SWS}, s86 offen sc1")
    stamp("gend")
    stamp_flush()
    k("L_end:")
    k("s_endpgm")
    k("L_codeend:")

    T = []
    T.append('.section .rodata,"a"'); T.append(".p2align 6")
    T.append(f".amdhsa_kernel {NAME}_kernel")
    T.append("  .amdhsa_next_free_vgpr 128"); T.append("  .amdhsa_next_free_sgpr 102"); T.append("  .amdhsa_accum_offset 128")
    T.append("  .amdhsa_group_segment_fixed_size 0"); T.append("  .amdhsa_kernarg_size 88"); T.append("  .amdhsa_user_sgpr_count 2")
    T.append("  .amdhsa_user_sgpr_kernarg_segment_ptr 1"); T.append("  .amdhsa_system_sgpr_workgroup_id_x 1")
    T.append("  .amdhsa_float_denorm_mode_32 3")
    T.append(".end_amdhsa_kernel")
    open(fname, "w").write("\n".join(H) + "\n" + k.text() + "\n".join(T) + "\n")

SA = {"start": 0, "hint": 1, "qready": 2, "ln": 1, "tpub": 1, "vissued": 2}
SB = {"start": 0, "qkdone": 1, "kready": 2, "varr": 1, "pvdone": 2}
SC = {"start": 0, "bar2": 1, "kend": 2, "varr": 1, "pvdone": 2}
SE = {"start": 0, "bar3": 1, "kend": 2, "varr": 1, "pvdone": 2}
SD = {"start": 0, "kissued": 1, "qready": 2, "vissued": 1, "varr": 2}
SI = {"start": 0, "bar2": 1, "kend": 2, "woready": 1, "gend": 2}

SM_ = {"start": 0, "kissued": 1, "qkdone": 2, "vissued": 1, "pvdone": 2}
if __name__ == "__main__":
    gen("k28.s")
    gen("k28_d1_sc.s", stamps=SI, direct=1)
    gen("k28_d2_sc.s", stamps=SI, direct=2)
    gen("k28_d1_a0.s", stamps=SM_, direct=1)
    gen("k28_d1_a3.s", stamps=SM_, direct=1, abl=("notail", "nowo", "noffn"))
```

```python
import sys, argparse
from asmlib import Asm
NAME = "parallel_sum__sliding_block_cached__dense_activation_relu__decode"

WS_QP = 0x000000
WS_OX = 0x080000
WS_OA = 0x100000
WS_OB = 0x180000
WS_HP = 0x1F0000
WS_ST = 0x228000
WS_HQ = 0x230000
WS_HH = 0x238000
WS_E  = 0x240000
WS_SIZE = 0x241000
STAMP_OFF = 256 << 20
L_CNT_XN = 0; L_MODE = 4; L_F_Q = 8; L_F_HN = 12; L_CNT_K = 16; L_CNT_L = 20; L_TAG = 24; L_F_P = 32
L_ZERO = 64; L_F_D = 96; L_CNT_VI = 112; L_CNT_WO = 116; L_ZEND = 128
L_STAT = 128; L_Q = 1024; L_HN = 2048; L_P = 3072; L_XN = 7168; L_OP = 15360; L_DX = L_OP + 8192; L_O16 = L_DX + 8192; L_WT = L_O16 + 2048; L_END = L_WT + 16384

DOC = """; ---------------------------------------------------------------------------------------------
; word that the previous launch left in d_ws (used only to tell this launch's hand-offs from older ones).
; ---------------------------------------------------------------------------------------------"""
LOG2E = 0x3fb8aa3b
SCALE = 0x3db504f3
SPIN = 1 << 16

def gen(fname, stamps=None, kvflag=" nt", psleep=0, abl=(), kfirst=0, lst=" sc1", tagmask=0xf, rxor=0, qx=5, ox=7, qrot=0, ffnmap="old2", fx=0, probe=0, oasleep=0, dblx=0, dbla=4, pre=8, obpre=0, oadelay=0, wfl=None, hst=" sc1", strict=1, rot=1, rotw=2, opt=1, hrep=4, hsleep=4, direct=2):
    k = Asm()
    if wfl is None: wfl = kvflag
    H = []
    H.append(open("cdna_kernels/%s.s.ref" % NAME).read().split("; Override launch")[0].rstrip("\n"))
    H.append(f"; @launch grid=(256,1,1) block=(1024,1,1) lds={L_END}")
    H.append(DOC)
    H.append('.amdgcn_target "amdgcn-amd-amdhsa--gfx950"')
    H.append(".text"); H.append(f".globl {NAME}_kernel"); H.append(".p2align 8"); H.append(f".type {NAME}_kernel,@function")
    H.append(f"{NAME}_kernel:")

    VL = "v126"; VZ = "v127"; VT = "v124"
    TA, TB = "s68", "s69"
    SM = "s3"
    def srd(d, lo, off, size):
        if off is None:
            k(f"s_mov_b32 s{d}, s{lo}\ns_mov_b32 s{d+1}, s{lo+1}")
        else:
            k(f"s_add_u32 s{d}, s{lo}, {off}\ns_addc_u32 s{d+1}, s{lo+1}, 0")
        k(f"s_mov_b32 s{d+2}, {size}\ns_mov_b32 s{d+3}, 0x20000")
    SX, SKV, SWA, SWS, SOUT = [f"s[{a}:{a+3}]" for a in (36, 40, 44, 56, 60)]

    def stamp(name):
        if not stamps or name not in stamps: return
        sl = stamps[name]
        k(f"s_memrealtime s[{96+2*sl}:{97+2*sl}]")
    def stamp_flush():
        if not stamps: return
        k(f"""s_waitcnt lgkmcnt(0)
s_mov_b64 exec, 1
s_lshl_b32 s76, s2, 9
s_lshl_b32 s77, s31, 5
s_add_u32 s76, s76, s77
s_add_u32 s76, s76, {STAMP_OFF}
s_add_u32 s76, s24, s76
s_addc_u32 s77, s25, 0
v_mov_b32 v0, s96
v_mov_b32 v1, s97
v_mov_b32 v2, s98
v_mov_b32 v3, s99
v_mov_b32 v4, s100
v_mov_b32 v5, s101
global_store_dwordx4 {VZ}, v[0:3], s[76:77]
global_store_dwordx2 {VZ}, v[4:5], s[76:77] offset:16""")

    def lds_wait(addr, val, vaddr=VZ, vt="v125", slp=1):
        lp = k.label("Lw"); dn = k.label("Ld")
        k(f"s_mov_b32 s72, {SPIN}")
        k(f"{lp}:")
        k(f"""ds_read_b32 {vt}, {vaddr} offset:{addr}
s_waitcnt lgkmcnt(0)
v_readfirstlane_b32 s73, {vt}
s_cmp_ge_u32 s73, {val}
s_cbranch_scc1 {dn}
{"s_sleep 1" if slp else "s_nop 0"}
s_sub_u32 s72, s72, 1
s_cmp_lg_u32 s72, 0
s_cbranch_scc1 {lp}""")
        k(f"{dn}:")
    def lds_inc(addr, vaddr=VZ, vt="v125"):
        k(f"""s_waitcnt lgkmcnt(0)
v_mov_b32 {vt}, 1
s_mov_b64 exec, 1
ds_add_u32 {vaddr}, {vt} offset:{addr}
s_mov_b64 exec, -1""")
    def rnd(dst, src):
        k(f"v_cvt_pk_bf16_f32 {dst}, {src}, {src}\nv_lshlrev_b32 {dst}, 16, {dst}")
    def row_reduce(op, v, steps=(8, 4, 2, 1)):
        for n in steps:
            k(f"{op}_dpp {v}, {v}, {v} row_ror:{n} row_mask:0xf bank_mask:0xf")
    def xrow_reduce(op, v, t, which=(16, 32)):
        for w in which:
            k(f"v_mov_b32 {t}, {v}\nv_permlane{w}_swap_b32 {v}, {t}\n{op} {v}, {v}, {t}")
    def perms(T, W, w):
        for p in range(4):
            k(f"v_perm_b32 v{T+p}, v{W+4*(2*p+1)+w}, v{W+4*(2*p)+w}, s34")
        for p in range(4):
            k(f"v_perm_b32 v{T+4+p}, v{W+4*(2*p+1)+w}, v{W+4*(2*p)+w}, s35")
    def mfma(D, A, B, C):
        c = "0" if C is None else f"v[{C}:{C+3}]"
        k(f"v_mfma_f32_16x16x32_bf16 v[{D}:{D+3}], v[{A}:{A+3}], v[{B}:{B+3}], {c}")
    def gettags():
        k(f"""ds_read_b64 v[124:125], {VZ} offset:{L_TAG}
s_waitcnt lgkmcnt(0)
v_readfirstlane_b32 {TA}, v124
v_readfirstlane_b32 {TB}, v125""")
    SM8 = "s52"
    def settag(r, m=None):
        k(f"v_bfi_b32 v{r}, {m or SM8}, {VT}, v{r}")
    def tagacc(regs, acc, t1, t2):
        regs = list(regs)
        k(f"v_xor_b32 {acc}, {TA}, v{regs[0]}\nv_xor_b32 {t1}, {TA}, v{regs[1]}\nv_or_b32 {acc}, {acc}, {t1}")
        for i in range(2, len(regs), 2):
            k(f"v_xor_b32 {t1}, {TA}, v{regs[i]}\nv_xor_b32 {t2}, {TA}, v{regs[i+1]}\nv_or3_b32 {acc}, {acc}, {t1}, {t2}")
        k(f"v_and_b32 {acc}, {SM}, {acc}")
    def pairsum(G0, G1, D0, D1, m=None):
        k(f"""v_add_f32_dpp v{G0}, v{D0+1}, v{D0} row_shl:8 row_mask:0xf bank_mask:0x3
v_add_f32_dpp v{G1}, v{D1+1}, v{D1} row_shl:8 row_mask:0xf bank_mask:0x3
v_add_f32_dpp v{G0}, v{D0+2}, v{D0+3} row_shr:8 row_mask:0xf bank_mask:0xc
v_add_f32_dpp v{G1}, v{D1+2}, v{D1+3} row_shr:8 row_mask:0xf bank_mask:0xc""")
        settag(G0, m); settag(G1, m)
    def arow_addr(vd, vt, rowshift):
        k(f"""v_bfe_u32 {vd}, {VL}, 1, 3
v_lshlrev_b32 {vd}, {rowshift}, {vd}
v_and_b32 {vt}, 1, {VL}
v_lshl_add_u32 {vd}, {vt}, 4, {vd}
v_lshrrev_b32 {vt}, 4, {VL}
v_lshl_add_u32 {vd}, {vt}, 5, {vd}""")
    def poll4(lab, ld, slp=None, dbl=0, partial=False, w1=False):
        slp = psleep if slp is None else slp
        def check(B, ok):
            for p in range(4):
                k(f"v_bitop3_b32 v{48+p}, v{B+2*p}, v{B+1+2*p}, {VT} bitop3:0x7e")
            for p in range(4):
                k(f"v_cmp_ne_u32_sdwa s[{4+2*p}:{5+2*p}], v{48+p}, {VZ} src0_sel:BYTE_0 src1_sel:DWORD")
            k(f"""s_or_b64 s[12:13], s[4:5], s[6:7]
s_or_b64 s[14:15], s[8:9], s[10:11]
s_or_b64 s[12:13], s[12:13], s[14:15]
s_cbranch_scc0 {ok}""")
        def reissue(B):
            for m in range(4):
                k(f"s_cmp_lg_u64 s[{4+2*m}:{5+2*m}], 0\ns_cselect_b64 exec, -1, 0")
                if partial and m == 3: k("s_mov_b32 exec_hi, 0")
                ld(m, B)
            k("s_mov_b64 exec, -1")
        k(f"s_mov_b32 s72, {SPIN}")
        if not dbl:
            if w1:
                k(f"s_waitcnt vmcnt(1)\ns_branch {lab}c")
            k(f"{lab}poll:\ns_waitcnt vmcnt(0)\n{lab}c:")
            check(32, f"{lab}ok")
            if slp: k(f"s_sleep {slp}")
            reissue(32)
            k(f"""s_sub_u32 s72, s72, 1
s_cmp_lg_u32 s72, 0
s_cbranch_scc1 {lab}poll
{lab}ok:""")
        else:
            k("s_waitcnt vmcnt(0)")
            check(32, f"{lab}ok")
            for i in range(8): k(f"v_mov_b32 v{40+i}, v{32+i}")
            reissue(32)
            k(f"s_sleep {dbl}")
            reissue(40)
            k(f"{lab}poll:\ns_waitcnt vmcnt(4)")
            check(32, f"{lab}ok")
            reissue(32)
            k("s_waitcnt vmcnt(4)")
            check(40, f"{lab}okb")
            reissue(40)
            k(f"""s_sub_u32 s72, s72, 1
s_cmp_lg_u32 s72, 0
s_cbranch_scc1 {lab}poll
{lab}okb:
s_waitcnt vmcnt(0)""" if False else f"""s_sub_u32 s72, s72, 1
s_cmp_lg_u32 s72, 0
s_cbranch_scc1 {lab}poll
{lab}okb:""")
            return True
        return False

    stamp("start")
    if probe: k("s_memrealtime s[96:97]")
    k(f"""s_cmp_ge_u32 s2, 256
s_cbranch_scc1 L_end
s_load_dwordx16 s[4:19], s[0:1], 0
s_load_dwordx4 s[20:23], s[0:1], 64
s_load_dwordx2 s[24:25], s[0:1], 80
s_and_b32 s26, s2, 7
s_lshr_b32 s27, s2, 3
s_xor_b32 s27, s27, {rxor}
s_lshr_b32 s28, s27, 2
s_and_b32 s29, s27, 3
s_lshl_b32 s30, s26, 2
s_add_u32 s30, s30, s29
s_lshl_b32 s32, s28, 3
s_add_u32 s32, s32, s26
s_mov_b32 s34, 0x05040100
s_mov_b32 s35, 0x07060302
s_movk_i32 {SM}, {tagmask}
s_movk_i32 s52, 0xff
v_and_b32 {VL}, 63, v0
v_mov_b32 {VZ}, 0
v_lshrrev_b32 v1, 6, v0
v_lshlrev_b32 v2, 2, v0
v_readfirstlane_b32 s31, v1
v_cmp_gt_u32 vcc, {L_ZEND//4}, v0
s_and_saveexec_b64 s[70:71], vcc
ds_write_b32 v2, {VZ}
s_mov_b64 exec, s[70:71]
s_lshl_b32 s74, s28, 24
s_lshl_b32 s75, s26, 21
s_add_u32 s74, s74, s75
s_add_u32 s74, s74, {6144*256}
s_and_b32 s33, s31, 7
v_lshrrev_b32 v108, 4, {VL}
v_and_b32 v111, 7, {VL}
v_lshlrev_b32 v111, 4, v111
v_bfe_u32 v112, {VL}, 3, 1
v_lshlrev_b32 v112, 3, v112
v_lshl_add_u32 v112, v108, 4, v112
v_lshlrev_b32 v120, 4, {VL}
s_and_b32 s75, s33, 3
s_lshl_b32 s75, s75, 10
s_lshr_b32 s76, s33, 2
s_lshl_b32 s76, s76, 16
s_add_u32 s75, s75, s76
s_lshl_b32 s76, s29, 17
s_add_u32 s78, s75, s76
s_mul_i32 s53, s33, {rotw}
s_add_u32 s53, s53, s27
s_and_b32 s53, s53, {15 if rot else 0}
s_lshl_b32 s53, s53, 12
s_mov_b32 s54, 0xffff
s_mul_i32 s50, s28, {qrot}
s_add_u32 s50, s50, s26
s_and_b32 s50, s50, 7
s_xor_b32 s48, s28, {qx}
s_xor_b32 s49, s28, {ox}
s_nop 0""")
    if ffnmap in ("old", "old2"):
        if ffnmap == "old": k("s_mov_b32 s51, s26")
        else: k("""s_lshr_b32 s51, s26, 1
s_and_b32 s64, s26, 1
s_lshl_b32 s64, s64, 2
s_or_b32 s51, s51, s64""")
        k("""s_lshr_b32 s64, s28, 1
s_lshl_b32 s64, s64, 3
s_add_u32 s64, s64, s51
s_and_b32 s65, s28, 1
s_add_u32 s65, s65, 1
s_cmp_ge_u32 s64, 28
s_cselect_b32 s65, 0, s65
s_add_u32 s51, s28, 1""")
    else:
        k(f"""s_lshr_b32 s64, s26, 1
s_mul_i32 s64, s64, 7
s_xor_b32 s51, s28, {fx}
s_add_u32 s64, s64, s51
s_cmp_eq_u32 s51, 7
s_cselect_b32 s65, 0, 3
s_and_b32 s51, s26, 1
s_cmp_eq_u32 s51, {0 if ffnmap == "even" else 1}
s_cselect_b32 s65, s65, 0
s_mov_b32 s51, s28""")
    k("s_waitcnt lgkmcnt(0)")
    if "noffn" in abl: k("s_mov_b32 s65, 0")
    stamp("pro")
    k("s_cmp_lt_u32 s31, 8\ns_cbranch_scc1 L_kwave")
    k("s_setprio 3")
    srd(36, 4, None, 8192)
    k(f"""s_lshl_b32 s75, s33, 10
buffer_load_dwordx4 v[96:99], v120, {SX}, s75 offen
s_cmp_eq_u32 s33, 0
s_cbranch_scc1 L_setq
s_cmp_lg_u32 s33, 4
s_cbranch_scc1 L_nq1
s_bitcmp0_b32 s65, 0
s_cbranch_scc1 L_nopf""")
    srd(44, 16, None, 512 * 3584)
    k(f"""s_movk_i32 s77, 3584
s_mov_b32 s79, {57*3584}
s_mul_i32 s75, s29, {128*3584}
s_lshl_b32 s76, s64, 7
s_add_u32 s75, s75, s76
s_branch L_tload
L_setq:""")
    srd(44, 10, None, 4 << 20)
    k(f"""s_mov_b32 s76, {WS_E}
s_load_dword s68, s[24:25], s76
s_movk_i32 s77, 0x2000
s_mov_b32 s79, {57*8192}
s_lshl_b32 s75, s29, 20
s_lshl_b32 s76, s50, 10
s_add_u32 s75, s75, s76
s_lshl_b32 s76, s48, 7
s_add_u32 s75, s75, s76
L_tload:
v_mul_lo_u32 v121, v112, s77
v_add_u32 v121, v121, v111""")
    for ub in range(2):
        for t in range(8):
            r = 32 * ub + 4 * t
            if "notile" not in abl: k(f"buffer_load_dwordx4 v[{r}:{r+3}], v121, {SWA}, s75 offen{wfl}")
            k("s_add_u32 s75, s75, s77" if t < 7 else "s_add_u32 s75, s75, s79")
    k(f"""s_barrier
s_cmp_lg_u32 s33, 0
s_cbranch_scc1 L_notag
s_waitcnt lgkmcnt(0)
s_add_u32 {TA}, {TA}, 1
s_mul_i32 {TB}, {TA}, 0x9e3779b1
s_xor_b32 {TB}, {TB}, 0x5bd1e995
v_mov_b32 v124, {TA}
v_mov_b32 v125, {TB}
ds_write_b64 {VZ}, v[124:125] offset:{L_TAG}
L_notag:
s_waitcnt vmcnt({0 if "notile" in abl else 16})
s_branch L_ln""")
    k("L_nq1:")
    k(f"""s_cmp_lt_u32 s33, 6
s_cbranch_scc1 L_nopf
s_getpc_b64 s[80:81]
L_pc:
s_sub_u32 s80, s80, L_pc-{NAME}_kernel
s_subb_u32 s81, s81, 0
s_mov_b32 s82, L_codeend-{NAME}_kernel
s_mov_b32 s83, 0x20000
s_lshl_b32 s75, s29, 1
s_add_u32 s75, s75, s33
s_sub_u32 s75, s75, 6
s_lshl_b32 s75, s75, 11
buffer_load_dwordx4 v[0:3], v120, s[80:83], s75 offen
buffer_load_dwordx4 v[0:3], v120, s[80:83], s75 offen offset:1024
s_barrier
s_waitcnt vmcnt(2)
s_branch L_ln
L_nopf:
s_barrier
s_waitcnt vmcnt(0)
s_branch L_ln""")

    k.flush()
    k("L_kwave:")
    srd(40, 6, "s74", 524288)
    k(f"""v_bfe_u32 v109, {VL}, 2, 2
v_and_b32 v110, 3, {VL}
v_lshlrev_b32 v121, 8, v109
v_lshl_add_u32 v121, v108, 6, v121
v_lshl_add_u32 v121, v110, 4, v121
s_movk_i32 s77, 0x1000""")
    for t in range(16):
        if t == kfirst:
            k("s_barrier"); stamp("bar1")
        k(f"s_add_u32 s55, s78, s53\nbuffer_load_dwordx4 v[{4*t}:{4*t+3}], v121, {SKV}, s55 offen{kvflag}\ns_add_u32 s53, s53, s77\ns_and_b32 s53, s53, s54")
    stamp("kissued")
    srd(56, 24, None, WS_SIZE)
    srd(36, 4, None, 8192)
    srd(60, 20, None, 8192)
    k(f"""v_lshlrev_b32 v113, 8, v110
v_lshl_add_u32 v113, v108, 6, v113
v_lshl_add_u32 v113, v109, 4, v113
v_lshlrev_b32 v114, 7, v110
v_lshl_add_u32 v114, v108, 5, v114
v_lshl_add_u32 v114, v109, 3, v114
s_lshl_b32 s76, s33, 9
v_add_u32 v114, s76, v114
v_bfe_u32 v116, {VL}, 2, 3
v_lshlrev_b32 v116, 5, v116
v_lshl_add_u32 v116, v110, 2, v116
s_lshl_b32 s76, s33, 5
v_lshlrev_b32 v117, 2, {VL}
v_add_u32 v117, s76, v117
s_lshl_b32 s76, s33, 2
v_mov_b32 v123, s76
v_mov_b32 v122, 0""")
    lds_wait(L_CNT_XN, 8)
    gettags()
    k(f"""s_cmp_ge_u32 s33, {3 if direct else 2}
s_cbranch_scc1 L_nog
s_lshl_b32 s84, s26, 12
s_cmp_eq_u32 s33, 1
s_cbranch_scc1 L_gh
s_and_b32 s76, s27, {hrep-1}
s_lshl_b32 s76, s76, 7
s_add_u32 s79, s84, s76
s_add_u32 s79, s79, {WS_HQ}
s_lshl_b32 s75, s28, 14
s_lshl_b32 s76, s26, 11
s_add_u32 s75, s75, s76
s_mov_b32 s66, 131072
s_mov_b32 s67, 0xff800000
s_movk_i32 s77, {L_Q}
v_mov_b32 v122, {L_F_Q}
s_branch L_g
L_gh:
s_bitcmp0_b32 s65, 1
s_cbranch_scc1 L_nog
s_lshl_b32 s76, s28, 9
s_add_u32 s79, s84, s76
s_add_u32 s79, s79, {WS_HH}
s_lshl_b32 s75, s64, 13
s_add_u32 s75, s75, {WS_HP}
s_movk_i32 s66, 0x800
s_mov_b32 s67, 0
s_movk_i32 s77, {L_HN}
v_mov_b32 v122, {L_F_HN}
L_g:
v_lshlrev_b32 v121, 7, v108
v_add3_u32 v121, v121, v111, s77
v_bfe_u32 v118, {VL}, 3, 1
v_lshl_add_u32 v121, v118, 3, v121
s_mov_b32 s72, {SPIN}""")
    if "noq" in abl:
        k(f"v_mov_b32 v118, 1\nds_write_b32 {VZ}, v118 offset:{L_MODE}\ns_branch L_gskip")
    if direct:
        if direct > 1: k("s_waitcnt vmcnt(0)")
        k("s_cmp_lg_u32 s33, 2\ns_cbranch_scc1 L_nomode")
    k(f"""s_add_u32 s79, s84, {WS_HQ}
v_and_b32 v118, 31, {VL}
v_lshlrev_b32 v118, 7, v118
L_fpoll:
buffer_load_dword v64, v118, {SWS}, s79 offen sc1
s_waitcnt vmcnt(0)
v_xor_b32 v65, {TB}, v64
v_cmp_lt_u32 vcc, 15, v65
v_readfirstlane_b32 s76, v64
s_mov_b32 s70, 2
s_cbranch_vccz L_fok
s_sub_u32 s72, s72, 1
s_cmp_lg_u32 s72, 0
s_cbranch_scc1 L_fpoll
s_branch L_fw
L_fok:
v_cmp_ne_u32 vcc, s76, v64
s_cmp_eq_u64 vcc, 0
s_cselect_b32 s70, 1, 2
L_fw:
v_mov_b32 v118, s70
ds_write_b32 {VZ}, v118 offset:{L_MODE}
s_branch L_nog
L_nomode:""")
    stamp("hint")
    if "nogather" in abl: k("s_branch L_gskip")
    k(f"""s_mov_b32 s72, {SPIN}
L_qpoll:
s_mov_b32 s76, s75""")
    for ks in range(4):
        k(f"""buffer_load_dwordx4 v[{64+8*ks}:{64+8*ks+3}], v120, {SWS}, s76 offen sc1
buffer_load_dwordx4 v[{64+8*ks+4}:{64+8*ks+7}], v120, {SWS}, s76 offen offset:1024 sc1
s_add_u32 s76, s76, s66""")
    k("s_waitcnt vmcnt(0)")
    tagacc(range(64, 96), "v96", "v97", "v98")
    k(f"""v_cmp_ne_u32 vcc, 0, v96
s_cbranch_vccz L_qok
s_sub_u32 s72, s72, 1
s_cmp_lg_u32 s72, 0
s_cbranch_scc1 L_qpoll
L_qok:""")
    for i in range(32):
        k(f"v_and_b32 v{64+i}, {~tagmask & 0xffffffff:#x}, v{64+i}")
    for i in range(8):
        k(f"v_add_f32 v{64+i}, v{64+i}, v{72+i}\nv_add_f32 v{80+i}, v{80+i}, v{88+i}")
    for i in range(8):
        k(f"v_add_f32 v{64+i}, v{64+i}, v{80+i}")
    for i in range(8):
        k(f"v_max_f32 v{64+i}, s67, v{64+i}")
    for i in range(4):
        k(f"v_cvt_pk_bf16_f32 v{96+i}, v{64+2*i}, v{65+2*i}")
    k(f"""ds_write_b64 v121, v[96:97]
ds_write_b64 v121, v[98:99] offset:512""")
    k("L_gskip:")
    lds_inc(0, vaddr="v122")
    k("L_nog:")
    lds_wait(L_F_Q, 1)
    k(f"ds_read_b128 v[96:99], v113 offset:{L_Q}\ns_waitcnt vmcnt(0) lgkmcnt(0)")
    if qrot: k("s_mov_b32 s67, 1")
    stamp("qready")
    def Dreg(t): return 100 if t == 0 else 4 * (t - 1)
    def qk_step(t, i):
        D = Dreg(t); tb = t >> 2; R = 104 + (t & 3)
        qs = [q for q in range(4) if q != tb]
        q = qs[i]; n = (4 * (tb - q)) % 16
        src1 = f"v{D+tb}" if i == 0 else f"v{R}"
        k(f"v_add_f32_dpp v{R}, v{D+q}, {src1} row_ror:{n} row_mask:0xf bank_mask:{1 << tb:#x}")
    for t in range(16 + 5):
        if t < 16:
            mfma(Dreg(t), 4 * t, 96, None)
        for i in range(3):
            tt = t - 3 - i
            if 0 <= tt < 16: qk_step(tt, i)
    k(f"""s_mov_b32 s76, {SCALE:#x}
s_mov_b32 s77, {LOG2E:#x}
v_cvt_pk_bf16_f32 v0, v104, v105
v_cvt_pk_bf16_f32 v1, v106, v107
v_lshlrev_b32 v2, 16, v0
v_and_b32 v3, 0xffff0000, v0
v_lshlrev_b32 v4, 16, v1
v_and_b32 v5, 0xffff0000, v1
v_mul_f32 v2, s76, v2
v_mul_f32 v3, s76, v3
v_mul_f32 v4, s76, v4
v_mul_f32 v5, s76, v5
v_cvt_pk_bf16_f32 v0, v2, v3
v_cvt_pk_bf16_f32 v1, v4, v5
v_lshlrev_b32 v2, 16, v0
v_and_b32 v3, 0xffff0000, v0
v_lshlrev_b32 v4, 16, v1
v_and_b32 v5, 0xffff0000, v1
v_max3_f32 v6, v2, v3, v4
v_max_f32 v6, v6, v5""")
    row_reduce("v_max_f32", "v6", (4, 8))
    xrow_reduce("v_max_f32", "v6", "v7")
    k(f"""s_mov_b64 exec, 0xf
ds_write_b32 v117, v6 offset:{L_STAT}
s_mov_b64 exec, -1""")
    lds_inc(L_CNT_K)
    lds_wait(L_CNT_K, 8)
    k(f"ds_read_b32 v6, v116 offset:{L_STAT}\nds_read_b32 v118, {VZ} offset:{L_MODE}\ns_waitcnt lgkmcnt(0)\nv_readfirstlane_b32 s67, v118")
    row_reduce("v_max_f32", "v6", (4, 8))
    xrow_reduce("v_max_f32", "v6", "v7", (16,))
    for i in range(4): k(f"v_sub_f32 v{2+i}, v{2+i}, v6")
    for i in range(4): k(f"v_mul_f32 v{2+i}, s77, v{2+i}")
    for i in range(4): k(f"v_exp_f32 v{2+i}, v{2+i}")
    k(f"""v_cvt_pk_bf16_f32 v0, v2, v3
v_cvt_pk_bf16_f32 v1, v4, v5
ds_write_b64 v114, v[0:1] offset:{L_P}
v_add_f32 v8, v2, v3
v_add_f32 v9, v4, v5
v_add_f32 v8, v8, v9""")
    row_reduce("v_add_f32", "v8", (4, 8))
    xrow_reduce("v_add_f32", "v8", "v7")
    k(f"""v_mov_b32 v11, 1
s_mov_b64 exec, 0xf
ds_write_b32 v117, v8 offset:{L_STAT+16}
s_mov_b64 exec, -1
s_waitcnt lgkmcnt(0)
s_mov_b64 exec, 1
ds_write_b32 v123, v11 offset:{L_F_P}
ds_add_u32 {VZ}, v11 offset:{L_CNT_L}
s_mov_b64 exec, -1""")
    stamp("qkdone")
    if "notail" in abl:
        stamp_flush(); k("s_endpgm"); k.flush()
    k("s_cmp_lg_u32 s33, 6\ns_cbranch_scc1 L_nostat")
    lds_wait(L_CNT_L, 8)
    k(f"""ds_read_b32 v8, v116 offset:{L_STAT+16}
v_mov_b32 v7, {TA}
v_mov_b32 v9, {TB}
s_lshl_b32 s76, s32, 9
s_add_u32 s76, s76, {WS_ST}
s_lshl_b32 s75, s29, 4
s_add_u32 s76, s76, s75
v_lshlrev_b32 v10, 7, {VL}
s_waitcnt lgkmcnt(0)""")
    row_reduce("v_add_f32", "v8", (4, 8))
    xrow_reduce("v_add_f32", "v8", "v11", (16,))
    k(f"""s_mov_b64 exec, 0xf
buffer_store_dwordx4 v[6:9], v10, {SWS}, s76 offen sc1
s_mov_b64 exec, -1""")
    k("L_nostat:")
    k("s_cmp_lg_u32 s33, 7\ns_cbranch_scc1 L_nofin")
    k(f"""v_lshrrev_b32 v108, 3, {VL}
v_lshrrev_b32 v118, 1, v111
v_lshl_add_u32 v110, v108, 11, v118
v_lshl_add_u32 v112, v108, 14, v111
s_lshl_b32 s87, s28, 16
s_lshl_b32 s76, s30, 6
s_add_u32 s87, s87, s76
s_add_u32 s87, s87, {WS_OA}
s_lshl_b32 s84, s28, 11
s_lshl_b32 s76, s26, 8
s_add_u32 s84, s84, s76
s_lshr_b32 s76, s29, 1
s_lshl_b32 s76, s76, 7
s_add_u32 s84, s84, s76
s_and_b32 s76, s29, 1
s_lshl_b32 s76, s76, 3
s_add_u32 s84, s84, s76
s_add_u32 s84, s84, {WS_OB}
s_lshl_b32 s88, s28, 10
s_lshl_b32 s76, s26, 7
s_add_u32 s88, s88, s76
s_lshl_b32 s76, s29, 2
s_add_u32 s88, s88, s76
buffer_load_dword v20, v111, {SX}, s88 offen""")
    k("L_nofin:")
    k("v_and_b32 v123, 12, v123")
    lds_wait(L_F_D, 1, vaddr="v123")
    k(f"""s_lshl_b32 s82, s33, 3
s_add_u32 s82, s82, s26
s_lshl_b32 s89, s82, 13
s_lshl_b32 s82, s82, 9
s_lshl_b32 s83, s29, 7
s_add_u32 s82, s82, s83
s_add_u32 s82, s82, {WS_ST}
s_lshl_b32 s83, s29, 9
s_add_u32 s89, s89, s83
s_add_u32 s89, s89, {WS_OX}
s_add_u32 s90, s89, 4096
s_mov_b32 s72, {SPIN}
L_stpoll:
s_load_dwordx16 s[4:19], s[24:25], s82 glc
s_waitcnt lgkmcnt(0)
s_mov_b32 s73, 0""")
    for p in range(4):
        k(f"""s_xor_b32 s83, s{4+4*p+1}, {TA}
s_or_b32 s73, s73, s83
s_xor_b32 s83, s{4+4*p+3}, {TB}
s_or_b32 s73, s73, s83""")
    k(f"""s_cmp_eq_u32 s73, 0
s_cbranch_scc1 L_stok
s_sleep 12
s_sub_u32 s72, s72, 1
s_cmp_lg_u32 s72, 0
s_cbranch_scc1 L_stpoll
L_stok:
v_mov_b32 v56, s4
v_max_f32 v56, s8, v56
v_max_f32 v56, s12, v56
v_max_f32 v56, s16, v56""")
    for p in range(4): k(f"v_sub_f32 v{52+p}, s{4+4*p}, v56")
    for p in range(4): k(f"v_mul_f32 v{52+p}, s77, v{52+p}")
    for p in range(4): k(f"v_exp_f32 v{52+p}, v{52+p}")
    k(f"""v_mul_f32 v56, s6, v52
v_fmac_f32 v56, s10, v53
v_fmac_f32 v56, s14, v54
v_fmac_f32 v56, s18, v55
v_rcp_f32 v56, v56""")
    for p in range(4): k(f"v_mul_f32 v{52+p}, v{52+p}, v56")
    k(f"""s_lshl_b32 s76, s33, 8
v_lshlrev_b32 v62, 2, {VL}
v_add_u32 v62, s76, v62
v_lshlrev_b32 v61, 3, {VL}
s_mov_b32 s55, 0xffffff00
s_lshl_b32 s78, s32, 2
s_add_u32 s78, s78, s29
s_lshl_b32 s78, s78, 11
s_add_u32 s78, s78, {WS_OX}""")
    ldx = lambda m, B: k(f"buffer_load_dwordx2 v[{B+2*m}:{B+1+2*m}], v61, {SWS}, s{89 + m//2} offen offset:{2048*(m%2)} sc1")
    if pre:
        lds_wait(L_CNT_VI, pre)
        for m in range(4): ldx(m, 32)
        if obpre:
            k(f"""s_cmp_lg_u32 s33, 7
s_cbranch_scc1 L_noob
v_and_b32 v70, {SM8}, {VT}
v_and_b32 v71, {SM8}, {VT}""")
            for m in range(4):
                if m == 3: k("s_mov_b32 exec_hi, 0")
                k(f"s_add_u32 s85, s84, {m*8*16384}\nbuffer_load_dwordx2 v[{64+2*m}:{65+2*m}], v112, {SWS}, s85 offen sc1")
            k("s_mov_b64 exec, -1\nL_noob:")
    k("s_cmp_eq_u32 s67, 1")
    stamp("kready")
    k("s_barrier")
    stamp("bar2")
    k(f"""ds_read_b32 v96, v62 offset:{L_OP}
ds_read_b32 v97, v62 offset:{L_OP+2048}
ds_read_b32 v98, v62 offset:{L_OP+4096}
ds_read_b32 v99, v62 offset:{L_OP+6144}
s_waitcnt lgkmcnt(2)
v_add_f32 v96, v96, v97
s_waitcnt lgkmcnt(0)
v_add_f32 v98, v98, v99
v_add_f32 v96, v96, v98""")
    settag(96)
    k(f"""s_cbranch_scc1 L_oxpl
buffer_store_dword v96, v62, {SWS}, s78 offen sc1
s_branch L_oxst
L_oxpl:
buffer_store_dword v96, v62, {SWS}, s78 offen
L_oxst:""")
    stamp("oxst")
    if stamps and "poll1" in stamps:
        k("s_waitcnt vmcnt(0)"); stamp("poll1")
    if not pre:
        for m in range(4): ldx(m, 32)
    def oxcomb(B):
        for i in range(8): k(f"v_and_b32 v{B+i}, s55, v{B+i}")
        k(f"""v_mul_f32 v58, v{B}, v52
v_mul_f32 v59, v{B+1}, v52
v_mul_f32 v56, v{B+4}, v54
v_mul_f32 v57, v{B+5}, v54
v_fmac_f32 v58, v{B+2}, v53
v_fmac_f32 v59, v{B+3}, v53
v_fmac_f32 v56, v{B+6}, v55
v_fmac_f32 v57, v{B+7}, v55""")
    if poll4("L_ox", ldx, dbl=dblx, w1=bool(pre)):
        oxcomb(40)
        k("s_branch L_oxj\nL_oxok:")
    stamp("oxok")
    oxcomb(32)
    k(f"""L_oxj:
v_add_f32 v58, v58, v56
v_add_f32 v59, v59, v57
v_cvt_pk_bf16_f32 v58, v58, v59
ds_write_b32 v62, v58 offset:{L_O16}
s_waitcnt lgkmcnt(0)
s_barrier""")
    stamp("bar3")
    k("s_cmp_eq_u32 s33, 7\ns_cbranch_scc1 L_final")
    stamp("kend")
    stamp_flush()
    k("s_endpgm")
    k.flush()
    k("L_final:")
    def gather(vaddr, sbase, step, lab, d0, d1, partial, dbl):
        k("s_waitcnt vmcnt(0)")
        if partial:
            k(f"v_and_b32 v38, {SM8}, {VT}\nv_and_b32 v39, {SM8}, {VT}")
        for m in range(4): k(f"s_add_u32 s{80+m}, {sbase}, {m*step}")
        ld = lambda m, B: k(f"buffer_load_dwordx2 v[{B+2*m}:{B+1+2*m}], {vaddr}, {SWS}, s{80+m} offen sc1")
        if partial and obpre:
            for i in range(8): k(f"v_mov_b32 v{32+i}, v{64+i}")
        else:
            if not partial and oadelay: k(f"s_sleep {oadelay}")
            for m in range(4):
                if partial and m == 3: k("s_mov_b32 exec_hi, 0")
                ld(m, 32)
            if partial: k("s_mov_b64 exec, -1")
        def comb(B):
            for i in range(8): k(f"v_and_b32 v{B+i}, s55, v{B+i}")
            k(f"""v_add_f32 v56, v{B}, v{B+2}
v_add_f32 v57, v{B+1}, v{B+3}
v_add_f32 v58, v{B+4}, v{B+6}
v_add_f32 v59, v{B+5}, v{B+7}""")
        if poll4(lab, ld, slp=oasleep, dbl=dbl, partial=partial):
            comb(40)
            k(f"s_branch {lab}j\n{lab}ok:")
        comb(32)
        k(f"""{lab}j:
v_add_f32 {d0}, v56, v58
v_add_f32 {d1}, v57, v59
v_add_f32_dpp {d0}, {d0}, {d0} row_ror:8 row_mask:0xf bank_mask:0xf
v_add_f32_dpp {d1}, {d1}, {d1} row_ror:8 row_mask:0xf bank_mask:0xf""")
        for w in (16, 32):
            k(f"""v_mov_b32 v48, {d0}
v_mov_b32 v49, {d1}
v_permlane{w}_swap_b32 {d0}, v48
v_permlane{w}_swap_b32 {d1}, v49
v_add_f32 {d0}, {d0}, v48
v_add_f32 {d1}, {d1}, v49""")
        k(f"""v_cvt_pk_bf16_f32 v48, {d0}, {d1}
v_lshlrev_b32 {d0}, 16, v48
v_and_b32 {d1}, 0xffff0000, v48""")
    if "noffn" not in abl: gather("v112", "s84", 8 * 16384, "L_ob", "v22", "v23", True, 0)
    k("v_and_b32 v21, 0xffff0000, v20\nv_lshlrev_b32 v20, 16, v20")
    gather("v110", "s87", 16384, "L_oa", "v24", "v25", False, dbla)
    k(f"""v_add_f32 v20, v20, v24
v_add_f32 v21, v21, v25
v_cvt_pk_bf16_f32 v16, v20, v21
v_lshlrev_b32 v20, 16, v16
v_and_b32 v21, 0xffff0000, v16
v_add_f32 v20, v20, v22
v_add_f32 v21, v21, v23
v_cvt_pk_bf16_f32 v20, v20, v21
s_mov_b64 exec, 0xff
buffer_store_dword v20, v111, {SOUT}, s88 offen
s_mov_b64 exec, -1""")
    stamp("kend")
    stamp_flush()
    k(f"""s_cmp_lg_u32 s2, 0
s_cbranch_scc1 L_end
s_mov_b32 s76, {WS_E}
s_mov_b64 exec, 1
buffer_store_dword {VT}, {VZ}, {SWS}, s76 offen""")
    if probe:
        k(f"""s_memrealtime s[98:99]
s_waitcnt lgkmcnt(0)
s_sub_u32 s76, s98, s96
s_mul_i32 s76, s76, {probe}
L_probe:
s_memrealtime s[100:101]
s_waitcnt lgkmcnt(0)
s_sub_u32 s77, s100, s98
s_cmp_lt_u32 s77, s76
s_cbranch_scc1 L_probe""")
    k("s_endpgm")

    k.flush()
    k("L_ln:")
    stamp("xarr")
    for i in range(4):
        k(f"v_lshlrev_b32 v{100+2*i}, 16, v{96+i}\nv_and_b32 v{101+2*i}, 0xffff0000, v{96+i}")
    k("""v_add_f32 v96, v100, v101
v_add_f32 v97, v102, v103
v_add_f32 v98, v104, v105
v_add_f32 v99, v106, v107
v_add_f32 v96, v96, v97
v_add_f32 v98, v98, v99
v_add_f32 v96, v96, v98""")
    row_reduce("v_add_f32", "v96")
    xrow_reduce("v_add_f32", "v96", "v97")
    k("v_mul_f32 v96, 0x3b000000, v96")
    k("v_sub_f32 v98, v100, v96\nv_mul_f32 v97, v98, v98")
    for i in range(1, 8):
        k(f"v_sub_f32 v98, v{100+i}, v96\nv_fmac_f32 v97, v98, v98")
    row_reduce("v_add_f32", "v97")
    xrow_reduce("v_add_f32", "v97", "v98")
    k("v_mul_f32 v97, 0x3b000000, v97")
    rnd("v96", "v96"); rnd("v97", "v97")
    k("v_add_f32 v97, 0x3727c5ac, v97")
    rnd("v97", "v97")
    k("v_sqrt_f32 v97, v97")
    rnd("v97", "v97")
    k("v_rcp_f32 v98, v97")
    for i in range(0, 8, 2):
        a, b2 = 100 + i, 101 + i
        k(f"""v_sub_f32 v{a}, v{a}, v96
v_sub_f32 v{b2}, v{b2}, v96
v_cvt_pk_bf16_f32 v99, v{a}, v{b2}
v_lshlrev_b32 v{a}, 16, v99
v_and_b32 v{b2}, 0xffff0000, v99""")
    for i in range(8):
        a = 100 + i
        k(f"""v_mul_f32 v99, v{a}, v98
v_fma_f32 v{a}, -v99, v97, v{a}
v_fma_f32 v{a}, v{a}, v98, v99""")
    for i in range(4):
        k(f"v_cvt_pk_bf16_f32 v{96+i}, v{100+2*i}, v{101+2*i}")
    k(f"""s_lshl_b32 s75, s33, 10
v_add_u32 v122, s75, v120
ds_write_b128 v122, v[96:99] offset:{L_XN}""")
    lds_inc(L_CNT_XN)
    stamp("ln")
    srd(56, 24, None, WS_SIZE)
    srd(40, 8, "s74", 524288)
    k("v_mov_b32 v119, 0")
    k(f"""s_mov_b32 s66, 0
s_cmp_eq_u32 s33, 0
s_cbranch_scc1 L_tq
s_cmp_lt_u32 s33, 3
s_cbranch_scc1 L_f2l
s_cmp_lg_u32 s33, 4
s_cbranch_scc1 L_vload
s_bitcmp0_b32 s65, 0
s_cbranch_scc1 L_vload""")
    k(f"""v_lshrrev_b32 v121, 3, {VL}
v_lshlrev_b32 v123, 7, v121
v_lshlrev_b32 v121, 8, v121
v_lshrrev_b32 v122, 2, v111
v_add_u32 v123, v123, v122
s_lshl_b32 s75, s64, 2
s_add_u32 s75, s75, s29
s_lshl_b32 s75, s75, 11
s_add_u32 s75, s75, {WS_HP}
s_lshl_b32 s76, s26, 12
s_lshl_b32 s77, s51, 9
s_add_u32 s76, s76, s77
s_lshl_b32 s77, s29, 5
s_add_u32 s76, s76, s77
s_add_u32 s76, s76, {WS_HH}
s_movk_i32 s70, {0 if direct else 0xff}
s_branch L_tile
L_tq:
v_lshrrev_b32 v121, 3, {VL}
v_lshlrev_b32 v121, 14, v121
v_lshlrev_b32 v123, 7, {VL}
s_lshl_b32 s75, s29, 17
s_lshl_b32 s76, s50, 11
s_add_u32 s75, s75, s76
s_lshl_b32 s77, s48, 8
s_add_u32 s75, s75, s77
s_lshl_b32 s76, s50, 12
s_lshl_b32 s77, s27, 7
s_add_u32 s76, s76, s77
s_add_u32 s76, s76, {WS_HQ}
s_mov_b32 s70, 1
L_tile:
s_mov_b32 s71, 0
v_add_u32 v121, v111, v121""")
    arow_addr("v122", "v118", 10)
    k(f"""s_lshl_b32 s77, s29, 8
v_add_u32 v122, s77, v122""")
    lds_wait(L_CNT_XN, 8)
    k(f"""ds_read_b128 v[96:99], v122 offset:{L_XN}
ds_read_b128 v[100:103], v122 offset:{L_XN+128}""")
    gettags()
    k(f"""s_getreg_b32 s77, hwreg(HW_REG_XCC_ID)
s_and_b32 s77, s77, 15
s_andn2_b32 s79, {TB}, 15
s_or_b32 s77, s77, s79
v_mov_b32 v122, s77""")
    for ub in range(2):
        k(f"s_waitcnt vmcnt({8 - 8*ub})")
        for w in range(4):
            T = 104 + 8 * (w & 1)
            perms(T, 32 * ub, w)
            mfma(64 + 8 * w, 96 + 4 * ub, T, None if ub == 0 else 64 + 8 * w)
            mfma(68 + 8 * w, 96 + 4 * ub, T + 4, None if ub == 0 else 68 + 8 * w)
    for w in range(4):
        pairsum(96 + 2 * w, 97 + 2 * w, 64 + 8 * w, 68 + 8 * w, SM)
    k(f"""v_mov_b32 v119, v121
s_mov_b32 s94, s75
s_mov_b32 s66, {3 if opt else 0}
buffer_store_dwordx4 v[96:99], v121, {SWS}, s75 offen{"" if opt else " sc1"}
buffer_store_dwordx4 v[100:103], v121, {SWS}, s75 offen offset:128{"" if opt else " sc1"}
s_mov_b64 exec, s[70:71]
{"s_nop 0" if "nohint" in abl else f"buffer_store_dword v122, v123, {SWS}, s76 offen{hst}"}
s_mov_b64 exec, -1""")
    stamp("tpub")
    k("s_branch L_vload")
    k.flush()
    k("L_f2l:")
    k("s_bitcmp0_b32 s65, 1\ns_cbranch_scc1 L_vload")
    srd(44, 18, None, 1792 * 1024)
    k(f"""s_setprio 0
s_mov_b32 s66, 1
v_lshl_add_u32 v121, v112, 10, v111
s_lshl_b32 s75, s64, 16
s_lshl_b32 s76, s29, 8
s_add_u32 s75, s75, s76
s_sub_u32 s76, s33, 1
s_lshl_b32 s76, s76, 7
s_add_u32 s75, s75, s76
s_add_u32 s76, s75, 4096""")
    for t in range(8):
        k(f"buffer_load_dwordx4 v[{64+4*t}:{64+4*t+3}], v121, {SWA}, s{75 + t//4} offen offset:{(t%4)*1024}{wfl}")
    k("s_branch L_vload")
    k.flush()
    k("L_vload:")
    k(f"""s_setprio 0
s_movk_i32 s77, 0x1000""")
    for t in range(16):
        k(f"s_add_u32 s55, s78, s53\nbuffer_load_dwordx4 v[{4*t}:{4*t+3}], v120, {SKV}, s55 offen{kvflag}\ns_add_u32 s53, s53, s77\ns_and_b32 s53, s53, s54")
    k("s_cmp_lt_u32 s33, 4\ns_cbranch_scc1 L_novi")
    lds_inc(L_CNT_VI)
    k("L_novi:")
    stamp("vissued")
    k("""s_cmp_eq_u32 s66, 0
s_cbranch_scc1 L_noj
s_cmp_lg_u32 s66, 3
s_cbranch_scc1 L_f2w""")
    lds_wait(L_MODE, 1)
    k(f"""s_cmp_eq_u32 s73, 1
s_cbranch_scc1 L_noj
buffer_store_dwordx4 v[96:99], v119, {SWS}, s94 offen sc1
buffer_store_dwordx4 v[100:103], v119, {SWS}, s94 offen offset:128 sc1
s_branch L_noj
L_f2w:
s_waitcnt vmcnt(16)""")
    k("L_f2:")
    arow_addr("v122", "v118", 7)
    k(f"""v_lshrrev_b32 v121, 3, {VL}
v_lshlrev_b32 v121, 11, v121
v_and_b32 v123, 7, {VL}
v_lshl_add_u32 v121, v123, 4, v121
s_lshl_b32 s75, s64, 14
s_lshl_b32 s76, s29, 9
s_add_u32 s75, s75, s76
s_sub_u32 s76, s33, 1
s_lshl_b32 s76, s76, 8
s_add_u32 s75, s75, s76
s_add_u32 s75, s75, {WS_OB}""")
    lds_wait(L_F_HN, 1)
    k(f"ds_read_b128 v[112:115], v122 offset:{L_HN}")
    gettags()
    k("s_setprio 3")
    for w in range(4):
        G = 116 + 2 * (w & 1)
        perms(96, 64, w)
        mfma(104, 112, 96, None)
        mfma(108, 112, 100, None)
        pairsum(G, G + 1, 104, 108)
        if w & 1: k(f"buffer_store_dwordx4 v[116:119], v121, {SWS}, s75 offen offset:{128*(w>>1)} sc1")
    k("s_setprio 0")
    stamp("tpub")
    k("L_noj:")
    k(f"""v_lshrrev_b32 v108, 4, {VL}
v_and_b32 v110, 3, {VL}
v_bfe_u32 v109, {VL}, 2, 2
v_lshlrev_b32 v122, 7, v110
v_lshl_add_u32 v122, v108, 5, v122
s_lshl_b32 s75, s33, 9
s_add_u32 s75, s75, {L_P}
v_add_u32 v122, s75, v122
v_mov_b32 v123, {L_ZERO}""")
    for dl in range(4):
        k(f"v_cmp_eq_u32 vcc, {dl}, v109\nv_cndmask_b32 v{112+dl}, v123, v122, vcc")
    k(f"""s_lshl_b32 s75, s33, 2
v_mov_b32 v123, s75
s_and_b32 s75, s33, 3
s_lshl_b32 s76, s75, 2
v_mov_b32 v121, s76
s_lshl_b32 s75, s75, 11
v_add_u32 v120, s75, v120
v_lshlrev_b32 v122, 2, {VL}
v_add_u32 v122, s75, v122""")
    lds_wait(L_F_P, 1, vaddr="v123")
    for ub in range(2):
        for dl in range(4):
            r = 64 + 16 * ub + 4 * dl
            k(f"ds_read_b128 v[{r}:{r+3}], v{112+dl} offset:{16*ub}")
    k("s_cmp_ge_u32 s33, 4\ns_cbranch_scc1 L_g3")
    for i in range(8): k(f"v_mov_b32 v{96+i}, 0")
    k("s_branch L_pv\nL_g3:")
    lds_wait(L_F_D, 1, vaddr="v121")
    k(f"""ds_read_b128 v[96:99], v120 offset:{L_DX}
ds_read_b128 v[100:103], v120 offset:{L_DX+1024}""")
    srd(44, 12, None, 4 << 20)
    k(f"""v_bfe_u32 v116, {VL}, 3, 1
v_lshlrev_b32 v116, 6, v116
v_lshrrev_b32 v117, 4, {VL}
v_add_u32 v116, v116, v117
v_and_b32 v117, 7, {VL}
v_lshlrev_b32 v117, 4, v117
v_lshl_add_u32 v116, v116, 10, v117
s_lshl_b32 s75, s30, 17
s_lshl_b32 s76, s49, 7
s_add_u32 s75, s75, s76
s_bfe_u32 s76, s33, 0x10001
s_lshl_b32 s76, s76, 12
s_add_u32 s75, s75, s76
s_and_b32 s76, s33, 1
s_lshl_b32 s76, s76, 15
s_add_u32 s75, s75, s76
s_and_b32 s77, s33, 3
s_lshl_b32 s77, s77, 12
s_add_u32 m0, s77, {L_WT}""")
    lds_wait(L_CNT_VI, 4)
    for t in range(4):
        k(f"buffer_load_dwordx4 v116, {SWA}, {'s75' if 'nowo' not in abl else '0'} offen{wfl} lds\ns_add_u32 m0, m0, 0x400\ns_add_u32 s75, s75, 0x2000")
    lds_inc(L_CNT_VI)
    k(f"""L_pv:
s_waitcnt lgkmcnt(0)
s_cmp_ge_u32 s33, 4""")
    stamp("fdok")
    def vwait(n):
        lab = k.label("Lv")
        k(f"s_cbranch_scc1 {lab}\ns_waitcnt vmcnt({n})\n{lab}:\ns_waitcnt vmcnt({n+4})")
    vwait(8)
    for w in range(4):
        T = 104 + 8 * (w & 1)
        perms(T, 0, w)
        for hh in range(2):
            di = 2 * w + hh; x = di >> 2; dl = di & 3
            mfma(96 + 4 * x, 64 + 4 * dl, T + 4 * hh, 96 + 4 * x)
    gettags()
    arow_addr("v116", "v118", 8)
    k(f"""s_and_b32 s77, s33, 3
s_lshl_b32 s76, s77, 2
v_lshlrev_b32 v117, 4, {VL}
v_add_u32 v117, s76, v117
v_lshrrev_b32 v119, 3, {VL}
v_lshlrev_b32 v119, 16, v119
v_and_b32 v118, 7, {VL}
v_lshl_add_u32 v119, v118, 3, v119
s_lshl_b32 s86, s30, 11
s_lshl_b32 s76, s49, 8
s_add_u32 s86, s86, s76
s_lshl_b32 s76, s77, 6
s_add_u32 s86, s86, s76
s_add_u32 s86, s86, {WS_OA}
s_cmp_ge_u32 s33, 4""")
    for p in range(4):
        vwait(6 - 2 * p)
        if p == 3: stamp("varr")
        for w in range(4):
            k(f"v_perm_b32 v{8*w+p}, v{32+4*(2*p+1)+w}, v{32+4*(2*p)+w}, s34")
            k(f"v_perm_b32 v{8*w+4+p}, v{32+4*(2*p+1)+w}, v{32+4*(2*p)+w}, s35")
            if p == 3 and w >= 1:
                di = 2 * (w - 1)
                for d in (di, di + 1):
                    mfma(96 + 4 * (d >> 2), 80 + 4 * (d & 3), 4 * d, 96 + 4 * (d >> 2))
    for d in (6, 7):
        mfma(96 + 4 * (d >> 2), 80 + 4 * (d & 3), 4 * d, 96 + 4 * (d >> 2))
    k("s_cmp_ge_u32 s33, 4\ns_cbranch_scc1 L_g3b")
    k(f"""ds_write_b128 v120, v[96:99] offset:{L_DX}
ds_write_b128 v120, v[100:103] offset:{L_DX+1024}""")
    lds_inc(L_F_D, vaddr="v121")
    stamp("pvdone")
    stamp_flush()
    k("s_endpgm")
    k.flush()
    k("L_g3b:")
    for x in range(2):
        for h in range(4):
            k(f"ds_write_b32 v122, v{96+4*x+h} offset:{L_OP + h*512 + x*256}")
    k("s_waitcnt lgkmcnt(0)")
    stamp("pvdone")
    if "notail" in abl:
        stamp_flush(); k("s_endpgm"); k.flush()
    k("s_barrier")
    k("s_waitcnt vmcnt(0)")
    lds_inc(L_CNT_WO)
    lds_wait(L_CNT_WO, 4, slp=0)
    for n in range(16):
        k(f"ds_read_b32 v{n}, v117 offset:{L_WT + 1024*n}")
    for ub in range(2):
        k(f"s_waitcnt lgkmcnt({8 - 8*ub})")
        for p in range(4):
            k(f"v_perm_b32 v{16+8*ub+p}, v{8*ub+2*p+1}, v{8*ub+2*p}, s34")
            k(f"v_perm_b32 v{16+8*ub+4+p}, v{8*ub+2*p+1}, v{8*ub+2*p}, s35")
    stamp("woready")
    k(f"""s_barrier
ds_read_b128 v[96:99], v116 offset:{L_O16}
ds_read_b128 v[100:103], v116 offset:{L_O16+128}
s_waitcnt lgkmcnt(1)""")
    mfma(104, 96, 16, None); mfma(108, 96, 20, None)
    k("s_waitcnt lgkmcnt(0)")
    mfma(104, 100, 24, 104); mfma(108, 100, 28, 108)
    pairsum(112, 113, 104, 108)
    k(f"buffer_store_dwordx2 v[112:113], v119, {SWS}, s86 offen sc1")
    stamp("gend")
    stamp_flush()
    k("L_end:")
    k("s_endpgm")
    k("L_codeend:")

    T = []
    T.append('.section .rodata,"a"'); T.append(".p2align 6")
    T.append(f".amdhsa_kernel {NAME}_kernel")
    T.append("  .amdhsa_next_free_vgpr 128"); T.append("  .amdhsa_next_free_sgpr 102"); T.append("  .amdhsa_accum_offset 128")
    T.append("  .amdhsa_group_segment_fixed_size 0"); T.append("  .amdhsa_kernarg_size 88"); T.append("  .amdhsa_user_sgpr_count 2")
    T.append("  .amdhsa_user_sgpr_kernarg_segment_ptr 1"); T.append("  .amdhsa_system_sgpr_workgroup_id_x 1")
    T.append("  .amdhsa_float_denorm_mode_32 3")
    T.append(".end_amdhsa_kernel")
    open(fname, "w").write("\n".join(H) + "\n" + k.text() + "\n".join(T) + "\n")

SA = {"start": 0, "hint": 1, "qready": 2, "ln": 1, "tpub": 1, "vissued": 2}
SB = {"start": 0, "qkdone": 1, "kready": 2, "varr": 1, "pvdone": 2}
SC = {"start": 0, "bar2": 1, "kend": 2, "varr": 1, "pvdone": 2}
SE = {"start": 0, "bar3": 1, "kend": 2, "varr": 1, "pvdone": 2}
SD = {"start": 0, "kissued": 1, "qready": 2, "vissued": 1, "varr": 2}
SI = {"start": 0, "bar2": 1, "kend": 2, "woready": 1, "gend": 2}

SM_ = {"start": 0, "kissued": 1, "qkdone": 2, "vissued": 1, "pvdone": 2}
if __name__ == "__main__":
    gen("k28.s")
    gen("k28_d1_sc.s", stamps=SI, direct=1)
    gen("k28_d2_sc.s", stamps=SI, direct=2)
    gen("k28_d1_a0.s", stamps=SM_, direct=1)
    gen("k28_d1_a3.s", stamps=SM_, direct=1, abl=("notail", "nowo", "noffn"))
```

```python
from gen28 import *
gen("k28_b_sc.s", stamps=SI)
gen("k28_p4_sc.s", stamps=SI, pre=4)
gen("k28_kf1_sc.s", stamps=SI, kfirst=1)
gen("k28_kf2_sc.s", stamps=SI, kfirst=2)
gen("k28_rw1_sc.s", stamps=SI, rotw=1)
gen("k28_rw4_sc.s", stamps=SI, rotw=4)
gen("k28_q0_sc.s", stamps=SI, qx=0, ox=0)
```
